```python
import torch

def _softmax(x, axis=-1):
    return torch.softmax(x, dim=axis)
def _gelu(x):
    return torch.nn.functional.gelu(x, approximate="tanh")
def _silu(x):
    return torch.nn.functional.silu(x)
def _sigmoid(x):
    return torch.sigmoid(x)
def _layernorm(x, axis=-1, eps=1e-5):
    m = x.mean(dim=axis, keepdim=True)
    v = x.var(dim=axis, keepdim=True, unbiased=False)
    return (x - m) / torch.sqrt(v + eps)
def _scatter_add(tgt, idx, src, axis=0):
    return tgt.clone().index_add_(axis, idx, src)
def _segment_sum(src, seg, n):
    out = torch.zeros((n,) + src.shape[1:], dtype=src.dtype)
    return out.index_add_(0, seg, src)
def _pad(x, pw):
    flat = tuple(v for pair in reversed(pw) for v in pair)
    return torch.nn.functional.pad(x, flat)

kernel_name = 'recurrent_scan__sliding_block_cached__dense_activation_relu__decode'

def setup_inputs():

    _w = (lambda a: (lambda t: t.to(torch.bfloat16) if t.is_floating_point() else t)(torch.as_tensor(a)))
    def _A_setup():
        B, Sq, D = 4, 1, 512
        Hq, Hkv, Sk, Dh = 32, 8, 16384, 128
        assert Hq % Hkv == 0, (Hq, Hkv)
        return {
            "x": _w((lambda *s: torch.randn(*s, dtype=torch.bfloat16) * 0.05)(B, Sq, D)),
            "k_cache": _w((lambda *s: torch.randn(*s, dtype=torch.bfloat16) * 1.6)(B, Hkv, Sk, Dh)),
            "v_cache": _w((lambda *s: torch.randn(*s, dtype=torch.bfloat16) * 0.2)(B, Hkv, Sk, Dh)),
            "wq": _w((lambda *s: torch.randn(*s, dtype=torch.bfloat16) * 1.6)(D, Hq * Dh) * (D ** -0.5)),
            "wo": _w((lambda *s: torch.randn(*s, dtype=torch.bfloat16) * 0.2)(Hq * Dh, D) * ((Hq * Dh) ** -0.5)),
        }
    _A_in = _A_setup()

    def _B_setup():
        B, S, D, Dff = 4, 1, 512, 1792
        return {
            "x": _w((lambda *s: torch.randn(*s, dtype=torch.bfloat16) * 0.05)(B, S, D)),
            "w1": _w((lambda *s: torch.randn(*s, dtype=torch.bfloat16) * 0.1)(D, Dff)),
            "w2": _w((lambda *s: torch.randn(*s, dtype=torch.bfloat16) * 0.1)(Dff, D)),
        }
    _B_in = _B_setup()

    return {
        "A_x": _A_in["x"],
        "A_k_cache": _A_in["k_cache"],
        "A_v_cache": _A_in["v_cache"],
        "A_wq": _A_in["wq"],
        "A_wo": _A_in["wo"],
        "B_x": _B_in["x"],
        "B_w1": _B_in["w1"],
        "B_w2": _B_in["w2"],
    }

def reference(A_x, A_k_cache, A_v_cache, A_wq, A_wo, B_x, B_w1, B_w2):
    def _A_ref(x, k_cache, v_cache, wq, wo):
        B, Sq, D = x.shape
        Hq, Dh = 32, 128
        Hkv, Sk = k_cache.shape[1], k_cache.shape[2]
        W = min(4096, max(256, Sk // 4))
        rep = Hq // Hkv
        q = (lambda x, *d: x.permute(*d))((x @ wq).reshape(B, Sq, Hq, Dh), 0, 2, 1, 3)
        k = (lambda x, n, axis: torch.repeat_interleave(x, n, dim=axis))(k_cache[:, :, Sk - W:, :], rep, axis=1)
        v = (lambda x, n, axis: torch.repeat_interleave(x, n, dim=axis))(v_cache[:, :, Sk - W:, :], rep, axis=1)
        scores = torch.einsum("bhqd,bhkd->bhqk", q, k) * (Dh ** -0.5)
        p = _softmax(scores, axis=-1)
        o = torch.einsum("bhqk,bhkd->bhqd", p, v)
        return (lambda x, *d: x.permute(*d))(o, 0, 2, 1, 3).reshape(B, Sq, Hq * Dh) @ wo

    def _B_ref(x, w1, w2):
        h = torch.einsum("bsd,df->bsf", x, w1)
        zero = torch.zeros_like(h)
        h = torch.maximum(h, zero)
        return torch.einsum("bsf,fd->bsd", h, w2)

    x = A_x
    xn = _layernorm(x, axis=-1)
    s = _A_ref(xn, A_k_cache, A_v_cache, A_wq, A_wo)
    g = _silu(_B_ref(xn, B_w1, B_w2))
    return x + s * g
```

```python
import sys

KN = "recurrent_scan__sliding_block_cached__dense_activation_relu__decode"

WS_Q = 0x00000
WS_H = 0x40000
WS_OP = 0x60000
WS_LSE = 0xE0000
WS_SP = 0xF0000
WS_GP = 0x130000
WS_SIZE = 0x170000
WS_STAMP = 0x180000

L_K = 0
L_RED = 0
L_LSUM = 8192
L_OBF = 10240
L_T0 = 131072
L_QB = 131072
L_MAX = 131072 + 1024
L_SCALE = 131072 + 2048
L_HB = 131072 + 3072
L_W2 = 131072 + 4096
L_T1 = 147456
L_WO = 147456
LDS_BYTES = 163840

SENT_FIX = 0xFFFFFFFE
POLL_LIMIT = 200000


class Asm:
    def __init__(self):
        self.L = []
        self.nlab = 0

    def __call__(self, s):
        for line in s.split("\n"):
            line = line.strip()
            if line:
                self.L.append(line)

    def label(self, base):
        self.nlab += 1
        return f"L_{base}_{self.nlab}"

    def text(self):
        out = []
        for l in self.L:
            if l.endswith(":") or l.startswith(".") or l.startswith(";"):
                out.append(l)
            else:
                out.append("    " + l)
        return "\n".join(out) + "\n"


def vr(a, n=1):
    return f"v{a}" if n == 1 else f"v[{a}:{a + n - 1}]"


def sr(a, n=1):
    return f"s{a}" if n == 1 else f"s[{a}:{a + n - 1}]"


def gen(diag=False, thr=6, kpol="nt", wpol="nt", stop=None, exp_fullline=False, early=False):
    e = Asm()
    PF2 = diag
    S_X, S_K, S_V, S_WQ, S_WO, S_BX, S_W1, S_W2 = 4, 6, 8, 10, 12, 14, 16, 18
    S_OUT, S_DBG, S_WS = 20, 22, 24
    S_XI, S_Y, S_WAVE, S_B, S_SP = 26, 27, 28, 29, 30
    R_A, R_B, R_WS, R_C, R_D = 32, 36, 40, 44, 48
    T = 52
    S_STAMP = 72
    S_M16, S_SC, S_L2E, S_PLO, S_PHI = 96, 97, 98, 99, 100
    nstamp = [0]

    def estamp(k):
        if diag and early:
            e(f"s_memrealtime s[{S_STAMP + 2 * k}:{S_STAMP + 2 * k + 1}]")
            e("s_waitcnt lgkmcnt(0)")

    def stamp(k):
        if diag and not (early and k != 11):
            assert k < 12
            e(f"s_memrealtime s[{S_STAMP + 2 * k}:{S_STAMP + 2 * k + 1}]")
            e("s_waitcnt lgkmcnt(0)")

    def stamp_flush():
        if diag:
            e("s_waitcnt vmcnt(0) lgkmcnt(0)")
            e(f"s_lshl_b32 s{T}, s2, 3")
            e(f"s_add_u32 s{T}, s{T}, s{S_WAVE}")
            e(f"s_lshl_b32 s{T}, s{T}, 7")
            e(f"s_add_u32 s{T}, s{T}, {WS_STAMP}")
            e("s_mov_b64 exec, 1")
            e(f"v_mov_b32 v1, s{T}")
            for k in range(12):
                e(f"v_mov_b32 v2, s{S_STAMP + 2 * k}")
                e(f"v_mov_b32 v3, s{S_STAMP + 2 * k + 1}")
                e(f"global_store_dwordx2 v1, v[2:3], s[{S_WS}:{S_WS + 1}] offset:{8 * k}")
            e("s_waitcnt vmcnt(0)")

    def karg2():
        e("s_load_dwordx4 s[20:23], s[0:1], 64")
        e("s_load_dwordx2 s[24:25], s[0:1], 80")

    def srd(r, lo, hi, size):
        if lo != r:
            e(f"s_mov_b32 s{r}, s{lo}")
            e(f"s_mov_b32 s{r + 1}, s{hi}")
        e(f"s_mov_b32 s{r + 2}, {size}")
        e(f"s_mov_b32 s{r + 3}, 0x20000")

    def srd_off(r, base, soff, size):
        e(f"s_add_u32 s{r}, s{base}, s{soff}")
        e(f"s_addc_u32 s{r + 1}, s{base + 1}, 0")
        e(f"s_mov_b32 s{r + 2}, {size}")
        e(f"s_mov_b32 s{r + 3}, 0x20000")

    def poll_begin(name):
        lab = e.label(name)
        e(f"s_mov_b32 s{T + 17}, {POLL_LIMIT}")
        e(f"{lab}:")
        return lab

    def poll_end(lab):
        done = lab + "_d"
        e("s_cmp_eq_u64 vcc, 0")
        e(f"s_cbranch_scc1 {done}")
        e(f"s_sub_u32 s{T + 17}, s{T + 17}, 1")
        e(f"s_cbranch_scc1 {done}")
        e("s_sleep 1")
        e(f"s_branch {lab}")
        e(f"{done}:")

    hdr = []
    hdr.append(f"; @launch grid=(256,1,1) block=(512,1,1) lds={LDS_BYTES}")
    e.L += hdr
    e('.amdgcn_target "amdgcn-amd-amdhsa--gfx950"')
    e(".text")
    e(f".globl {KN}_kernel")
    e(".p2align 8")
    e(f".type {KN}_kernel,@function")
    e(f"{KN}_kernel:")
    if diag:
        e(f"s_memrealtime s[{S_STAMP}:{S_STAMP + 1}]")
    e("s_cmp_ge_u32 s2, 256")
    e("s_cbranch_scc1 L_end")
    e("s_load_dwordx16 s[4:19], s[0:1], 0")
    e("s_getpc_b64 s[60:61]")
    e("L_pc:")
    e(f"s_sub_u32 s60, s60, L_pc-{KN}_kernel")
    e("s_subb_u32 s61, s61, 0")
    e("v_lshlrev_b32 v1, 4, v0")
    e("global_load_dword v255, v1, s[60:61]")
    if PF2:
        e("v_add_u32 v1, 0x2000, v1")
        e("global_load_dword v255, v1, s[60:61]")
    e("v_lshrrev_b32 v1, 6, v0")
    e(f"s_and_b32 s{S_XI}, s2, 7")
    e(f"s_lshr_b32 s{S_Y}, s2, 3")
    e(f"v_readfirstlane_b32 s{S_WAVE}, v1")
    e("v_and_b32 v0, 63, v0")
    e(f"s_lshr_b32 s{S_B}, s{S_Y}, 3")
    e(f"s_and_b32 s{S_SP}, s{S_Y}, 7")
    e(f"s_mov_b32 s{S_M16}, 0xffff0000")
    e("v_lshrrev_b32 v1, 4, v0")
    e("v_and_b32 v2, 15, v0")
    e(f"s_cmp_lt_u32 s{S_WAVE}, 4")
    e("s_cbranch_scc1 L_H")

    SW = T
    ROT = T + 1
    e(f"s_sub_u32 s{SW}, s{S_WAVE}, 4")
    e(f"s_lshl_b32 s{T + 2}, s{S_B}, 3")
    e(f"s_add_u32 s{T + 2}, s{T + 2}, s{S_XI}")
    e(f"s_lshl_b32 s{T + 2}, s{T + 2}, 22")
    e(f"s_lshl_b32 s{T + 3}, s{S_SP}, 17")
    e(f"s_add_u32 s{T + 2}, s{T + 2}, s{T + 3}")
    e(f"s_add_u32 s{T + 2}, s{T + 2}, 0x300000")
    e(f"s_add_u32 s{ROT}, s{S_XI}, s{S_Y}")
    e(f"s_add_u32 s{ROT}, s{ROT}, s{SW}")
    e(f"s_and_b32 s{ROT}, s{ROT}, 31")
    e(f"s_lshl_b32 s{ROT}, s{ROT}, 12")
    VK = 4
    VV = 8
    e("v_lshlrev_b32 v3, 2, v1")
    e("v_xor_b32 v3, v2, v3")
    e("v_lshlrev_b32 v3, 4, v3")
    e(f"v_lshl_add_u32 v{VK}, v1, 8, v3")
    e(f"v_xor_b32 v{VK + 1}, 16, v{VK}")
    e(f"v_xor_b32 v{VK + 2}, 32, v{VK}")
    e(f"v_xor_b32 v{VK + 3}, 48, v{VK}")
    e(f"v_lshlrev_b32 v{VV}, 4, v0")
    e(f"s_lshl_b32 s{T + 4}, s{SW}, 15")
    e(f"s_mov_b32 s{T + 5}, s{ROT}")
    e(f"s_mov_b32 s{T + 6}, 8")
    estamp(1)
    e("s_waitcnt lgkmcnt(0)")
    estamp(2)
    karg2()
    srd_off(R_A, S_K, T + 2, 0x20000)
    srd_off(R_B, S_V, T + 2, 0x20000)
    e(f"s_mov_b32 m0, s{T + 4}")
    e("s_barrier")
    e("L_kloop:")
    for q in range(4):
        e(f"buffer_load_dwordx4 v{VK + q}, s[{R_A}:{R_A + 3}], s{T + 5} offen offset:{q * 1024} {kpol} lds")
        e(f"s_waitcnt vmcnt({thr})")
    e(f"s_add_u32 s{T + 5}, s{T + 5}, 16384")
    e(f"s_and_b32 s{T + 5}, s{T + 5}, 0x1ffff")
    e(f"s_add_u32 s{T + 4}, s{T + 4}, 4096")
    e(f"s_mov_b32 m0, s{T + 4}")
    e(f"s_sub_u32 s{T + 6}, s{T + 6}, 1")
    if diag and early:
        for kk in range(1, 8):
            lb = e.label("es")
            e(f"s_cmp_lg_u32 s{T + 6}, {8 - kk}")
            e(f"s_cbranch_scc1 {lb}")
            estamp(2 + kk)
            e(f"{lb}:")
    e(f"s_cmp_lg_u32 s{T + 6}, 0")
    e("s_cbranch_scc1 L_kloop")
    stamp(1)

    VB = 128

    def vtile_off(t):
        e(f"s_add_u32 s{T + 7}, s{ROT}, {t * 16384}")
        e(f"s_and_b32 s{T + 7}, s{T + 7}, 0x1ffff")

    def vload(u, k0, k1, throttle=None):
        for k in range(k0, k1):
            Tt, i = k >> 2, k & 3
            if i == 0 or k == k0:
                vtile_off(2 * u + Tt)
            r = VB + u * 32 + k * 4
            e(f"buffer_load_dwordx4 {vr(r, 4)}, v{VV}, s[{R_B}:{R_B + 3}], s{T + 7} offen offset:{i * 1024} {kpol}")
            if throttle is not None:
                e(f"s_waitcnt vmcnt({throttle})")

    vload(0, 0, 8, thr)
    e(f"s_mov_b32 s{S_SC}, 0x3db504f3")
    e(f"s_mov_b32 s{S_L2E}, 0x3fb8aa3b")
    e(f"s_mov_b32 s{S_PLO}, 0x05040100")
    e(f"s_mov_b32 s{S_PHI}, 0x07060302")
    VKA = 9
    e("v_and_b32 v3, 3, v2")
    e("v_lshlrev_b32 v3, 2, v3")
    e("v_lshrrev_b32 v13, 2, v2")
    e("v_add_u32 v3, v3, v13")
    e("v_lshlrev_b32 v3, 8, v3")
    e("v_xor_b32 v13, v1, v2")
    e("v_lshl_add_u32 v3, v13, 4, v3")
    e(f"s_lshl_b32 s{T + 4}, s{SW}, 15")
    e(f"v_add_u32 v{VKA}, s{T + 4}, v3")
    e(f"v_xor_b32 v{VKA + 1}, 64, v{VKA}")
    e(f"v_xor_b32 v{VKA + 2}, 0x80, v{VKA}")
    e(f"v_xor_b32 v{VKA + 3}, 0xc0, v{VKA}")
    e("v_lshrrev_b32 v13, 2, v2")
    e("v_lshlrev_b32 v13, 8, v13")
    e("v_lshl_add_u32 v13, v1, 4, v13")
    e(f"v_add_u32 v13, {L_QB}, v13")
    e(f"s_lshl_b32 s{T + 4}, s{SW}, 8")
    e(f"s_add_u32 s{T + 4}, s{T + 4}, {L_MAX}")
    e("v_lshlrev_b32 v14, 2, v0")
    e(f"v_add_u32 v15, s{T + 4}, v14")
    e(f"v_add_u32 v14, {L_MAX}, v14")
    e("s_waitcnt lgkmcnt(0)")
    stamp(2)
    e("s_barrier")
    stamp(3)
    QF = 16
    KF = 32
    SS = 64
    for s in range(4):
        e(f"ds_read_b128 {vr(QF + 4 * s, 4)}, v13 offset:{64 * s}")

    def kread(t):
        for s in range(4):
            e(f"ds_read_b128 {vr(KF + 16 * (t & 1) + 4 * s, 4)}, v{VKA + s} offset:{t * 4096}")

    kread(0)
    vload(1, 0, 4)
    for t in range(8):
        if t < 7:
            kread(t + 1)
            e("s_waitcnt lgkmcnt(4)")
        else:
            e("s_waitcnt lgkmcnt(0)")
        for s in range(4):
            c = "0" if s == 0 else vr(SS + 4 * t, 4)
            e(f"v_mfma_f32_16x16x32_bf16 {vr(SS + 4 * t, 4)}, {vr(KF + 16 * (t & 1) + 4 * s, 4)}, {vr(QF + 4 * s, 4)}, {c}")
        if t == 3:
            vload(1, 4, 8)
    stamp(4)
    TMP = 32
    e("s_nop 7")
    for p in range(16):
        a = SS + 2 * p
        t0 = TMP + (p & 1)
        e(f"v_cvt_pk_bf16_f32 v{t0}, v{a}, v{a + 1}")
        e(f"v_lshlrev_b32 v{a}, 16, v{t0}")
        e(f"v_and_b32 v{a + 1}, s{S_M16}, v{t0}")
        e(f"v_mul_f32 v{a}, s{S_SC}, v{a}")
        e(f"v_mul_f32 v{a + 1}, s{S_SC}, v{a + 1}")
        e(f"v_cvt_pk_bf16_f32 v{t0}, v{a}, v{a + 1}")
        e(f"v_lshlrev_b32 v{a}, 16, v{t0}")
        e(f"v_and_b32 v{a + 1}, s{S_M16}, v{t0}")
    MX = 34
    e(f"v_max3_f32 v{MX}, v{SS}, v{SS + 1}, v{SS + 2}")
    for k in range(3, 31, 2):
        e(f"v_max3_f32 v{MX}, v{MX}, v{SS + k}, v{SS + k + 1}")
    e(f"v_max_f32 v{MX}, v{MX}, v{SS + 31}")

    def xrow_reduce(op, r, t):
        e(f"v_mov_b32 v{t}, v{r}")
        e("s_nop 1")
        e(f"v_permlane32_swap_b32 v{t}, v{r}")
        e("s_nop 1")
        e(f"{op} v{r}, v{t}, v{r}")
        e(f"v_mov_b32 v{t}, v{r}")
        e("s_nop 1")
        e(f"v_permlane16_swap_b32 v{t}, v{r}")
        e("s_nop 1")
        e(f"{op} v{r}, v{t}, v{r}")

    xrow_reduce("v_max_f32", MX, 35)
    e(f"ds_write_b32 v15, v{MX}")
    e("s_waitcnt lgkmcnt(0)")
    stamp(5)
    e("s_barrier")
    e(f"ds_read2st64_b32 v[36:37], v14 offset0:0 offset1:1")
    e(f"ds_read2st64_b32 v[38:39], v14 offset0:2 offset1:3")
    e("s_waitcnt lgkmcnt(0)")
    e(f"v_max3_f32 v{MX}, v36, v37, v38")
    e(f"v_max_f32 v{MX}, v{MX}, v39")
    MC = 35
    e(f"v_mul_f32 v{MC}, s{S_L2E}, v{MX}")
    PP = 40
    for p in range(16):
        a = SS + 2 * p
        e(f"v_fma_f32 v{a}, v{a}, s{S_L2E}, -v{MC}")
        e(f"v_fma_f32 v{a + 1}, v{a + 1}, s{S_L2E}, -v{MC}")
        e(f"v_exp_f32 v{a}, v{a}")
        e(f"v_exp_f32 v{a + 1}, v{a + 1}")
        if p > 0:
            e(f"v_cvt_pk_bf16_f32 v{PP + p - 1}, v{a - 2}, v{a - 1}")
        if p == 7:
            vload(2, 0, 4)
    ACC = 64
    ACL = 96
    ONE = 100
    PT = 16
    for k in range(4):
        e(f"v_mov_b32 v{ONE + k}, 0x3f803f80")
    e(f"v_cvt_pk_bf16_f32 v{PP + 15}, v{SS + 30}, v{SS + 31}")
    e(f"s_lshl_b32 s{T + 8}, s{SW}, 8")
    e(f"s_add_u32 s{T + 8}, s{T + 8}, {L_LSUM}")
    e("v_lshlrev_b32 v3, 2, v0")
    e(f"v_add_u32 v5, s{T + 8}, v3")
    for u in range(4):
        c = "0" if u == 0 else vr(ACL, 4)
        e(f"v_mfma_f32_16x16x32_bf16 {vr(ACL, 4)}, {vr(PP + 4 * u, 4)}, {vr(ONE, 4)}, {c}")
    e("s_nop 7")
    e(f"ds_write_b32 v5, v{ACL}")
    e("s_waitcnt lgkmcnt(0)")
    stamp(6)
    e("s_barrier")
    vload(2, 4, 8)

    def pv(u):
        first = u == 0
        A = vr(PP + 4 * u, 4)

        def perms(w):
            base = PT + 8 * (w & 1)
            for d in range(4):
                a = VB + u * 32 + (2 * d) * 4 + w
                b = VB + u * 32 + (2 * d + 1) * 4 + w
                e(f"v_perm_b32 v{base + d}, v{b}, v{a}, s{S_PLO}")
            for d in range(4):
                a = VB + u * 32 + (2 * d) * 4 + w
                b = VB + u * 32 + (2 * d + 1) * 4 + w
                e(f"v_perm_b32 v{base + 4 + d}, v{b}, v{a}, s{S_PHI}")

        def mf(w):
            base = PT + 8 * (w & 1)
            for hi in range(2):
                j = 2 * w + hi
                c = "0" if first else vr(ACC + 4 * j, 4)
                e(f"v_mfma_f32_16x16x32_bf16 {vr(ACC + 4 * j, 4)}, {A}, {vr(base + 4 * hi, 4)}, {c}")

        perms(0)
        for w in range(1, 4):
            perms(w)
            mf(w - 1)
        e("s_nop 1")
        mf(3)

    e("s_waitcnt vmcnt(16)")
    pv(0)
    vload(3, 0, 8)
    e("s_waitcnt vmcnt(16)")
    pv(1)
    e(f"s_lshl_b32 s{T + 8}, s{S_XI}, 2")
    e(f"s_add_u32 s{T + 8}, s{T + 8}, s{S_B}")
    e(f"s_lshl_b32 s{T + 8}, s{T + 8}, 17")
    e(f"s_lshl_b32 s{T + 9}, s{S_SP}, 7")
    e(f"s_add_u32 s{T + 8}, s{T + 8}, s{T + 9}")
    e(f"s_lshl_b32 s{T + 9}, s{SW}, 15")
    e(f"s_add_u32 s{T + 8}, s{T + 8}, s{T + 9}")
    srd(R_C, S_WO, S_WO + 1, 4096 * 1024)
    e("v_lshrrev_b32 v3, 3, v0")
    e("v_lshlrev_b32 v3, 10, v3")
    e("v_and_b32 v4, 7, v0")
    e("v_lshl_add_u32 v3, v4, 4, v3")
    e(f"s_lshl_b32 s{T + 9}, s{SW}, 12")
    e(f"s_add_u32 s{T + 9}, s{T + 9}, {L_WO}")
    for ii in range(4):
        e(f"s_mov_b32 m0, s{T + 9}")
        e(f"s_add_u32 s{T + 9}, s{T + 9}, 1024")
        e(f"buffer_load_dwordx4 v3, s[{R_C}:{R_C + 3}], s{T + 8} offen {wpol} lds")
        e(f"s_add_u32 s{T + 8}, s{T + 8}, 8192")
    e(f"s_lshl_b32 s{T + 8}, s{S_Y}, 16")
    e(f"s_lshl_b32 s{T + 9}, s{S_XI}, 7")
    e(f"s_add_u32 s{T + 8}, s{T + 8}, s{T + 9}")
    e(f"s_lshl_b32 s{T + 9}, s{SW}, 14")
    e(f"s_add_u32 s{T + 8}, s{T + 8}, s{T + 9}")
    e(f"s_cmp_lt_u32 s{S_Y}, 28")
    e(f"s_cselect_b32 s{T + 10}, {1792 * 1024}, 0")
    srd(R_D, S_W2, S_W2 + 1, f"s{T + 10}")
    e(f"s_lshl_b32 s{T + 9}, s{SW}, 11")
    e(f"s_add_u32 s{T + 9}, s{T + 9}, {L_W2}")
    for ii in range(2):
        e(f"s_mov_b32 m0, s{T + 9}")
        e(f"s_add_u32 s{T + 9}, s{T + 9}, 1024")
        e(f"buffer_load_dwordx4 v3, s[{R_D}:{R_D + 3}], s{T + 8} offen {wpol} lds")
        e(f"s_add_u32 s{T + 8}, s{T + 8}, 8192")
    e("s_waitcnt vmcnt(14)")
    pv(2)
    e(f"s_lshl_b32 s{T + 8}, s{SW}, 11")
    e("v_lshlrev_b32 v3, 5, v0")
    e(f"v_add_u32 v4, s{T + 8}, v3")
    e("s_waitcnt vmcnt(6)")
    stamp(7)
    pv(3)
    e("s_nop 5")
    for j in range(8):
        e(f"v_mov_b32 v{16 + j}, v{ACC + 4 * j}")
    e("ds_write_b128 v4, v[16:19]")
    e("ds_write_b128 v4, v[20:23] offset:16")
    e("s_waitcnt vmcnt(0) lgkmcnt(0)")
    stamp(8)
    e("s_branch L_tail")

    e("L_H:")
    e("s_setprio 3")
    estamp(1)
    e(f"s_cmp_ge_u32 s{S_WAVE}, 2")
    e("s_cbranch_scc1 L_H23")
    P_KQ, P_STRIDE, P_TILE, P_OUT, P_BSTR, P_L = T + 5, T + 6, T + 7, T + 8, T + 9, T + 10
    e(f"s_lshr_b32 s{P_L}, s{S_Y}, 2")
    e(f"s_lshl_b32 s{P_L}, s{P_L}, 3")
    e(f"s_add_u32 s{P_L}, s{P_L}, s{S_XI}")
    e(f"s_cmp_lt_u32 s{S_Y}, 16")
    e(f"s_cselect_b32 s{T}, s{P_L}, 31")
    e(f"s_cmp_lt_u32 s{T}, 28")
    e(f"s_cselect_b32 s{T + 11}, 1, 0")
    e(f"s_cmp_eq_u32 s{S_WAVE}, 0")
    e("s_cbranch_scc1 L_Hq")
    e(f"s_cmp_eq_u32 s{T + 11}, 0")
    e("s_cbranch_scc1 L_H23")
    e(f"s_and_b32 s{P_KQ}, s{S_Y}, 3")
    e(f"s_mov_b32 s{P_STRIDE}, 3584")
    e(f"s_mov_b32 s{P_TILE}, {L_T1}")
    e(f"s_lshl_b32 s{T + 2}, s{P_L}, 7")
    e(f"s_mov_b32 s{T + 3}, {512 * 3584}")
    e(f"s_lshl_b32 s{P_OUT}, s{P_L}, 12")
    e(f"s_lshl_b32 s{T}, s{P_KQ}, 10")
    e(f"s_add_u32 s{P_OUT}, s{P_OUT}, s{T}")
    e(f"s_add_u32 s{P_OUT}, s{P_OUT}, {WS_H}")
    e(f"s_mov_b32 s{P_BSTR}, 256")
    e(f"s_mov_b32 s{T + 12}, s{S_W1}")
    e(f"s_mov_b32 s{T + 13}, s{S_W1 + 1}")
    e("s_branch L_proj")
    e("L_Hq:")
    e(f"s_mov_b32 s{P_KQ}, s{S_B}")
    e(f"s_mov_b32 s{P_STRIDE}, 8192")
    e(f"s_mov_b32 s{P_TILE}, {L_T0}")
    e(f"s_lshl_b32 s{T + 2}, s{S_XI}, 10")
    e(f"s_lshl_b32 s{T}, s{S_SP}, 7")
    e(f"s_add_u32 s{T + 2}, s{T + 2}, s{T}")
    e(f"s_mov_b32 s{T + 3}, {512 * 8192}")
    e(f"s_lshl_b32 s{P_OUT}, s{S_XI}, 15")
    e(f"s_lshl_b32 s{T}, s{P_KQ}, 13")
    e(f"s_add_u32 s{P_OUT}, s{P_OUT}, s{T}")
    e(f"s_lshl_b32 s{T}, s{S_SP}, 8")
    e(f"s_add_u32 s{P_OUT}, s{P_OUT}, s{T}")
    if WS_Q:
        e(f"s_add_u32 s{P_OUT}, s{P_OUT}, {WS_Q}")
    e(f"s_mov_b32 s{P_BSTR}, 2048")
    e("L_proj:")
    estamp(3)
    e(f"s_mul_i32 s{T}, s{P_KQ}, s{P_STRIDE}")
    e(f"s_lshl_b32 s{T}, s{T}, 7")
    e(f"s_add_u32 s{T + 2}, s{T + 2}, s{T}")
    e(f"s_sub_u32 s{T + 3}, s{T + 3}, s{T + 2}")
    e("v_and_b32 v3, 3, v2")
    e("v_lshrrev_b32 v10, 2, v2")
    e("v_lshlrev_b32 v4, 10, v3")
    e("v_lshl_add_u32 v4, v10, 8, v4")
    e("v_lshl_add_u32 v4, v1, 4, v4")
    e("v_lshrrev_b32 v5, 3, v0")
    e(f"v_mul_lo_u32 v5, v5, s{P_STRIDE}")
    e("v_and_b32 v6, 7, v0")
    e("v_lshl_add_u32 v5, v6, 4, v5")
    e(f"s_lshl_b32 s{T + 14}, s{P_STRIDE}, 3")
    e(f"s_mov_b32 s{T + 15}, 0")
    e(f"s_mov_b32 s{T + 16}, s{P_TILE}")
    e(f"s_mov_b32 s{T + 1}, 16")
    e("s_waitcnt lgkmcnt(0)")
    estamp(2)
    e(f"s_cmp_eq_u32 s{S_WAVE}, 0")
    e(f"s_cselect_b32 s{T + 12}, s{S_WQ}, s{S_W1}")
    e(f"s_cselect_b32 s{T + 13}, s{S_WQ + 1}, s{S_W1 + 1}")
    srd(R_B, S_X, S_X + 1, 4096)
    XR = 16
    for tau in range(4):
        e(f"buffer_load_dwordx4 {vr(XR + 4 * tau, 4)}, v4, s[{R_B}:{R_B + 3}], 0 offen offset:{64 * tau}")
    srd_off(R_A, T + 12, T + 2, f"s{T + 3}")
    estamp(4)
    e("L_wloop:")
    e(f"s_mov_b32 m0, s{T + 16}")
    e(f"s_add_u32 s{T + 16}, s{T + 16}, 1024")
    e(f"buffer_load_dwordx4 v5, s[{R_A}:{R_A + 3}], s{T + 15} offen {wpol} lds")
    e(f"s_add_u32 s{T + 15}, s{T + 15}, s{T + 14}")
    e(f"s_sub_u32 s{T + 1}, s{T + 1}, 1")
    e(f"s_cmp_lg_u32 s{T + 1}, 0")
    e("s_cbranch_scc1 L_wloop")
    karg2()
    stamp(1)
    estamp(5)
    e("s_barrier")
    e("s_waitcnt lgkmcnt(0)")
    srd(R_WS, S_WS, S_WS + 1, WS_SIZE)
    e(f"s_cmp_eq_u32 s{S_WAVE}, 0")
    e("s_cbranch_scc0 L_noreset")
    RS = 112
    for k in range(4):
        e(f"v_mov_b32 v{RS + k}, -1")
    e("v_lshrrev_b32 v8, 5, v0")
    e("v_lshlrev_b32 v8, 14, v8")
    e("v_and_b32 v9, 31, v0")
    e("v_lshl_add_u32 v8, v9, 4, v8")
    e(f"s_lshl_b32 s{T}, s{S_XI}, 16")
    e(f"s_lshl_b32 s{T + 1}, s{S_SP}, 11")
    e(f"s_add_u32 s{T}, s{T}, s{T + 1}")
    e(f"s_lshl_b32 s{T + 1}, s{S_B}, 9")
    e(f"s_add_u32 s{T}, s{T}, s{T + 1}")
    e(f"s_add_u32 s{T}, s{T}, {WS_OP}")
    e(f"buffer_store_dwordx4 v[{RS}:{RS + 3}], v8, s[{R_WS}:{R_WS + 3}], s{T} offen sc1")
    e(f"s_add_u32 s{T}, s{T}, 32768")
    e(f"buffer_store_dwordx4 v[{RS}:{RS + 3}], v8, s[{R_WS}:{R_WS + 3}], s{T} offen sc1")
    e("v_lshlrev_b32 v9, 4, v0")
    e(f"s_lshl_b32 s{T}, s{S_XI}, 2")
    e(f"s_add_u32 s{T}, s{T}, s{S_B}")
    e(f"s_lshl_b32 s{T}, s{T}, 10")
    e(f"s_lshl_b32 s{T + 1}, s{S_SP}, 15")
    e(f"s_add_u32 s{T}, s{T}, s{T + 1}")
    e(f"s_add_u32 s{T}, s{T}, {WS_SP}")
    e(f"buffer_store_dwordx4 v[{RS}:{RS + 3}], v9, s[{R_WS}:{R_WS + 3}], s{T} offen sc1")
    e(f"s_lshl_b32 s{T}, s{S_XI}, 15")
    e(f"s_lshl_b32 s{T + 1}, s{S_Y}, 10")
    e(f"s_add_u32 s{T}, s{T}, s{T + 1}")
    e(f"s_add_u32 s{T}, s{T}, {WS_GP}")
    e(f"buffer_store_dwordx4 v[{RS}:{RS + 3}], v9, s[{R_WS}:{R_WS + 3}], s{T} offen sc1")
    e(f"s_cmp_eq_u32 s{T + 11}, 1")
    e(f"s_cselect_b32 s{T}, s{P_L}, 31")
    e(f"s_lshl_b32 s{T}, s{T}, 12")
    e(f"s_and_b32 s{T + 1}, s{S_Y}, 3")
    e(f"s_lshl_b32 s{T + 1}, s{T + 1}, 10")
    e(f"s_add_u32 s{T}, s{T}, s{T + 1}")
    e(f"s_add_u32 s{T}, s{T}, {WS_H}")
    e(f"buffer_store_dwordx4 v[{RS}:{RS + 3}], v9, s[{R_WS}:{R_WS + 3}], s{T} offen sc1")
    e(f"s_lshl_b32 s{T}, s{S_XI}, 12")
    e(f"s_lshl_b32 s{T + 1}, s{S_Y}, 7")
    e(f"s_add_u32 s{T}, s{T}, s{T + 1}")
    e(f"s_add_u32 s{T}, s{T}, {WS_LSE}")
    e("v_mov_b32 v9, 0")
    e("s_mov_b64 exec, 1")
    e(f"buffer_store_dwordx4 v[{RS}:{RS + 3}], v9, s[{R_WS}:{R_WS + 3}], s{T} offen sc1")
    e("s_mov_b64 exec, -1")
    e("s_waitcnt vmcnt(22)")
    e("s_branch L_xw1")
    e("L_noreset:")
    e("s_waitcnt vmcnt(16)")
    e("L_xw1:")
    estamp(6)
    stamp(2)
    XF = 32
    for k in range(16):
        e(f"v_lshlrev_b32 v{XF + 2 * k}, 16, v{XR + k}")
        e(f"v_and_b32 v{XF + 2 * k + 1}, s{S_M16}, v{XR + k}")

    def lane_sum(r, t):
        e("s_nop 1")
        e(f"v_add_f32_dpp v{r}, v{r}, v{r} row_ror:4 row_mask:0xf bank_mask:0xf")
        e("s_nop 1")
        e(f"v_add_f32_dpp v{r}, v{r}, v{r} row_ror:8 row_mask:0xf bank_mask:0xf")
        xrow_reduce("v_add_f32", r, t)

    e(f"v_add_f32 v7, v{XF}, v{XF + 1}")
    e(f"v_add_f32 v8, v{XF + 2}, v{XF + 3}")
    for k in range(4, 32, 2):
        e(f"v_add_f32 v7, v7, v{XF + k}")
        e(f"v_add_f32 v8, v8, v{XF + k + 1}")
    e("v_add_f32 v7, v7, v8")
    lane_sum(7, 9)
    e("v_mul_f32 v7, 0x3b000000, v7")
    e(f"v_sub_f32 v11, v{XF}, v7")
    e(f"v_sub_f32 v12, v{XF + 1}, v7")
    e("v_mul_f32 v8, v11, v11")
    e("v_mul_f32 v13, v12, v12")
    for k in range(2, 32, 2):
        e(f"v_sub_f32 v11, v{XF + k}, v7")
        e(f"v_sub_f32 v12, v{XF + k + 1}, v7")
        e("v_fmac_f32 v8, v11, v11")
        e("v_fmac_f32 v13, v12, v12")
    e("v_add_f32 v8, v8, v13")
    lane_sum(8, 9)
    e("v_mul_f32 v8, 0x3b000000, v8")
    e("v_cvt_pk_bf16_f32 v9, v7, v8")
    e("v_lshlrev_b32 v7, 16, v9")
    e(f"v_and_b32 v8, s{S_M16}, v9")
    e("v_add_f32 v8, 0x3727c5ac, v8")
    e("v_cvt_pk_bf16_f32 v9, v8, v8")
    e(f"v_and_b32 v8, s{S_M16}, v9")
    e("v_sqrt_f32 v8, v8")
    e("s_nop 0")
    e("v_cvt_pk_bf16_f32 v9, v8, v8")
    e(f"v_and_b32 v8, s{S_M16}, v9")
    e("v_rcp_f32 v8, v8")
    BF = 16
    for k in range(16):
        a = XF + 2 * k
        e(f"v_sub_f32 v{a}, v{a}, v7")
        e(f"v_sub_f32 v{a + 1}, v{a + 1}, v7")
        e(f"v_cvt_pk_bf16_f32 v9, v{a}, v{a + 1}")
        e(f"v_lshlrev_b32 v{a}, 16, v9")
        e(f"v_and_b32 v{a + 1}, s{S_M16}, v9")
        e(f"v_mul_f32 v{a}, v{a}, v8")
        e(f"v_mul_f32 v{a + 1}, v{a + 1}, v8")
        e(f"v_cvt_pk_bf16_f32 v{BF + k}, v{a}, v{a + 1}")
    e("v_lshlrev_b32 v4, 10, v1")
    e("v_lshl_add_u32 v4, v10, 7, v4")
    e("v_lshl_add_u32 v4, v3, 3, v4")
    e(f"v_add_u32 v4, s{P_TILE}, v4")
    e(f"v_subrev_u32 v11, s{P_KQ}, v10")
    e("v_and_b32 v11, 3, v11")
    e(f"v_mul_lo_u32 v5, v3, s{P_BSTR}")
    e("v_lshl_add_u32 v5, v11, 6, v5")
    e("v_lshl_add_u32 v5, v1, 4, v5")
    e("v_cmp_ne_u32 s[64:65], 1, v11")
    e("v_cmp_ne_u32 s[66:67], 2, v11")
    e("v_cmp_ne_u32 s[68:69], 3, v11")
    estamp(7)
    stamp(3)
    e("s_waitcnt vmcnt(0)")
    estamp(8)
    stamp(4)
    AF = 64
    DD = 96

    def wread(ct):
        for t in range(4):
            r = AF + 16 * (ct & 1) + 4 * t
            e(f"ds_read_b64_tr_b16 {vr(r, 2)}, v4 offset:{t * 4096 + ct * 32}")
            e(f"ds_read_b64_tr_b16 {vr(r + 2, 2)}, v4 offset:{t * 4096 + 512 + ct * 32}")

    wread(0)
    for ct in range(4):
        if ct < 3:
            wread(ct + 1)
            e("s_waitcnt lgkmcnt(8)")
        else:
            e("s_waitcnt lgkmcnt(0)")
        for t in range(4):
            c = "0" if t == 0 else vr(DD + 4 * ct, 4)
            e(f"v_mfma_f32_16x16x32_bf16 {vr(DD + 4 * ct, 4)}, {vr(AF + 16 * (ct & 1) + 4 * t, 4)}, {vr(BF + 4 * t, 4)}, {c}")
    e("s_nop 7")
    for ct in range(1, 4):
        e(f"s_mov_b64 vcc, s[{62 + 2 * ct}:{63 + 2 * ct}]")
        for i in range(4):
            e(f"v_cndmask_b32_dpp v{DD + i}, v{DD + 4 * ct + i}, v{DD + i}, vcc row_ror:{4 * ct} row_mask:0xf bank_mask:0xf")
    for i in range(4):
        e(f"v_min_u32 v{DD + i}, {SENT_FIX}, v{DD + i}")
    stamp(5)
    e(f"s_cmp_eq_u32 s{S_WAVE}, 0")
    e("s_cbranch_scc0 L_Hb1")
    srd(R_C, S_DBG, S_DBG + 1, 256)
    e("v_and_b32 v6, 1, v0")
    e("v_lshlrev_b32 v6, 2, v6")
    e(f"s_lshl_b32 s{T}, s{S_XI}, 3")
    lab = poll_begin("pa")
    e(f"buffer_load_dword v7, v6, s[{R_C}:{R_C + 3}], s{T} offen sc1")
    e("s_waitcnt vmcnt(0)")
    e("v_cmp_eq_u32 vcc, 0, v7")
    poll_end(lab)
    stamp(6)
    e(f"buffer_store_dwordx4 {vr(DD, 4)}, v5, s[{R_WS}:{R_WS + 3}], s{P_OUT} offen sc1")
    e(f"s_lshl_b32 s{T}, s{S_XI}, 15")
    e(f"s_lshl_b32 s{T + 1}, s{S_B}, 11")
    e(f"s_add_u32 s{T}, s{T}, s{T + 1}")
    if WS_Q:
        e(f"s_add_u32 s{T}, s{T}, {WS_Q}")
    e(f"s_add_u32 s{T + 1}, s{T}, 8192")
    e(f"s_add_u32 s{T + 2}, s{T}, 16384")
    e(f"s_add_u32 s{T + 3}, s{T}, 24576")
    e("v_lshlrev_b32 v5, 4, v0")
    QG = 16
    lab = poll_begin("pq")
    for kq in range(4):
        for hh in range(2):
            r = QG + 8 * kq + 4 * hh
            e(f"buffer_load_dwordx4 {vr(r, 4)}, v5, s[{R_WS}:{R_WS + 3}], s{T + kq} offen offset:{1024 * hh} sc1")
    e("s_waitcnt vmcnt(0)")
    e(f"v_max3_u32 v7, v{QG}, v{QG + 1}, v{QG + 2}")
    for k in range(3, 31, 2):
        e(f"v_max3_u32 v7, v7, v{QG + k}, v{QG + k + 1}")
    e(f"v_max_u32 v7, v7, v{QG + 31}")
    e("v_cmp_eq_u32 vcc, -1, v7")
    poll_end(lab)
    for k in range(8):
        e(f"v_add_f32 v{QG + k}, v{QG + k}, v{QG + 8 + k}")
        e(f"v_add_f32 v{QG + 16 + k}, v{QG + 16 + k}, v{QG + 24 + k}")
    for k in range(8):
        e(f"v_add_f32 v{QG + k}, v{QG + k}, v{QG + 16 + k}")
    for k in range(4):
        e(f"v_cvt_pk_bf16_f32 v{48 + k}, v{QG + 2 * k}, v{QG + 2 * k + 1}")
    e("v_lshlrev_b32 v5, 3, v0")
    e(f"v_add_u32 v5, {L_QB}, v5")
    e("ds_write_b64 v5, v[48:49]")
    e("ds_write_b64 v5, v[50:51] offset:512")
    e(f"s_cmp_eq_u32 s{S_Y}, 0")
    e("s_cbranch_scc0 L_nog")
    e(f"s_lshl_b32 s{T}, s{S_XI}, 2")
    e(f"s_add_u32 s{T}, s{T}, 128")
    e("v_mov_b32 v6, 0\nv_mov_b32 v7, 1")
    e("s_mov_b64 exec, 1")
    e(f"buffer_store_dword v7, v6, s[{R_C}:{R_C + 3}], s{T} offen sc1")
    e("s_mov_b64 exec, -1")
    e("L_nog:")
    e("s_waitcnt lgkmcnt(0)")
    stamp(7)
    e("s_branch L_Hb1")

    e("L_H23:")
    e("s_waitcnt lgkmcnt(0)")
    karg2()
    e("s_barrier")
    e(f"s_mov_b32 s{T + 11}, 0")
    e("s_waitcnt lgkmcnt(0)")
    srd(R_WS, S_WS, S_WS + 1, WS_SIZE)
    e(f"s_cmp_eq_u32 s{S_Y}, 0")
    e("s_cbranch_scc0 L_Hb1")
    e(f"s_cmp_lt_u32 s{S_WAVE}, 2")
    e("s_cbranch_scc1 L_Hb1")
    e("v_mov_b32 v4, -1\nv_mov_b32 v5, -1\nv_mov_b32 v6, -1\nv_mov_b32 v7, -1")
    e("v_lshlrev_b32 v3, 4, v0")
    e(f"s_lshl_b32 s{T}, s{S_XI}, 15")
    e(f"s_sub_u32 s{T + 1}, s{S_WAVE}, 2")
    e(f"s_lshl_b32 s{T + 2}, s{T + 1}, 14")
    e(f"s_add_u32 s{T}, s{T}, s{T + 2}")
    if WS_Q:
        e(f"s_add_u32 s{T}, s{T}, {WS_Q}")
    for kk in range(4):
        for k in range(4):
            e(f"buffer_store_dwordx4 v[4:7], v3, s[{R_WS}:{R_WS + 3}], s{T} offen offset:{k * 1024} sc1")
        if kk < 3:
            e(f"s_add_u32 s{T}, s{T}, 4096")
    srd(R_C, S_DBG, S_DBG + 1, 256)
    e(f"s_lshl_b32 s{T}, s{S_XI}, 1")
    e(f"s_add_u32 s{T}, s{T}, s{T + 1}")
    e(f"s_lshl_b32 s{T}, s{T}, 2")
    e("v_mov_b32 v3, 0\nv_mov_b32 v4, 1")
    e("s_waitcnt vmcnt(0)")
    e("s_mov_b64 exec, 1")
    e(f"buffer_store_dword v4, v3, s[{R_C}:{R_C + 3}], s{T} offen sc1")
    e("s_mov_b64 exec, -1")

    e("L_Hb1:")
    e("s_barrier")
    e(f"s_cmp_eq_u32 s{S_WAVE}, 1")
    e("s_cbranch_scc0 L_nohp")
    e(f"s_cmp_eq_u32 s{T + 11}, 1")
    e("s_cbranch_scc0 L_nohp")
    e(f"buffer_store_dwordx4 {vr(96, 4)}, v5, s[{R_WS}:{R_WS + 3}], s{T + 8} offen sc1")
    e("L_nohp:")
    e("s_barrier")
    e("s_barrier")
    stamp(8)
    e(f"s_cmp_eq_u32 s{S_WAVE}, 2")
    e("s_cbranch_scc0 L_nolse")
    e("v_lshlrev_b32 v3, 2, v0")
    e(f"ds_read2st64_b32 v[6:7], v3 offset0:{L_LSUM // 256} offset1:{L_LSUM // 256 + 1}")
    e(f"ds_read2st64_b32 v[8:9], v3 offset0:{L_LSUM // 256 + 2} offset1:{L_LSUM // 256 + 3}")
    e("v_lshlrev_b32 v4, 4, v1")
    e(f"v_add_u32 v4, {L_MAX}, v4")
    e("ds_read2st64_b32 v[10:11], v4 offset0:0 offset1:1")
    e("ds_read2st64_b32 v[12:13], v4 offset0:2 offset1:3")
    e(f"s_mov_b32 s{S_L2E}, 0x3fb8aa3b")
    e(f"s_lshl_b32 s{T}, s{S_XI}, 12")
    e(f"s_lshl_b32 s{T + 1}, s{S_B}, 10")
    e(f"s_add_u32 s{T}, s{T}, s{T + 1}")
    e(f"s_add_u32 s{T}, s{T}, {WS_LSE}")
    e(f"s_lshl_b32 s{T + 1}, s{S_SP}, 7")
    e(f"s_add_u32 s{T + 1}, s{T + 1}, s{T}")
    e("s_waitcnt lgkmcnt(0)")
    e("v_add_f32 v6, v6, v7")
    e("v_add_f32 v8, v8, v9")
    e("v_max3_f32 v10, v10, v11, v12")
    e("v_add_f32 v6, v6, v8")
    e("v_max_f32 v10, v10, v13")
    e("v_log_f32 v6, v6")
    e(f"v_mul_f32 v10, s{S_L2E}, v10")
    e("v_lshlrev_b32 v5, 2, v1")
    e("v_add_f32 v6, v6, v10")
    e(f"v_min_u32 v6, {SENT_FIX}, v6")
    e("v_cmp_eq_u32 vcc, 0, v2")
    e("s_and_saveexec_b64 s[64:65], vcc")
    e(f"buffer_store_dword v6, v5, s[{R_WS}:{R_WS + 3}], s{T + 1} offen sc1")
    e("s_mov_b64 exec, s[64:65]")
    e("v_and_b32 v7, 7, v2")
    e("v_lshl_add_u32 v7, v7, 7, v5")
    lab = poll_begin("pl")
    e(f"buffer_load_dword v8, v7, s[{R_WS}:{R_WS + 3}], s{T} offen sc1")
    e("s_waitcnt vmcnt(0)")
    e("v_cmp_eq_u32 vcc, -1, v8")
    poll_end(lab)
    e("v_max_f32_dpp v9, v8, v8 row_ror:1 row_mask:0xf bank_mask:0xf")
    e("s_nop 1")
    e("v_max_f32_dpp v9, v9, v9 row_ror:2 row_mask:0xf bank_mask:0xf")
    e("s_nop 1")
    e("v_max_f32_dpp v9, v9, v9 row_ror:4 row_mask:0xf bank_mask:0xf")
    e("v_sub_f32 v8, v8, v9")
    e("v_sub_f32 v10, v10, v9")
    e("v_exp_f32 v8, v8")
    e("v_exp_f32 v10, v10")
    e("s_nop 1")
    e("v_add_f32_dpp v9, v8, v8 row_ror:1 row_mask:0xf bank_mask:0xf")
    e("s_nop 1")
    e("v_add_f32_dpp v9, v9, v9 row_ror:2 row_mask:0xf bank_mask:0xf")
    e("s_nop 1")
    e("v_add_f32_dpp v9, v9, v9 row_ror:4 row_mask:0xf bank_mask:0xf")
    e("v_rcp_f32 v9, v9")
    e(f"v_add_u32 v5, {L_SCALE}, v5")
    e("s_nop 0")
    e("v_mul_f32 v10, v10, v9")
    e("v_cmp_eq_u32 vcc, 0, v2")
    e("s_and_saveexec_b64 s[64:65], vcc")
    e("ds_write_b32 v5, v10")
    e("s_mov_b64 exec, s[64:65]")
    e("L_nolse:")
    e(f"s_cmp_eq_u32 s{S_WAVE}, 0")
    e("s_cbranch_scc1 L_gchk")
    e(f"s_cmp_eq_u32 s{S_WAVE}, 3")
    e("s_cbranch_scc0 L_nogchk")
    e("L_gchk:")
    srd(R_C, S_DBG, S_DBG + 1, 256)
    e("v_and_b32 v6, 7, v0")
    e("v_lshlrev_b32 v6, 2, v6")
    lab = poll_begin("pg")
    e(f"buffer_load_dword v7, v6, s[{R_C}:{R_C + 3}], 0 offen offset:128 sc1")
    e("s_waitcnt vmcnt(0)")
    e("v_cmp_eq_u32 vcc, 0, v7")
    poll_end(lab)
    e(f"s_cmp_eq_u32 s{S_WAVE}, 3")
    e("s_cbranch_scc0 L_nogchk")
    e(f"s_cmp_ge_u32 s{S_Y}, 28")
    e("s_cbranch_scc1 L_nogchk")
    e("v_lshrrev_b32 v3, 2, v2")
    e("v_lshlrev_b32 v3, 10, v3")
    e("v_and_b32 v4, 3, v2")
    e("v_lshl_add_u32 v3, v4, 8, v3")
    e("v_lshl_add_u32 v3, v1, 5, v3")
    e(f"s_lshl_b32 s{T}, s{S_Y}, 12")
    e(f"s_add_u32 s{T}, s{T}, {WS_H}")
    HG = 32
    lab = poll_begin("ph")
    for k, off in enumerate((0, 16, 128, 144)):
        e(f"buffer_load_dwordx4 {vr(HG + 4 * k, 4)}, v3, s[{R_WS}:{R_WS + 3}], s{T} offen offset:{off} sc1")
    e("s_waitcnt vmcnt(0)")
    e(f"v_max3_u32 v7, v{HG}, v{HG + 1}, v{HG + 2}")
    for k in range(3, 15, 2):
        e(f"v_max3_u32 v7, v7, v{HG + k}, v{HG + k + 1}")
    e(f"v_max_u32 v7, v7, v{HG + 15}")
    e("v_cmp_eq_u32 vcc, -1, v7")
    poll_end(lab)
    for rot in (4, 8):
        for k in range(16):
            e(f"v_add_f32_dpp v{HG + k}, v{HG + k}, v{HG + k} row_ror:{rot} row_mask:0xf bank_mask:0xf")
    for k in range(16):
        e(f"v_max_f32 v{HG + k}, 0, v{HG + k}")
    for k in range(8):
        e(f"v_cvt_pk_bf16_f32 v{48 + k}, v{HG + 2 * k}, v{HG + 2 * k + 1}")
    e("v_lshlrev_b32 v3, 7, v4")
    e("v_lshl_add_u32 v3, v1, 4, v3")
    e(f"v_add_u32 v3, {L_HB}, v3")
    e("v_cmp_gt_u32 vcc, 4, v2")
    e("s_and_saveexec_b64 s[64:65], vcc")
    e("ds_write_b128 v3, v[48:51]")
    e("ds_write_b128 v3, v[52:55] offset:64")
    e("s_mov_b64 exec, s[64:65]")
    e("L_nogchk:")
    e("v_lshrrev_b32 v24, 5, v0")
    e(f"s_lshl_b32 s{T}, s{S_WAVE}, 1")
    e(f"v_add_u32 v24, s{T}, v24")
    e("v_and_b32 v25, 31, v0")
    e("v_lshlrev_b32 v25, 4, v25")
    e("v_lshl_add_u32 v26, v24, 9, v25")
    e("v_lshl_add_u32 v27, v24, 14, v25")
    e("v_lshlrev_b32 v28, 2, v24")
    e(f"v_add_u32 v28, {L_SCALE}, v28")
    e(f"s_lshl_b32 s{T + 14}, s{S_XI}, 16")
    e(f"s_lshl_b32 s{T + 1}, s{S_SP}, 11")
    e(f"s_add_u32 s{T + 14}, s{T + 14}, s{T + 1}")
    e(f"s_lshl_b32 s{T + 1}, s{S_B}, 9")
    e(f"s_add_u32 s{T + 14}, s{T + 14}, s{T + 1}")
    e(f"s_add_u32 s{T + 14}, s{T + 14}, {WS_OP}")
    e("s_waitcnt lgkmcnt(0)")
    stamp(9)

    e("L_tail:")
    e("s_barrier")
    if diag:
        e(f"s_cmp_lt_u32 s{S_WAVE}, 4")
        e("s_cbranch_scc1 L_st9")
        stamp(9)
        e("L_st9:")
    srd(R_WS, S_WS, S_WS + 1, WS_SIZE)
    e(f"s_cmp_lt_u32 s{S_WAVE}, 2")
    e("s_cbranch_scc0 L_nopub")
    for sw_ in range(4):
        e(f"ds_read_b128 {vr(64 + 4 * sw_, 4)}, v26 offset:{sw_ * 2048}")
    e("ds_read_b32 v29, v28")
    e("s_waitcnt lgkmcnt(0)")
    for i in range(4):
        e(f"v_add_f32 v{64 + i}, v{64 + i}, v{68 + i}")
        e(f"v_add_f32 v{72 + i}, v{72 + i}, v{76 + i}")
    for i in range(4):
        e(f"v_add_f32 v{64 + i}, v{64 + i}, v{72 + i}")
    for i in range(4):
        e(f"v_mul_f32 v{64 + i}, v{64 + i}, v29")
    for i in range(4):
        e(f"v_min_u32 v{64 + i}, {SENT_FIX}, v{64 + i}")
    e(f"buffer_store_dwordx4 v[64:67], v27, s[{R_WS}:{R_WS + 3}], s{T + 14} offen sc1")
    e("L_nopub:")
    WF = 32
    e(f"s_cmp_lt_u32 s{S_WAVE}, 4")
    e("s_cbranch_scc0 L_gather")
    e("v_lshrrev_b32 v10, 2, v2")
    e("v_and_b32 v11, 3, v2")
    e(f"s_cmp_ge_u32 s{S_Y}, 28")
    e("s_cbranch_scc1 L_nog2")
    e("v_lshlrev_b32 v4, 10, v1")
    e("v_lshl_add_u32 v4, v10, 7, v4")
    e("v_lshl_add_u32 v4, v11, 3, v4")
    e(f"s_lshl_b32 s{T}, s{S_WAVE}, 5")
    e(f"s_add_u32 s{T}, s{T}, {L_W2}")
    e(f"v_add_u32 v4, s{T}, v4")
    for t in range(2):
        e(f"ds_read_b64_tr_b16 {vr(24 + 4 * t, 2)}, v4 offset:{t * 4096}")
        e(f"ds_read_b64_tr_b16 {vr(24 + 4 * t + 2, 2)}, v4 offset:{t * 4096 + 512}")
    e("v_lshlrev_b32 v6, 7, v11")
    e("v_lshl_add_u32 v6, v1, 4, v6")
    e(f"v_add_u32 v6, {L_HB}, v6")
    e("ds_read_b128 v[16:19], v6")
    e("ds_read_b128 v[20:23], v6 offset:64")
    e(f"s_lshl_b32 s{T}, s{S_XI}, 15")
    e(f"s_lshl_b32 s{T + 1}, s{S_Y}, 10")
    e(f"s_add_u32 s{T}, s{T}, s{T + 1}")
    e(f"s_lshl_b32 s{T + 1}, s{S_WAVE}, 8")
    e(f"s_add_u32 s{T}, s{T}, s{T + 1}")
    e(f"s_add_u32 s{T}, s{T}, {WS_GP}")
    e("v_lshlrev_b32 v5, 6, v2")
    e("v_lshl_add_u32 v5, v1, 4, v5")
    e("s_waitcnt lgkmcnt(0)")
    e(f"v_mfma_f32_16x16x32_bf16 v[12:15], v[24:27], v[{16}:{19}], 0")
    e(f"v_mfma_f32_16x16x32_bf16 v[12:15], v[28:31], v[{20}:{23}], v[12:15]")
    e("s_nop 7")
    for i in range(4):
        e(f"v_min_u32 v{12 + i}, {SENT_FIX}, v{12 + i}")
    e("v_cmp_gt_u32 vcc, 4, v2")
    e("s_and_saveexec_b64 s[64:65], vcc")
    e(f"buffer_store_dwordx4 v[12:15], v5, s[{R_WS}:{R_WS + 3}], s{T} offen sc1")
    e("s_mov_b64 exec, s[64:65]")
    e("L_nog2:")
    e("v_lshlrev_b32 v4, 10, v1")
    e("v_lshl_add_u32 v4, v10, 7, v4")
    e("v_lshl_add_u32 v4, v11, 3, v4")
    e(f"s_lshl_b32 s{T}, s{S_WAVE}, 5")
    e(f"s_add_u32 s{T}, s{T}, {L_WO}")
    e(f"v_add_u32 v4, s{T}, v4")
    for t in range(4):
        e(f"ds_read_b64_tr_b16 {vr(WF + 4 * t, 2)}, v4 offset:{t * 4096}")
        e(f"ds_read_b64_tr_b16 {vr(WF + 4 * t + 2, 2)}, v4 offset:{t * 4096 + 512}")
    e("L_gather:")
    e(f"s_lshl_b32 s{T}, s{S_XI}, 16")
    e(f"s_lshl_b32 s{T + 1}, s{S_B}, 14")
    e(f"s_add_u32 s{T}, s{T}, s{T + 1}")
    e(f"s_lshl_b32 s{T + 1}, s{S_WAVE}, 8")
    e(f"s_add_u32 s{T}, s{T}, s{T + 1}")
    e(f"s_add_u32 s{T}, s{T}, {WS_OP}")
    e(f"s_add_u32 s{T + 1}, s{T}, 8192")
    e("v_lshlrev_b32 v5, 11, v1")
    e("v_lshl_add_u32 v5, v2, 4, v5")
    OG = 48
    e("v_lshlrev_b32 v6, 11, v0")
    e("v_add_u32 v6, 252, v6")
    e(f"s_lshl_b32 s{T + 2}, s{S_WAVE}, 7")
    e(f"s_add_u32 s{T + 2}, s{T + 2}, {L_OBF}")
    e("v_lshlrev_b32 v3, 3, v2")
    e("v_lshl_add_u32 v3, v1, 1, v3")
    e(f"v_add_u32 v3, s{T + 2}, v3")
    e("s_mov_b64 exec, 0xff")
    lab = poll_begin("ph2")
    e(f"buffer_load_dword v8, v6, s[{R_WS}:{R_WS + 3}], s{T} offen sc1")
    e("s_waitcnt vmcnt(0)")
    e("v_cmp_eq_u32 vcc, -1, v8")
    poll_end(lab)
    e("s_mov_b64 exec, -1")
    lab = poll_begin("po")
    e(f"buffer_load_dwordx4 v[{OG}:{OG + 3}], v5, s[{R_WS}:{R_WS + 3}], s{T} offen sc1")
    e(f"buffer_load_dwordx4 v[{OG + 4}:{OG + 7}], v5, s[{R_WS}:{R_WS + 3}], s{T + 1} offen sc1")
    e("s_waitcnt vmcnt(0)")
    e(f"v_max3_u32 v8, v{OG}, v{OG + 1}, v{OG + 2}")
    e(f"v_max3_u32 v8, v8, v{OG + 3}, v{OG + 4}")
    e(f"v_max3_u32 v8, v8, v{OG + 5}, v{OG + 6}")
    e(f"v_max_u32 v8, v8, v{OG + 7}")
    e("v_cmp_eq_u32 vcc, -1, v8")
    poll_end(lab)
    stamp(10)
    for i in range(4):
        e(f"v_add_f32 v{OG + i}, v{OG + i}, v{OG + 4 + i}")
    e("s_nop 0")
    e(f"v_permlane32_swap_b32 v{OG}, v{OG + 2}")
    e(f"v_permlane32_swap_b32 v{OG + 1}, v{OG + 3}")
    e("s_nop 0")
    e(f"v_add_f32 v{OG}, v{OG}, v{OG + 2}")
    e(f"v_add_f32 v{OG + 1}, v{OG + 1}, v{OG + 3}")
    e("s_nop 1")
    e(f"v_permlane16_swap_b32 v{OG}, v{OG + 1}")
    e("s_nop 1")
    e(f"v_add_f32 v{OG}, v{OG}, v{OG + 1}")
    e(f"v_cvt_pk_bf16_f32 v{OG}, v{OG}, v{OG}")
    e(f"ds_write_b16 v3, v{OG}")
    e("s_waitcnt lgkmcnt(0)")
    e("s_barrier")
    e(f"s_cmp_lt_u32 s{S_WAVE}, 4")
    e("s_cbranch_scc0 L_final")
    e("v_and_b32 v3, 3, v2")
    e("v_lshlrev_b32 v3, 8, v3")
    e("v_lshl_add_u32 v3, v1, 4, v3")
    e(f"v_add_u32 v3, {L_OBF}, v3")
    BB = 96
    for t in range(4):
        e(f"ds_read_b128 {vr(BB + 4 * t, 4)}, v3 offset:{64 * t}")
    e(f"s_lshl_b32 s{T}, s{S_XI}, 2")
    e(f"s_add_u32 s{T}, s{T}, s{S_B}")
    e(f"s_lshl_b32 s{T}, s{T}, 10")
    e(f"s_lshl_b32 s{T + 1}, s{S_SP}, 15")
    e(f"s_add_u32 s{T}, s{T}, s{T + 1}")
    e(f"s_lshl_b32 s{T + 1}, s{S_WAVE}, 8")
    e(f"s_add_u32 s{T}, s{T}, s{T + 1}")
    e(f"s_add_u32 s{T}, s{T}, {WS_SP}")
    e("v_lshlrev_b32 v9, 6, v2")
    e("v_lshl_add_u32 v9, v1, 4, v9")
    e("s_waitcnt lgkmcnt(0)")
    for t in range(4):
        c = "0" if t == 0 else "v[12:15]"
        e(f"v_mfma_f32_16x16x32_bf16 v[12:15], {vr(WF + 4 * t, 4)}, {vr(BB + 4 * t, 4)}, {c}")
    e("v_cmp_gt_u32 vcc, 4, v2")
    e("s_nop 6")
    for i in range(4):
        e(f"v_min_u32 v{12 + i}, {SENT_FIX}, v{12 + i}")
    e("s_and_saveexec_b64 s[64:65], vcc")
    e(f"buffer_store_dwordx4 v[12:15], v9, s[{R_WS}:{R_WS + 3}], s{T} offen sc1")
    stamp(11)
    stamp_flush()
    e("s_endpgm")

    e("L_final:")
    e(f"s_cmp_eq_u32 s{S_WAVE}, 4")
    e("s_cbranch_scc1 L_fin0")
    stamp_flush()
    e("s_endpgm")
    e("L_fin0:")
    e("v_lshrrev_b32 v3, 1, v0")
    e("v_lshlrev_b32 v3, 10, v3")
    e("v_and_b32 v4, 1, v0")
    e("v_lshl_add_u32 v3, v4, 4, v3")
    e(f"s_lshl_b32 s{T}, s{S_XI}, 15")
    e(f"s_lshl_b32 s{T + 1}, s{S_B}, 6")
    e(f"s_add_u32 s{T}, s{T}, s{T + 1}")
    e(f"s_lshr_b32 s{T + 1}, s{S_SP}, 1")
    e(f"s_lshl_b32 s{T + 1}, s{T + 1}, 8")
    e(f"s_add_u32 s{T}, s{T}, s{T + 1}")
    e(f"s_and_b32 s{T + 1}, s{S_SP}, 1")
    e(f"s_lshl_b32 s{T + 1}, s{T + 1}, 5")
    e(f"s_add_u32 s{T}, s{T}, s{T + 1}")
    e(f"s_add_u32 s{T + 2}, s{T}, {WS_GP}")
    e(f"s_add_u32 s{T + 3}, s{T}, {WS_SP}")
    e(f"s_lshl_b32 s{T + 4}, s{S_B}, 10")
    e(f"s_lshl_b32 s{T + 5}, s{S_XI}, 7")
    e(f"s_add_u32 s{T + 4}, s{T + 4}, s{T + 5}")
    e(f"s_lshl_b32 s{T + 5}, s{S_SP}, 4")
    e(f"s_add_u32 s{T + 4}, s{T + 4}, s{T + 5}")
    e("v_lshlrev_b32 v5, 3, v4")
    srd(R_A, S_X, S_X + 1, 4096)
    srd(R_B, S_OUT, S_OUT + 1, 4096)
    e(f"buffer_load_dwordx2 v[20:21], v5, s[{R_A}:{R_A + 3}], s{T + 4} offen")

    def red32(base):
        for rot in (2, 4, 8):
            for i in range(4):
                e(f"v_add_f32_dpp v{base + i}, v{base + i}, v{base + i} row_ror:{rot} row_mask:0xf bank_mask:0xf")
        for sw_ in ("v_permlane16_swap_b32", "v_permlane32_swap_b32"):
            for i in range(4):
                e(f"v_mov_b32 v{base + 4 + i}, v{base + i}")
            e("s_nop 1")
            for i in range(4):
                e(f"{sw_} v{base + 4 + i}, v{base + i}")
            e("s_nop 1")
            for i in range(4):
                e(f"v_add_f32 v{base + i}, v{base + i}, v{base + 4 + i}")

    e("v_cmp_gt_u32 s[66:67], 56, v0")
    lab = poll_begin("pgp")
    e(f"buffer_load_dwordx4 v[24:27], v3, s[{R_WS}:{R_WS + 3}], s{T + 2} offen sc1")
    e("s_waitcnt vmcnt(0)")
    e("v_max_u32 v8, v24, v25")
    e("v_max3_u32 v8, v8, v26, v27")
    e("v_cmp_eq_u32 vcc, -1, v8")
    e("s_and_b64 vcc, vcc, s[66:67]")
    poll_end(lab)
    for i in range(4):
        e(f"v_cndmask_b32 v{24 + i}, 0, v{24 + i}, s[66:67]")
    e("s_nop 1")
    red32(24)
    e("v_cvt_pk_bf16_f32 v8, v24, v25")
    e("v_cvt_pk_bf16_f32 v9, v26, v27")
    e("v_lshlrev_b32 v24, 16, v8")
    e(f"v_and_b32 v25, s{S_M16}, v8")
    e("v_lshlrev_b32 v26, 16, v9")
    e(f"v_and_b32 v27, s{S_M16}, v9")
    e(f"s_mov_b32 s{T + 5}, 0xbfb8aa3b")
    for i in range(4):
        e(f"v_mul_f32 v{28 + i}, s{T + 5}, v{24 + i}")
    for i in range(4):
        e(f"v_exp_f32 v{28 + i}, v{28 + i}")
    e("s_nop 0")
    for i in range(4):
        e(f"v_add_f32 v{28 + i}, 1.0, v{28 + i}")
    for i in range(4):
        e(f"v_rcp_f32 v{28 + i}, v{28 + i}")
    e("s_nop 0")
    for i in range(4):
        e(f"v_mul_f32 v{24 + i}, v{24 + i}, v{28 + i}")
    e("v_cvt_pk_bf16_f32 v8, v24, v25")
    e("v_cvt_pk_bf16_f32 v9, v26, v27")
    e("v_lshlrev_b32 v24, 16, v8")
    e(f"v_and_b32 v25, s{S_M16}, v8")
    e("v_lshlrev_b32 v26, 16, v9")
    e(f"v_and_b32 v27, s{S_M16}, v9")
    e("v_lshlrev_b32 v28, 16, v20")
    e(f"v_and_b32 v29, s{S_M16}, v20")
    e("v_lshlrev_b32 v30, 16, v21")
    e(f"v_and_b32 v31, s{S_M16}, v21")
    stamp(10)
    lab = poll_begin("psp")
    e(f"buffer_load_dwordx4 v[40:43], v3, s[{R_WS}:{R_WS + 3}], s{T + 3} offen sc1")
    e("s_waitcnt vmcnt(0)")
    e("v_max_u32 v8, v40, v41")
    e("v_max3_u32 v8, v8, v42, v43")
    e("v_cmp_eq_u32 vcc, -1, v8")
    poll_end(lab)
    red32(40)
    e("v_cvt_pk_bf16_f32 v8, v40, v41")
    e("v_cvt_pk_bf16_f32 v9, v42, v43")
    e("v_lshlrev_b32 v40, 16, v8")
    e(f"v_and_b32 v41, s{S_M16}, v8")
    e("v_lshlrev_b32 v42, 16, v9")
    e(f"v_and_b32 v43, s{S_M16}, v9")
    for i in range(4):
        e(f"v_mul_f32 v{40 + i}, v{40 + i}, v{24 + i}")
    e("v_cvt_pk_bf16_f32 v8, v40, v41")
    e("v_cvt_pk_bf16_f32 v9, v42, v43")
    e("v_lshlrev_b32 v40, 16, v8")
    e(f"v_and_b32 v41, s{S_M16}, v8")
    e("v_lshlrev_b32 v42, 16, v9")
    e(f"v_and_b32 v43, s{S_M16}, v9")
    for i in range(4):
        e(f"v_add_f32 v{40 + i}, v{40 + i}, v{28 + i}")
    e("v_cvt_pk_bf16_f32 v8, v40, v41")
    e("v_cvt_pk_bf16_f32 v9, v42, v43")
    e("s_mov_b64 exec, 3")
    e(f"buffer_store_dwordx2 v[8:9], v5, s[{R_B}:{R_B + 3}], s{T + 4} offen")
    stamp(11)
    stamp_flush()
    e("L_end:")
    e("s_endpgm")
    e(f".fill ({16384 if PF2 else 8192} - (. - {KN}_kernel)) / 4, 4, 0xbf800000")
    e('.section .rodata,"a"')
    e(".p2align 6")
    e(f".amdhsa_kernel {KN}_kernel")
    e("  .amdhsa_next_free_vgpr 256")
    e("  .amdhsa_next_free_sgpr 102")
    e("  .amdhsa_accum_offset 256")
    e("  .amdhsa_group_segment_fixed_size 0")
    e("  .amdhsa_kernarg_size 88")
    e("  .amdhsa_user_sgpr_count 2")
    e("  .amdhsa_user_sgpr_kernarg_segment_ptr 1")
    e("  .amdhsa_system_sgpr_workgroup_id_x 1")
    e(".end_amdhsa_kernel")
    return e.text()


if __name__ == "__main__":
    import argparse
    ap = argparse.ArgumentParser()
    ap.add_argument("-o", default="k.s")
    ap.add_argument("--diag", action="store_true")
    ap.add_argument("--thr", type=int, default=6)
    ap.add_argument("--kpol", default="nt")
    ap.add_argument("--wpol", default="nt")
    ap.add_argument("--fullline", action="store_true")
    ap.add_argument("--early", action="store_true")
    a = ap.parse_args()
    open(a.o, "w").write(gen(diag=a.diag, thr=a.thr, kpol=a.kpol, wpol=a.wpol, exp_fullline=a.fullline, early=a.early))
```

```python
import sys

KN = "recurrent_scan__sliding_block_cached__dense_activation_relu__decode"

WS_E = 0x00000
WS_LSE = 0x01000
WS_Q = 0x10000
WS_H = 0x90000
WS_OP = 0xD0000
WS_SP = 0x150000
WS_GP = 0x190000
WS_SIZE = 0x1D0000
WS_STAMP = 0x200000

L_K = 0
L_RED = 0
L_LSUM = 8192
L_OBF = 10240
L_T0 = 131072
L_QB = L_T0 + 24576
L_MAX = L_T0 + 25600
L_SCALE = L_T0 + 26624
L_HB = L_T0 + 28672
L_W2B = 16384
L_WO = 32768
LDS_BYTES = 163840

POLL_LIMIT = 200000
EPOCH_STEP = 0x9E3779B9

HEADER = """; Kernarg layout for this problem (88 bytes, ptrs only, base s[0:1]):
;
; Workgroups hand data to each other through d_ws in 8-byte {payload, tag} granules; the tag is derived from an epoch
"""


class Asm:
    def __init__(self):
        self.L = []
        self.nlab = 0

    def __call__(self, s):
        for line in s.split("\n"):
            line = line.strip()
            if line:
                self.L.append(line)

    def label(self, base):
        self.nlab += 1
        return f"L_{base}_{self.nlab}"

    def text(self):
        out = []
        for l in self.L:
            if l.endswith(":") or l.startswith(".") or l.startswith(";"):
                out.append(l)
            else:
                out.append("    " + l)
        return "\n".join(out) + "\n"


def vr(a, n=1):
    return f"v{a}" if n == 1 else f"v[{a}:{a + n - 1}]"


def gen(diag=False, thr=6, kpol="nt", wpol="nt", early=False, hint=False, tsleep=1, thr2=10, light=False, nshallow=4, xp=()):
    e = Asm()
    PF2 = True
    S_X, S_K, S_V, S_WQ, S_WO, S_BX, S_W1, S_W2 = 4, 6, 8, 10, 12, 14, 16, 18
    S_OUT, S_DBG, S_WS = 20, 22, 24
    S_XI, S_Y, S_WAVE, S_B, S_SP, S_TAG = 26, 27, 28, 29, 30, 31
    R_A, R_B, R_WS, R_C, R_D = 32, 36, 40, 44, 48
    T = 52
    S_STAMP = 72
    S_M16, S_SC, S_L2E, S_PLO, S_PHI = 96, 97, 98, 99, 100
    WSR = f"s[{R_WS}:{R_WS + 3}]"

    def estamp(k):
        if diag and early:
            e(f"s_memrealtime s[{S_STAMP + 2 * k}:{S_STAMP + 2 * k + 1}]")
            e("s_waitcnt lgkmcnt(0)")

    def stamp(k):
        if diag and not (early and k != 11) and not (light and k not in (8, 10, 11)):
            assert k < 12
            e(f"s_memrealtime s[{S_STAMP + 2 * k}:{S_STAMP + 2 * k + 1}]")
            e("s_waitcnt lgkmcnt(0)")

    def stamp_flush():
        if diag:
            e("s_waitcnt vmcnt(0) lgkmcnt(0)")
            e(f"s_lshl_b32 s{T}, s2, 3")
            e(f"s_add_u32 s{T}, s{T}, s{S_WAVE}")
            e(f"s_lshl_b32 s{T}, s{T}, 7")
            e(f"s_add_u32 s{T}, s{T}, {WS_STAMP}")
            e("s_mov_b64 exec, 1")
            e(f"v_mov_b32 v1, s{T}")
            for k in range(12):
                e(f"v_mov_b32 v2, s{S_STAMP + 2 * k}")
                e(f"v_mov_b32 v3, s{S_STAMP + 2 * k + 1}")
                e(f"global_store_dwordx2 v1, v[2:3], s[{S_WS}:{S_WS + 1}] offset:{8 * k}")
            e("s_waitcnt vmcnt(0)")

    def karg2():
        e("s_load_dwordx4 s[20:23], s[0:1], 64")
        e("s_load_dwordx2 s[24:25], s[0:1], 80")

    def epoch_load():
        if "wsend" in xp:
            e(f"s_add_u32 s{S_WS}, s{S_WS}, {512 * 1024 * 1024 - 4 * 1024 * 1024}")
            e(f"s_addc_u32 s{S_WS + 1}, s{S_WS + 1}, 0")
        e(f"s_load_dword s{S_TAG}, s[{S_WS}:{S_WS + 1}], {WS_E}")

    def epoch_tag():
        e(f"s_add_u32 s{S_TAG}, s{S_TAG}, {EPOCH_STEP:#x}")

    def srd(r, lo, hi, size):
        if lo != r:
            e(f"s_mov_b32 s{r}, s{lo}")
            e(f"s_mov_b32 s{r + 1}, s{hi}")
        e(f"s_mov_b32 s{r + 2}, {size}")
        e(f"s_mov_b32 s{r + 3}, 0x20000")

    def srd_off(r, base, soff, size):
        e(f"s_add_u32 s{r}, s{base}, s{soff}")
        e(f"s_addc_u32 s{r + 1}, s{base + 1}, 0")
        e(f"s_mov_b32 s{r + 2}, {size}")
        e(f"s_mov_b32 s{r + 3}, 0x20000")

    def poll_begin(name):
        lab = e.label(name)
        e(f"s_mov_b32 s{T + 17}, {POLL_LIMIT}")
        e(f"{lab}:")
        return lab

    def poll_end(lab, sleep=1):
        done = lab + "_d"
        e("s_cmp_eq_u64 vcc, 0")
        e(f"s_cbranch_scc1 {done}")
        e(f"s_sub_u32 s{T + 17}, s{T + 17}, 1")
        e(f"s_cbranch_scc1 {done}")
        if sleep:
            e(f"s_sleep {sleep}")
        e(f"s_branch {lab}")
        e(f"{done}:")

    def tagcheck(tags, t0, t1):
        if len(tags) == 1:
            e(f"v_cmp_ne_u32 vcc, s{S_TAG}, v{tags[0]}")
            return
        if len(tags) == 2:
            e(f"v_cmp_ne_u32 s[{T + 12}:{T + 13}], s{S_TAG}, v{tags[0]}")
            e(f"v_cmp_ne_u32 vcc, s{S_TAG}, v{tags[1]}")
            e(f"s_or_b64 vcc, vcc, s[{T + 12}:{T + 13}]")
            return
        for op, acc in (("max", t0), ("min", t1)):
            rest = list(tags)
            if len(rest) >= 3:
                e(f"v_{op}3_u32 v{acc}, v{rest[0]}, v{rest[1]}, v{rest[2]}")
                rest = rest[3:]
            while len(rest) >= 2:
                e(f"v_{op}3_u32 v{acc}, v{acc}, v{rest[0]}, v{rest[1]}")
                rest = rest[2:]
            if rest:
                e(f"v_{op}_u32 v{acc}, v{acc}, v{rest[0]}")
        e(f"v_cmp_ne_u32 s[{T + 12}:{T + 13}], s{S_TAG}, v{t0}")
        e(f"v_cmp_ne_u32 vcc, s{S_TAG}, v{t1}")
        e(f"s_or_b64 vcc, vcc, s[{T + 12}:{T + 13}]")

    def xrow_reduce(op, r, t):
        e(f"v_mov_b32 v{t}, v{r}")
        e("s_nop 1")
        e(f"v_permlane32_swap_b32 v{t}, v{r}")
        e("s_nop 1")
        e(f"{op} v{r}, v{t}, v{r}")
        e(f"v_mov_b32 v{t}, v{r}")
        e("s_nop 1")
        e(f"v_permlane16_swap_b32 v{t}, v{r}")
        e("s_nop 1")
        e(f"{op} v{r}, v{t}, v{r}")

    LA, LV = 104, 106

    def lse_addr():
        e(f"s_lshl_b32 s{T + 15}, s{S_XI}, 12")
        e(f"s_lshr_b32 s{T + 16}, s{S_WAVE}, 1")
        e(f"s_lshl_b32 s{T + 16}, s{T + 16}, 10")
        e(f"s_add_u32 s{T + 15}, s{T + 15}, s{T + 16}")
        e(f"s_lshl_b32 s{T + 16}, s{S_B}, 3")
        e(f"s_add_u32 s{T + 15}, s{T + 15}, s{T + 16}")
        e(f"s_add_u32 s{T + 15}, s{T + 15}, {WS_LSE}")
        e(f"v_lshlrev_b32 v{LA}, 7, v1")

    def lse_loads():
        e(f"buffer_load_dwordx2 v[{LV}:{LV + 1}], v{LA}, {WSR}, s{T + 15} offen sc1")
        e(f"buffer_load_dwordx2 v[{LV + 2}:{LV + 3}], v{LA}, {WSR}, s{T + 15} offen offset:512 sc1")

    for l in HEADER.strip("\n").split("\n"):
        e.L.append(l)
    e.L.append(f"; @launch grid=(256,1,1) block=(512,1,1) lds={LDS_BYTES}")
    e('.amdgcn_target "amdgcn-amd-amdhsa--gfx950"')
    e(".text")
    e(f".globl {KN}_kernel")
    e(".p2align 8")
    e(f".type {KN}_kernel,@function")
    e(f"{KN}_kernel:")
    if diag:
        e(f"s_memrealtime s[{S_STAMP}:{S_STAMP + 1}]")
    e("s_cmp_ge_u32 s2, 256")
    e("s_cbranch_scc1 L_end")
    e("s_load_dwordx16 s[4:19], s[0:1], 0")
    e("v_lshrrev_b32 v1, 6, v0")
    e(f"s_and_b32 s{S_XI}, s2, 7")
    e(f"s_lshr_b32 s{S_Y}, s2, 3")
    e(f"v_readfirstlane_b32 s{S_WAVE}, v1")
    e("s_getpc_b64 s[60:61]")
    e("L_pc:")
    e(f"s_sub_u32 s60, s60, L_pc-{KN}_kernel")
    e("s_subb_u32 s61, s61, 0")
    e("v_lshlrev_b32 v1, 4, v0")
    e("global_load_dword v255, v1, s[60:61]")
    e("v_add_u32 v1, 0x2000, v1")
    e("global_load_dword v255, v1, s[60:61]")
    e("v_and_b32 v0, 63, v0")
    e(f"s_lshr_b32 s{S_B}, s{S_Y}, 3")
    e(f"s_and_b32 s{S_SP}, s{S_Y}, 7")
    e("v_lshrrev_b32 v1, 4, v0")
    e("v_and_b32 v2, 15, v0")
    e(f"s_cmp_lt_u32 s{S_WAVE}, 4")
    e("s_cbranch_scc1 L_H")

    S_L, S_KH = 70, 71

    def roles():
        e(f"s_mov_b32 s{S_M16}, 0xffff0000")
        e("v_mov_b32 v9, 0")
        e(f"s_sub_u32 s{S_L}, s{S_Y}, 16")
        e(f"s_lshl_b32 s{S_L}, s{S_L}, 3")
        e(f"s_add_u32 s{S_L}, s{S_L}, s{S_XI}")
        e(f"s_cmp_lt_u32 s{S_Y}, 16")
        e(f"s_cselect_b32 s{S_KH}, s{S_B}, s{S_L}")
        e(f"s_and_b32 s{S_KH}, s{S_KH}, 1")
        e(f"s_lshr_b32 s{S_L}, s{S_L}, 1")

    SW = T
    ROT = T + 1
    VK = 4
    VV = 8
    e(f"s_sub_u32 s{SW}, s{S_WAVE}, 4")
    e(f"s_lshl_b32 s{T + 2}, s{S_B}, 25")
    e(f"s_lshl_b32 s{T + 3}, s{S_XI}, 22")
    e(f"s_add_u32 s{T + 2}, s{T + 2}, s{T + 3}")
    e(f"s_lshl_b32 s{T + 3}, s{S_SP}, 17")
    e(f"s_add_u32 s{T + 2}, s{T + 2}, s{T + 3}")
    e(f"s_add_u32 s{T + 2}, s{T + 2}, 0x300000")
    e(f"s_add_u32 s{ROT}, s{S_XI}, s{S_Y}")
    e(f"s_add_u32 s{ROT}, s{ROT}, s{SW}")
    e(f"s_and_b32 s{ROT}, s{ROT}, 31")
    e(f"s_lshl_b32 s{ROT}, s{ROT}, 12")
    e("v_lshlrev_b32 v3, 2, v1")
    e("v_xor_b32 v3, v2, v3")
    e("v_lshlrev_b32 v3, 4, v3")
    e(f"v_lshl_add_u32 v{VK}, v1, 8, v3")
    e(f"v_xor_b32 v{VK + 1}, 16, v{VK}")
    e(f"v_xor_b32 v{VK + 2}, 32, v{VK}")
    e(f"v_xor_b32 v{VK + 3}, 48, v{VK}")
    e(f"s_lshl_b32 s{T + 4}, s{SW}, 15")
    e(f"s_mov_b32 m0, s{T + 4}")
    e(f"s_mov_b32 s{R_A + 2}, 0x20000")
    e(f"s_mov_b32 s{R_A + 3}, 0x20000")
    estamp(1)
    e("s_waitcnt lgkmcnt(0)")
    estamp(2)
    e(f"s_add_u32 s{R_A}, s{S_K}, s{T + 2}")
    e(f"s_addc_u32 s{R_A + 1}, s{S_K + 1}, 0")

    def ktile(th, off=None):
        so = f"s{ROT}" if off is None else f"s{off}"
        for q in range(4):
            e(f"buffer_load_dwordx4 v{VK + q}, s[{R_A}:{R_A + 3}], {so} offen offset:{q * 1024} {kpol} lds")
            if th is not None:
                e(f"s_waitcnt vmcnt({th})")

    def knext():
        e(f"s_add_u32 s{T + 5}, s{T + 5}, 16384")
        e(f"s_and_b32 s{T + 5}, s{T + 5}, 0x1ffff")
        e(f"s_add_u32 s{T + 4}, s{T + 4}, 4096")
        e(f"s_mov_b32 m0, s{T + 4}")

    ktile(None)
    karg2()
    roles()
    e(f"s_sub_u32 s{T + 14}, s{S_Y}, 23")
    e(f"s_lshl_b32 s{T + 8}, s{S_KH}, 2")
    e(f"s_add_u32 s{T + 8}, s{T + 8}, s{SW}")
    e(f"s_lshl_b32 s{T + 8}, s{T + 8}, 6")
    e(f"s_mul_i32 s{T + 9}, s{SW}, 48")
    e(f"s_lshl_b32 s{T + 10}, s{T + 14}, 8")
    e(f"s_add_u32 s{T + 9}, s{T + 9}, s{T + 10}")
    e(f"s_cmp_lt_u32 s{T + 14}, 7")
    e(f"s_cselect_b32 s{T + 8}, s{T + 9}, s{T + 8}")
    e(f"s_cselect_b32 s{T + 15}, 1, 0")
    e(f"s_lshl_b32 s{T + 12}, s{SW}, 13")
    e(f"s_cmp_eq_u32 s{T + 15}, 1")
    e(f"s_mul_i32 s{T + 11}, s{SW}, 6144")
    e(f"s_cselect_b32 s{T + 11}, s{T + 11}, s{T + 12}")
    e(f"s_add_u32 s{T + 11}, s{T + 11}, {L_T0}")
    e(f"s_lshl_b32 s{T + 9}, s{S_XI}, 10")
    e(f"s_lshl_b32 s{T + 10}, s{S_SP}, 7")
    e(f"s_add_u32 s{T + 9}, s{T + 9}, s{T + 10}")
    e(f"s_mov_b32 s{T + 10}, 8192")
    e(f"s_mov_b32 s{T + 12}, {512 * 8192}")
    e(f"s_mov_b32 s{R_C}, s{S_WQ}")
    e(f"s_mov_b32 s{R_C + 1}, s{S_WQ + 1}")
    e(f"s_cmp_lt_u32 s{S_Y}, 16")
    e("s_cbranch_scc1 L_et")
    e(f"s_lshl_b32 s{T + 9}, s{S_L}, 7")
    e(f"s_mov_b32 s{T + 10}, 3584")
    e(f"s_mov_b32 s{T + 12}, {512 * 3584}")
    e(f"s_mov_b32 s{R_C}, s{S_W1}")
    e(f"s_mov_b32 s{R_C + 1}, s{S_W1 + 1}")
    e(f"s_cmp_lt_u32 s{S_Y}, 23")
    e("s_cbranch_scc1 L_et")
    e(f"s_lshl_b32 s{T + 9}, s{S_XI}, 7")
    e(f"s_mov_b32 s{T + 10}, 1024")
    e(f"s_mov_b32 s{R_C}, s{S_W2}")
    e(f"s_mov_b32 s{R_C + 1}, s{S_W2 + 1}")
    e(f"s_cmp_eq_u32 s{T + 15}, 1")
    e(f"s_cselect_b32 s{T + 12}, {1792 * 1024}, 0")
    e("L_et:")
    e(f"s_mul_i32 s{T + 8}, s{T + 8}, s{T + 10}")
    e(f"s_add_u32 s{T + 8}, s{T + 8}, s{T + 9}")
    e(f"s_lshl_b32 s{T + 9}, s{T + 10}, 3")
    e(f"s_mov_b32 s{R_C + 2}, s{T + 12}")
    e(f"s_mov_b32 s{R_C + 3}, 0x20000")
    e("v_lshrrev_b32 v9, 3, v0")
    e(f"v_mul_lo_u32 v9, v9, s{T + 10}")
    e("v_and_b32 v10, 7, v0")
    e("v_lshl_add_u32 v11, v10, 4, v9")
    for ii in range(8):
        if ii == 6:
            e(f"s_cmp_eq_u32 s{T + 15}, 1")
            e("s_cbranch_scc1 L_et2")
        e(f"s_mov_b32 m0, s{T + 11}")
        e(f"s_add_u32 s{T + 11}, s{T + 11}, 1024")
        e(f"buffer_load_dwordx4 v11, s[{R_C}:{R_C + 3}], s{T + 8} offen {wpol} lds")
        e(f"s_add_u32 s{T + 8}, s{T + 8}, s{T + 9}")
    e("L_et2:")
    srd_off(R_B, S_V, T + 2, 0x20000)
    e(f"v_lshlrev_b32 v{VV}, 4, v0")
    e(f"s_mov_b32 s{T + 5}, s{ROT}")
    knext()
    ktile(thr + 2, T + 5)
    knext()
    ktile(thr + 2, T + 5)
    knext()
    e("s_waitcnt vmcnt(8)")
    e("s_barrier")
    estamp(3)
    e(f"s_mov_b32 s{T + 6}, {nshallow - 2}")
    e("L_kloop:")
    ktile(thr, T + 5)
    knext()
    e(f"s_sub_u32 s{T + 6}, s{T + 6}, 1")
    e(f"s_cmp_lg_u32 s{T + 6}, 0")
    e("s_cbranch_scc1 L_kloop")
    estamp(4)
    e(f"s_mov_b32 s{T + 6}, {7 - nshallow}")
    e("L_kloop2:")
    ktile(thr2, T + 5)
    knext()
    e(f"s_sub_u32 s{T + 6}, s{T + 6}, 1")
    e(f"s_cmp_lg_u32 s{T + 6}, 0")
    e("s_cbranch_scc1 L_kloop2")
    stamp(1)
    e("s_waitcnt lgkmcnt(0)")
    epoch_load()

    VB = 128

    def vtile_off(t):
        e(f"s_add_u32 s{T + 7}, s{ROT}, {t * 16384}")
        e(f"s_and_b32 s{T + 7}, s{T + 7}, 0x1ffff")

    def vload(u, k0, k1, throttle=None):
        for k in range(k0, k1):
            Tt, i = k >> 2, k & 3
            if i == 0 or k == k0:
                vtile_off(2 * u + Tt)
            r = VB + u * 32 + k * 4
            e(f"buffer_load_dwordx4 {vr(r, 4)}, v{VV}, s[{R_B}:{R_B + 3}], s{T + 7} offen offset:{i * 1024} {kpol}")
            if throttle is not None:
                e(f"s_waitcnt vmcnt({throttle})")

    vload(0, 0, 8, thr2)
    e(f"s_mov_b32 s{S_SC}, 0x3db504f3")
    e(f"s_mov_b32 s{S_L2E}, 0x3fb8aa3b")
    e(f"s_mov_b32 s{S_PLO}, 0x05040100")
    e(f"s_mov_b32 s{S_PHI}, 0x07060302")
    VKA = 9
    e("v_and_b32 v3, 3, v2")
    e("v_lshlrev_b32 v3, 2, v3")
    e("v_lshrrev_b32 v13, 2, v2")
    e("v_add_u32 v3, v3, v13")
    e("v_lshlrev_b32 v3, 8, v3")
    e("v_xor_b32 v13, v1, v2")
    e("v_lshl_add_u32 v3, v13, 4, v3")
    e(f"s_lshl_b32 s{T + 4}, s{SW}, 15")
    e(f"v_add_u32 v{VKA}, s{T + 4}, v3")
    e(f"v_xor_b32 v{VKA + 1}, 64, v{VKA}")
    e(f"v_xor_b32 v{VKA + 2}, 0x80, v{VKA}")
    e(f"v_xor_b32 v{VKA + 3}, 0xc0, v{VKA}")
    e("v_lshrrev_b32 v13, 2, v2")
    e("v_lshlrev_b32 v13, 8, v13")
    e("v_lshl_add_u32 v13, v1, 4, v13")
    e(f"v_add_u32 v13, {L_QB}, v13")
    e(f"s_lshl_b32 s{T + 4}, s{SW}, 8")
    e(f"s_add_u32 s{T + 4}, s{T + 4}, {L_MAX}")
    e("v_lshlrev_b32 v14, 2, v0")
    e(f"v_add_u32 v15, s{T + 4}, v14")
    e(f"v_add_u32 v14, {L_MAX}, v14")
    e("s_waitcnt vmcnt(8) lgkmcnt(0)")
    epoch_tag()
    stamp(2)
    e("s_barrier")
    stamp(3)
    QF = 16
    KF = 32
    SS = 64
    for s in range(4):
        e(f"ds_read_b128 {vr(QF + 4 * s, 4)}, v13 offset:{64 * s}")

    def kread(t):
        for s in range(4):
            e(f"ds_read_b128 {vr(KF + 16 * (t & 1) + 4 * s, 4)}, v{VKA + s} offset:{t * 4096}")

    kread(0)
    for t in range(8):
        vload(1, t, t + 1)
        if t < 7:
            kread(t + 1)
            e("s_waitcnt lgkmcnt(4)")
        else:
            e("s_waitcnt lgkmcnt(0)")
        for s in range(4):
            c = "0" if s == 0 else vr(SS + 4 * t, 4)
            e(f"v_mfma_f32_16x16x32_bf16 {vr(SS + 4 * t, 4)}, {vr(KF + 16 * (t & 1) + 4 * s, 4)}, {vr(QF + 4 * s, 4)}, {c}")
    stamp(4)
    TMP = 32
    e("s_nop 7")
    for p in range(16):
        a = SS + 2 * p
        t0 = TMP + (p & 1)
        if p % 4 == 1:
            vload(2, p // 4, p // 4 + 1)
        e(f"v_cvt_pk_bf16_f32 v{t0}, v{a}, v{a + 1}")
        e(f"v_lshlrev_b32 v{a}, 16, v{t0}")
        e(f"v_and_b32 v{a + 1}, s{S_M16}, v{t0}")
        e(f"v_mul_f32 v{a}, s{S_SC}, v{a}")
        e(f"v_mul_f32 v{a + 1}, s{S_SC}, v{a + 1}")
        e(f"v_cvt_pk_bf16_f32 v{t0}, v{a}, v{a + 1}")
        e(f"v_lshlrev_b32 v{a}, 16, v{t0}")
        e(f"v_and_b32 v{a + 1}, s{S_M16}, v{t0}")
    MX = 34
    e(f"v_max3_f32 v{MX}, v{SS}, v{SS + 1}, v{SS + 2}")
    for k in range(3, 31, 2):
        e(f"v_max3_f32 v{MX}, v{MX}, v{SS + k}, v{SS + k + 1}")
    e(f"v_max_f32 v{MX}, v{MX}, v{SS + 31}")
    xrow_reduce("v_max_f32", MX, 35)
    e(f"ds_write_b32 v15, v{MX}")
    e("s_waitcnt lgkmcnt(0)")
    stamp(5)
    e("s_barrier")
    e(f"ds_read2st64_b32 v[36:37], v14 offset0:0 offset1:1")
    e(f"ds_read2st64_b32 v[38:39], v14 offset0:2 offset1:3")
    e("s_waitcnt lgkmcnt(0)")
    e(f"v_max3_f32 v{MX}, v36, v37, v38")
    e(f"v_max_f32 v{MX}, v{MX}, v39")
    MC = 35
    e(f"v_mul_f32 v{MC}, s{S_L2E}, v{MX}")
    PP = 40
    e(f"s_sub_u32 s{T + 10}, s{S_Y}, 23")
    e(f"s_lshl_b32 s{T + 8}, s{T + 10}, 18")
    e(f"s_lshl_b32 s{T + 9}, s{S_XI}, 7")
    e(f"s_add_u32 s{T + 8}, s{T + 8}, s{T + 9}")
    e(f"s_lshl_b32 s{T + 9}, s{SW}, 14")
    e(f"s_add_u32 s{T + 8}, s{T + 8}, s{T + 9}")
    e(f"s_add_u32 s{T + 8}, s{T + 8}, {192 * 1024}")
    e(f"s_cmp_lt_u32 s{T + 10}, 7")
    e(f"s_cselect_b32 s{T + 10}, {1792 * 1024}, 0")
    srd(R_D, S_W2, S_W2 + 1, f"s{T + 10}")
    e(f"s_lshl_b32 s{T + 9}, s{SW}, 11")
    e(f"s_add_u32 s{T + 9}, s{T + 9}, {L_W2B}")
    e("v_lshrrev_b32 v3, 3, v0")
    e("v_lshlrev_b32 v3, 10, v3")
    e("v_and_b32 v4, 7, v0")
    e("v_lshl_add_u32 v3, v4, 4, v3")
    if "wlin" in xp:
        e("v_lshlrev_b32 v3, 4, v0")
        e(f"s_lshl_b32 s{T + 8}, s2, 14")
        e(f"s_and_b32 s{T + 8}, s{T + 8}, 0xfffff")

    def w2load():
        e(f"s_mov_b32 m0, s{T + 9}")
        e(f"s_add_u32 s{T + 9}, s{T + 9}, 1024")
        e(f"buffer_load_dwordx4 v3, s[{R_D}:{R_D + 3}], s{T + 8} offen {wpol} lds")
        e(f"s_add_u32 s{T + 8}, s{T + 8}, {1024 if 'wlin' in xp else 8192}")

    for p in range(16):
        a = SS + 2 * p
        e(f"v_fma_f32 v{a}, v{a}, s{S_L2E}, -v{MC}")
        e(f"v_fma_f32 v{a + 1}, v{a + 1}, s{S_L2E}, -v{MC}")
        e(f"v_exp_f32 v{a}, v{a}")
        e(f"v_exp_f32 v{a + 1}, v{a + 1}")
        if p > 0:
            e(f"v_cvt_pk_bf16_f32 v{PP + p - 1}, v{a - 2}, v{a - 1}")
        if p in (2, 5):
            w2load()
        if p >= 8 and p % 2 == 1:
            vload(2, 4 + (p - 8) // 2, 5 + (p - 8) // 2)
    ACC = 64
    ACL = 96
    ONE = 100
    PT = 16
    for k in range(4):
        e(f"v_mov_b32 v{ONE + k}, 0x3f803f80")
    e(f"v_cvt_pk_bf16_f32 v{PP + 15}, v{SS + 30}, v{SS + 31}")
    e(f"s_lshl_b32 s{T + 8}, s{SW}, 8")
    e(f"s_add_u32 s{T + 8}, s{T + 8}, {L_LSUM}")
    e("v_lshlrev_b32 v6, 2, v0")
    e(f"v_add_u32 v5, s{T + 8}, v6")
    for u in range(4):
        c = "0" if u == 0 else vr(ACL, 4)
        e(f"v_mfma_f32_16x16x32_bf16 {vr(ACL, 4)}, {vr(PP + 4 * u, 4)}, {vr(ONE, 4)}, {c}")
    e("s_nop 7")
    e(f"ds_write_b32 v5, v{ACL}")
    e("s_waitcnt lgkmcnt(0)")
    stamp(6)
    e("s_barrier")

    def pv(u, loads=None):
        first = u == 0
        A = vr(PP + 4 * u, 4)

        def perms(w):
            base = PT + 8 * (w & 1)
            for d in range(4):
                a = VB + u * 32 + (2 * d) * 4 + w
                b = VB + u * 32 + (2 * d + 1) * 4 + w
                e(f"v_perm_b32 v{base + d}, v{b}, v{a}, s{S_PLO}")
            for d in range(4):
                a = VB + u * 32 + (2 * d) * 4 + w
                b = VB + u * 32 + (2 * d + 1) * 4 + w
                e(f"v_perm_b32 v{base + 4 + d}, v{b}, v{a}, s{S_PHI}")

        def mf(w):
            base = PT + 8 * (w & 1)
            for hi in range(2):
                j = 2 * w + hi
                c = "0" if first else vr(ACC + 4 * j, 4)
                e(f"v_mfma_f32_16x16x32_bf16 {vr(ACC + 4 * j, 4)}, {A}, {vr(base + 4 * hi, 4)}, {c}")

        if loads:
            loads(0)
        perms(0)
        for w in range(1, 4):
            if loads:
                loads(w)
            perms(w)
            mf(w - 1)
        e("s_nop 1")
        mf(3)

    e("s_waitcnt vmcnt(18)")
    pv(0, lambda w: vload(3, w, w + 1))
    e("s_waitcnt vmcnt(14)")
    pv(1, lambda w: vload(3, 4 + w, 5 + w))
    e(f"s_lshl_b32 s{T + 8}, s{S_XI}, 2")
    e(f"s_add_u32 s{T + 8}, s{T + 8}, s{S_B}")
    e(f"s_lshl_b32 s{T + 8}, s{T + 8}, 17")
    e(f"s_lshl_b32 s{T + 9}, s{S_SP}, 7")
    e(f"s_add_u32 s{T + 8}, s{T + 8}, s{T + 9}")
    e(f"s_lshl_b32 s{T + 9}, s{SW}, 15")
    e(f"s_add_u32 s{T + 8}, s{T + 8}, s{T + 9}")
    srd(R_C, S_WO, S_WO + 1, 4096 * 1024)
    e(f"s_lshl_b32 s{T + 9}, s{SW}, 12")
    e(f"s_add_u32 s{T + 9}, s{T + 9}, {L_WO}")
    if "wlin" in xp:
        e(f"s_lshl_b32 s{T + 8}, s2, 14")
        e(f"s_lshl_b32 s{T + 10}, s{SW}, 12")
        e(f"s_add_u32 s{T + 8}, s{T + 8}, s{T + 10}")
    for ii in range(4):
        e(f"s_mov_b32 m0, s{T + 9}")
        e(f"s_add_u32 s{T + 9}, s{T + 9}, 1024")
        e(f"buffer_load_dwordx4 v3, s[{R_C}:{R_C + 3}], s{T + 8} offen {wpol} lds")
        e(f"s_add_u32 s{T + 8}, s{T + 8}, {1024 if 'wlin' in xp else 8192}")
    srd(R_WS, S_WS, S_WS + 1, WS_SIZE)
    lse_addr()
    lse_loads()
    e("s_waitcnt vmcnt(14)")
    e("s_barrier")
    pv(2)
    e(f"s_lshl_b32 s{T + 8}, s{SW}, 11")
    e("v_lshlrev_b32 v3, 5, v0")
    e(f"v_add_u32 v4, s{T + 8}, v3")
    e("s_waitcnt vmcnt(6)")
    stamp(7)
    pv(3)
    e("s_nop 1")
    for j in range(8):
        e(f"v_mov_b32 v{16 + j}, v{ACC + 4 * j}")
    e("ds_write_b128 v4, v[16:19]")
    e("ds_write_b128 v4, v[20:23] offset:16")
    e("s_waitcnt lgkmcnt(0)")
    stamp(8)
    e("s_barrier")
    e("s_branch L_wts")

    e("L_H:")
    e("s_setprio 3")
    roles()
    e("v_mov_b32 v3, 0")
    estamp(1)
    e(f"s_cmp_lg_u32 s{S_WAVE}, 0")
    e("s_cbranch_scc1 L_H23")
    e(f"s_cmp_ge_u32 s{S_Y}, 23")
    e("s_cbranch_scc1 L_H23")
    P_QA, P_OUT = T + 5, T + 8
    e(f"s_lshl_b32 s{P_QA}, s{S_KH}, 1")
    e(f"s_lshl_b32 s{P_OUT}, s{S_XI}, 14")
    e(f"s_lshl_b32 s{T}, s{S_Y}, 10")
    e(f"s_add_u32 s{P_OUT}, s{P_OUT}, s{T}")
    e(f"s_add_u32 s{P_OUT}, s{P_OUT}, {WS_Q}")
    e(f"s_lshl_b32 s{T}, s{S_L}, 1")
    e(f"s_add_u32 s{T}, s{T}, s{S_KH}")
    e(f"s_lshl_b32 s{T}, s{T}, 10")
    e(f"s_add_u32 s{T}, s{T}, {WS_H}")
    e(f"s_cmp_lt_u32 s{S_Y}, 16")
    e(f"s_cselect_b32 s{P_OUT}, s{P_OUT}, s{T}")
    e("v_and_b32 v3, 3, v2")
    e("v_lshrrev_b32 v10, 2, v2")
    e("v_lshlrev_b32 v4, 10, v3")
    e("v_lshl_add_u32 v4, v10, 8, v4")
    e("v_lshl_add_u32 v4, v1, 4, v4")
    e("s_waitcnt lgkmcnt(0)")
    estamp(2)
    srd(R_B, S_X, S_X + 1, 4096)
    XR = 16
    for tau in range(4):
        e(f"buffer_load_dwordx4 {vr(XR + 4 * tau, 4)}, v4, s[{R_B}:{R_B + 3}], 0 offen offset:{64 * tau}")
    karg2()
    estamp(4)
    e("v_lshlrev_b32 v14, 10, v1")
    e("v_lshl_add_u32 v14, v10, 7, v14")
    e("v_lshl_add_u32 v14, v3, 3, v14")
    e(f"v_add_u32 v14, {L_T0}, v14")
    e(f"v_subrev_u32 v11, s{P_QA}, v10")
    e("v_and_b32 v11, 3, v11")
    e("v_lshlrev_b32 v5, 8, v3")
    e("v_lshl_add_u32 v5, v11, 6, v5")
    e("v_lshl_add_u32 v5, v1, 4, v5")
    e("v_cmp_ne_u32 s[64:65], 1, v11")
    e("v_cmp_ne_u32 s[66:67], 2, v11")
    e("v_cmp_ne_u32 s[68:69], 3, v11")
    e("s_waitcnt lgkmcnt(0)")
    epoch_load()
    srd(R_WS, S_WS, S_WS + 1, WS_SIZE)
    e("s_waitcnt vmcnt(0)")
    estamp(6)
    stamp(2)
    XF = 32
    for k in range(16):
        e(f"v_lshlrev_b32 v{XF + 2 * k}, 16, v{XR + k}")
        e(f"v_and_b32 v{XF + 2 * k + 1}, s{S_M16}, v{XR + k}")

    def lane_sum(r, t):
        e("s_nop 1")
        e(f"v_add_f32_dpp v{r}, v{r}, v{r} row_ror:4 row_mask:0xf bank_mask:0xf")
        e("s_nop 1")
        e(f"v_add_f32_dpp v{r}, v{r}, v{r} row_ror:8 row_mask:0xf bank_mask:0xf")
        xrow_reduce("v_add_f32", r, t)

    e(f"v_add_f32 v7, v{XF}, v{XF + 1}")
    e(f"v_add_f32 v8, v{XF + 2}, v{XF + 3}")
    for k in range(4, 32, 2):
        e(f"v_add_f32 v7, v7, v{XF + k}")
        e(f"v_add_f32 v8, v8, v{XF + k + 1}")
    e("v_add_f32 v7, v7, v8")
    lane_sum(7, 9)
    e("v_mul_f32 v7, 0x3b000000, v7")
    e(f"v_sub_f32 v12, v{XF}, v7")
    e(f"v_sub_f32 v6, v{XF + 1}, v7")
    e("v_mul_f32 v8, v12, v12")
    e("v_mul_f32 v13, v6, v6")
    for k in range(2, 32, 2):
        e(f"v_sub_f32 v12, v{XF + k}, v7")
        e(f"v_sub_f32 v6, v{XF + k + 1}, v7")
        e("v_fmac_f32 v8, v12, v12")
        e("v_fmac_f32 v13, v6, v6")
    e("v_add_f32 v8, v8, v13")
    lane_sum(8, 9)
    e("v_mul_f32 v8, 0x3b000000, v8")
    e("v_cvt_pk_bf16_f32 v9, v7, v8")
    e("v_lshlrev_b32 v7, 16, v9")
    e(f"v_and_b32 v8, s{S_M16}, v9")
    e("v_add_f32 v8, 0x3727c5ac, v8")
    e("v_cvt_pk_bf16_f32 v9, v8, v8")
    e(f"v_and_b32 v8, s{S_M16}, v9")
    e("v_sqrt_f32 v8, v8")
    e("s_nop 0")
    e("v_cvt_pk_bf16_f32 v9, v8, v8")
    e(f"v_and_b32 v8, s{S_M16}, v9")
    e("v_rcp_f32 v8, v8")
    BF = 16
    for k in range(16):
        a = XF + 2 * k
        e(f"v_sub_f32 v{a}, v{a}, v7")
        e(f"v_sub_f32 v{a + 1}, v{a + 1}, v7")
        e(f"v_cvt_pk_bf16_f32 v9, v{a}, v{a + 1}")
        e(f"v_lshlrev_b32 v{a}, 16, v9")
        e(f"v_and_b32 v{a + 1}, s{S_M16}, v9")
        e(f"v_mul_f32 v{a}, v{a}, v8")
        e(f"v_mul_f32 v{a + 1}, v{a + 1}, v8")
        e(f"v_cvt_pk_bf16_f32 v{BF + k}, v{a}, v{a + 1}")
    e("s_waitcnt lgkmcnt(0)")
    epoch_tag()
    estamp(7)
    stamp(3)
    e("s_barrier")
    estamp(8)
    stamp(4)
    AF = 64
    DD = 96

    def wread(bi):
        ct, hf = bi >> 1, bi & 1
        for t in range(4):
            r = AF + 16 * (bi & 1) + 4 * t
            e(f"ds_read_b64_tr_b16 {vr(r, 2)}, v14 offset:{(4 * hf + t) * 4096 + ct * 32}")
            e(f"ds_read_b64_tr_b16 {vr(r + 2, 2)}, v14 offset:{(4 * hf + t) * 4096 + 512 + ct * 32}")

    wread(0)
    for bi in range(8):
        if bi < 7:
            wread(bi + 1)
            e("s_waitcnt lgkmcnt(8)")
        else:
            e("s_waitcnt lgkmcnt(0)")
        d = DD + 16 * (bi & 1) + 4 * (bi >> 1)
        for t in range(4):
            c = "0" if t == 0 else vr(d, 4)
            e(f"v_mfma_f32_16x16x32_bf16 {vr(d, 4)}, {vr(AF + 16 * (bi & 1) + 4 * t, 4)}, {vr(BF + 4 * t, 4)}, {c}")
    e(f"s_mov_b32 s{T}, 0x07060503")
    e(f"s_mov_b32 s{T + 1}, 0x07060502")
    e(f"s_mov_b32 s{T + 2}, 0x07060501")
    e("s_nop 4")
    for k in range(16):
        e(f"v_add_f32_dpp v{DD + k}, v{DD + 16 + k}, v{DD + k} row_ror:12 row_mask:0xf bank_mask:0xf")
    for ct in range(1, 4):
        e(f"s_mov_b64 vcc, s[{62 + 2 * ct}:{63 + 2 * ct}]")
        for i in range(4):
            e(f"v_cndmask_b32_dpp v{DD + i}, v{DD + 4 * ct + i}, v{DD + i}, vcc row_ror:{4 * ct} row_mask:0xf bank_mask:0xf")
    for i in range(4):
        e(f"v_add_u32 v{DD + i}, 0x80, v{DD + i}")
    for i in range(3):
        e(f"v_perm_b32 v{112 + i}, v{DD + i}, v{DD + 3}, s{T + i}")
    e("v_xor_b32 v115, v112, v113")
    e("v_xor_b32 v115, v115, v114")
    e(f"v_xor_b32 v115, s{S_TAG}, v115")
    if "nohand" not in xp:
        e(f"buffer_store_dwordx4 v[112:115], v5, {WSR}, s{P_OUT} offen sc1")
    stamp(5)
    e("s_waitcnt vmcnt(0)")
    stamp(6)
    e("L_qg:")
    if "nohand" in xp or "pubonly" in xp:
        e("s_branch L_Hb1")
    e(f"s_lshl_b32 s{T}, s{S_XI}, 14")
    e(f"s_lshl_b32 s{T + 1}, s{S_B}, 8")
    e(f"s_add_u32 s{T}, s{T}, s{T + 1}")
    e(f"s_add_u32 s{T}, s{T}, {WS_Q}")
    e(f"s_add_u32 s{T + 1}, s{T}, 4096")
    e(f"s_add_u32 s{T + 2}, s{T}, 8192")
    e(f"s_add_u32 s{T + 3}, s{T}, 12288")
    e("v_lshlrev_b32 v5, 10, v1")
    e("v_lshl_add_u32 v5, v2, 4, v5")
    e("v_lshlrev_b32 v6, 3, v0")
    e(f"v_add_u32 v6, {L_QB}, v6")
    e(f"s_mov_b32 s{T + 4}, 0x04000c0c")
    e(f"s_mov_b32 s{T + 5}, 0x0706000c")
    QG = 16

    def unit_checks(regs, t0, t1):
        for r in regs:
            e(f"v_xor_b32 v{r + 3}, v{r + 3}, v{r}")
        for r in regs:
            e(f"v_xor_b32 v{r + 3}, v{r + 3}, v{r + 1}")
        for r in regs:
            e(f"v_xor_b32 v{r + 3}, v{r + 3}, v{r + 2}")
        tagcheck([r + 3 for r in regs], t0, t1)

    def unit_unpack(r):
        e(f"v_perm_b32 v{r + 3}, v{r}, v{r + 1}, s{T + 4}")
        e(f"v_perm_b32 v{r + 3}, v{r + 3}, v{r + 2}, s{T + 5}")
        for i in range(3):
            e(f"v_and_b32 v{r + i}, 0xffffff00, v{r + i}")

    lab = poll_begin("pq")
    for kh in range(2):
        for m in range(2):
            r = QG + 8 * kh + 4 * m
            e(f"buffer_load_dwordx4 {vr(r, 4)}, v5, {WSR}, s{T + 2 * kh + m} offen sc1")
    e("s_waitcnt vmcnt(0)")
    unit_checks([QG + 4 * k for k in range(4)], 8, 9)
    if "once" in xp:
        e("s_mov_b64 vcc, 0")
    poll_end(lab, 6)
    for k in range(4):
        unit_unpack(QG + 4 * k)
    for m in range(2):
        r = QG + 4 * m
        for i in range(4):
            e(f"v_add_f32 v{r + i}, v{r + i}, v{r + 8 + i}")
        e(f"v_cvt_pk_bf16_f32 v{r}, v{r}, v{r + 1}")
        e(f"v_cvt_pk_bf16_f32 v{r + 1}, v{r + 2}, v{r + 3}")
        e(f"ds_write_b64 v6, {vr(r, 2)} offset:{512 * m}")
    e("s_waitcnt lgkmcnt(0)")
    stamp(7)
    e("s_branch L_Hb1")

    e("L_H23:")
    e("s_waitcnt lgkmcnt(0)")
    karg2()
    e("s_waitcnt lgkmcnt(0)")
    epoch_load()
    srd(R_WS, S_WS, S_WS + 1, WS_SIZE)
    e("s_waitcnt lgkmcnt(0)")
    epoch_tag()
    e("s_barrier")
    e(f"s_cmp_eq_u32 s{S_WAVE}, 0")
    e("s_cbranch_scc1 L_qg")

    e("L_Hb1:")
    e("s_barrier")
    HG = 32

    def hloads():
        for lp in range(4):
            for kh in range(2):
                r = HG + 8 * lp + 4 * kh
                e(f"buffer_load_dwordx4 {vr(r, 4)}, v3, {WSR}, s{T + (lp >> 1)} offen offset:{(lp & 1) * 2048 + 1024 * kh} sc1")

    e(f"s_sub_u32 s{T + 4}, s{S_Y}, 23")
    e(f"s_cmp_lt_u32 s{T + 4}, 7")
    e(f"s_cselect_b32 s{T + 6}, s{S_WAVE}, 0")
    if "nohand" in xp or "noh" in xp or "pubonly" in xp or "once" in xp:
        e(f"s_mov_b32 s{T + 6}, 0")
    e(f"s_cmp_eq_u32 s{T + 6}, 3")
    e("s_cbranch_scc0 L_noh1")
    e(f"s_lshl_b32 s{T}, s{T + 4}, 13")
    e(f"s_add_u32 s{T}, s{T}, {WS_H}")
    e(f"s_add_u32 s{T + 1}, s{T}, 4096")
    e("v_lshlrev_b32 v3, 4, v0")
    hloads()
    e("L_noh1:")
    e("s_barrier")
    e("s_barrier")
    stamp(8)
    e(f"s_cmp_eq_u32 s{T + 6}, 3")
    e("s_cbranch_scc0 L_noh2")
    e("v_lshlrev_b32 v6, 9, v1")
    e("v_lshl_add_u32 v6, v2, 3, v6")
    e(f"v_add_u32 v6, {L_HB}, v6")
    e(f"s_mov_b32 s{T + 4}, 0x04000c0c")
    e(f"s_mov_b32 s{T + 5}, 0x0706000c")
    lab = e.label("ph")
    e(f"s_mov_b32 s{T + 17}, {POLL_LIMIT}")
    e(f"{lab}:")
    e("s_waitcnt vmcnt(0)")
    unit_checks([HG + 4 * k for k in range(8)], 8, 9)
    e("s_cmp_eq_u64 vcc, 0")
    e(f"s_cbranch_scc1 {lab}_d")
    e(f"s_sub_u32 s{T + 17}, s{T + 17}, 1")
    e(f"s_cbranch_scc1 {lab}_d")
    e("s_sleep 4")
    hloads()
    e(f"s_branch {lab}")
    e(f"{lab}_d:")
    for k in range(8):
        unit_unpack(HG + 4 * k)
    for lp in range(4):
        r = HG + 8 * lp
        for i in range(4):
            e(f"v_add_f32 v{r + i}, v{r + i}, v{r + 4 + i}")
        for i in range(4):
            e(f"v_max_f32 v{r + i}, 0, v{r + i}")
        e(f"v_cvt_pk_bf16_f32 v{r}, v{r}, v{r + 1}")
        e(f"v_cvt_pk_bf16_f32 v{r + 1}, v{r + 2}, v{r + 3}")
        e(f"ds_write_b64 v6, {vr(r, 2)} offset:{128 * lp}")
    e("L_noh2:")
    e(f"s_cmp_eq_u32 s{S_WAVE}, 2")
    e("s_cbranch_scc0 L_nolse")
    e("v_lshlrev_b32 v3, 2, v0")
    e(f"ds_read2st64_b32 v[6:7], v3 offset0:{L_LSUM // 256} offset1:{L_LSUM // 256 + 1}")
    e(f"ds_read2st64_b32 v[8:9], v3 offset0:{L_LSUM // 256 + 2} offset1:{L_LSUM // 256 + 3}")
    e("v_lshlrev_b32 v4, 4, v1")
    e(f"v_add_u32 v4, {L_MAX}, v4")
    e("ds_read2st64_b32 v[10:11], v4 offset0:0 offset1:1")
    e("ds_read2st64_b32 v[12:13], v4 offset0:2 offset1:3")
    e(f"s_mov_b32 s{S_L2E}, 0x3fb8aa3b")
    e(f"s_lshl_b32 s{T}, s{S_XI}, 12")
    e(f"s_lshl_b32 s{T + 1}, s{S_B}, 10")
    e(f"s_add_u32 s{T}, s{T}, s{T + 1}")
    e(f"s_add_u32 s{T}, s{T}, {WS_LSE}")
    e(f"s_lshl_b32 s{T + 1}, s{S_SP}, 7")
    e(f"s_add_u32 s{T + 1}, s{T + 1}, s{T}")
    e("s_waitcnt lgkmcnt(0)")
    e("v_add_f32 v6, v6, v7")
    e("v_add_f32 v8, v8, v9")
    e("v_max3_f32 v10, v10, v11, v12")
    e("v_add_f32 v6, v6, v8")
    e("v_max_f32 v10, v10, v13")
    e("v_rcp_f32 v11, v6")
    e("v_log_f32 v6, v6")
    e(f"v_mul_f32 v10, s{S_L2E}, v10")
    e("v_lshlrev_b32 v5, 3, v1")
    e("v_add_f32 v6, v6, v10")
    e(f"v_mov_b32 v7, s{S_TAG}")
    e("v_cmp_eq_u32 vcc, 0, v2")
    e("s_and_saveexec_b64 s[64:65], vcc")
    e(f"buffer_store_dwordx2 v[6:7], v5, {WSR}, s{T + 1} offen sc1")
    e("s_mov_b64 exec, s[64:65]")
    e("v_lshlrev_b32 v5, 2, v1")
    e(f"v_add_u32 v5, {L_SCALE}, v5")
    e("v_cmp_eq_u32 vcc, 0, v2")
    e("s_and_saveexec_b64 s[64:65], vcc")
    e("ds_write_b32 v5, v11")
    e("s_mov_b64 exec, s[64:65]")
    e("L_nolse:")
    WF = 32
    e("v_lshrrev_b32 v10, 2, v2")
    e("v_and_b32 v11, 3, v2")
    e("v_lshlrev_b32 v4, 10, v1")
    e("v_lshl_add_u32 v4, v10, 7, v4")
    e("v_lshl_add_u32 v4, v11, 3, v4")
    e(f"s_lshl_b32 s{T}, s{S_WAVE}, 5")
    e(f"v_add_u32 v4, s{T}, v4")
    e("v_lshlrev_b32 v6, 9, v11")
    e("v_lshl_add_u32 v6, v1, 4, v6")
    e(f"v_add_u32 v6, {L_HB}, v6")
    e("v_lshlrev_b32 v9, 6, v2")
    e("v_lshl_add_u32 v9, v1, 4, v9")
    e(f"v_mov_b32 v17, s{S_TAG}")
    e(f"v_mov_b32 v19, s{S_TAG}")
    e("s_waitcnt lgkmcnt(0)")
    e("s_barrier")
    e(f"s_sub_u32 s{T + 4}, s{S_Y}, 23")
    e(f"s_cmp_ge_u32 s{T + 4}, 7")
    e("s_cbranch_scc1 L_nog2")
    e(f"v_add_u32 v7, {L_T0}, v4")
    for t in range(8):
        ad, off = ("v7", t * 4096) if t < 6 else ("v4", L_W2B + (t - 6) * 4096)
        e(f"ds_read_b64_tr_b16 {vr(64 + 4 * t, 2)}, {ad} offset:{off}")
        e(f"ds_read_b64_tr_b16 {vr(64 + 4 * t + 2, 2)}, {ad} offset:{off + 512}")
        if t == 3:
            e("s_waitcnt lgkmcnt(4)")
    e("s_waitcnt lgkmcnt(4)")
    for t in range(8):
        e(f"ds_read_b128 {vr(96 + 4 * t, 4)}, v6 offset:{64 * t}")
    e("s_waitcnt lgkmcnt(0)")
    for t in range(8):
        c = "0" if t == 0 else "v[12:15]"
        e(f"v_mfma_f32_16x16x32_bf16 v[12:15], {vr(64 + 4 * t, 4)}, {vr(96 + 4 * t, 4)}, {c}")
    e("s_nop 7")
    e("v_cvt_pk_bf16_f32 v20, v12, v13")
    e("v_cvt_pk_bf16_f32 v22, v14, v15")
    e("L_nog2:")
    e("v_lshrrev_b32 v24, 5, v0")
    e(f"s_lshl_b32 s{T}, s{S_WAVE}, 1")
    e(f"v_add_u32 v24, s{T}, v24")
    e("v_and_b32 v25, 31, v0")
    e("v_lshlrev_b32 v25, 4, v25")
    e("v_lshl_add_u32 v26, v24, 9, v25")
    e("v_lshl_add_u32 v27, v24, 14, v25")
    e("v_lshlrev_b32 v28, 2, v24")
    e(f"v_add_u32 v28, {L_SCALE}, v28")
    e(f"s_lshl_b32 s{T + 13}, s{S_XI}, 16")
    e(f"s_lshl_b32 s{T + 1}, s{S_SP}, 11")
    e(f"s_add_u32 s{T + 13}, s{T + 13}, s{T + 1}")
    e(f"s_lshl_b32 s{T + 1}, s{S_B}, 9")
    e(f"s_add_u32 s{T + 13}, s{T + 13}, s{T + 1}")
    e(f"s_add_u32 s{T + 13}, s{T + 13}, {WS_OP}")
    e(f"v_mov_b32 v81, s{S_TAG}")
    e(f"v_mov_b32 v83, s{S_TAG}")
    e(f"s_lshl_b32 s{T + 14}, s{S_XI}, 2")
    e(f"s_add_u32 s{T + 14}, s{T + 14}, s{S_B}")
    e(f"s_lshl_b32 s{T + 14}, s{T + 14}, 10")
    e(f"s_lshl_b32 s{T + 1}, s{S_SP}, 15")
    e(f"s_add_u32 s{T + 14}, s{T + 14}, s{T + 1}")
    e(f"s_lshl_b32 s{T + 1}, s{S_WAVE}, 8")
    e(f"s_add_u32 s{T + 14}, s{T + 14}, s{T + 1}")
    e(f"s_add_u32 s{T + 14}, s{T + 14}, {WS_SP}")
    e("v_and_b32 v12, 3, v2")
    e("v_lshlrev_b32 v12, 8, v12")
    e("v_lshl_add_u32 v12, v1, 4, v12")
    e(f"v_add_u32 v12, {L_OBF}, v12")
    e(f"v_add_u32 v4, {L_WO}, v4")
    lse_addr()
    stamp(9)

    e("s_barrier")
    e(f"s_cmp_lt_u32 s{S_WAVE}, 2")
    e("s_cbranch_scc0 L_nopub")
    for sw_ in range(4):
        e(f"ds_read_b128 {vr(64 + 4 * sw_, 4)}, v26 offset:{sw_ * 2048}")
    e("ds_read_b32 v29, v28")
    e("s_waitcnt lgkmcnt(0)")
    for i in range(4):
        e(f"v_add_f32 v{64 + i}, v{64 + i}, v{68 + i}")
        e(f"v_add_f32 v{72 + i}, v{72 + i}, v{76 + i}")
    for i in range(4):
        e(f"v_add_f32 v{64 + i}, v{64 + i}, v{72 + i}")
    for i in range(4):
        e(f"v_mul_f32 v{64 + i}, v{64 + i}, v29")
    e("v_cvt_pk_bf16_f32 v80, v64, v65")
    e("v_cvt_pk_bf16_f32 v82, v66, v67")
    e(f"buffer_store_dwordx4 v[80:83], v27, {WSR}, s{T + 13} offen sc1")
    e("L_nopub:")
    e(f"s_sub_u32 s{T + 4}, s{S_Y}, 23")
    e(f"s_cmp_ge_u32 s{T + 4}, 7")
    e("s_cbranch_scc1 L_nogp")
    e(f"s_lshl_b32 s{T}, s{S_XI}, 15")
    e(f"s_lshl_b32 s{T + 1}, s{T + 4}, 10")
    e(f"s_add_u32 s{T}, s{T}, s{T + 1}")
    e(f"s_lshl_b32 s{T + 1}, s{S_WAVE}, 8")
    e(f"s_add_u32 s{T}, s{T}, s{T + 1}")
    e(f"s_add_u32 s{T}, s{T}, {WS_GP}")
    e(f"v_mov_b32 v21, s{S_TAG}")
    e(f"v_mov_b32 v23, s{S_TAG}")
    e("v_cmp_gt_u32 vcc, 4, v2")
    e("s_and_saveexec_b64 s[64:65], vcc")
    e(f"buffer_store_dwordx4 v[20:23], v9, {WSR}, s{T} offen sc1")
    e("s_mov_b64 exec, s[64:65]")
    e("L_nogp:")
    lse_loads()
    e("L_wts:")
    lab = e.label("pw")
    e(f"s_mov_b32 s{T + 17}, {POLL_LIMIT}")
    e(f"{lab}:")
    e("s_waitcnt vmcnt(0)")
    tagcheck([LV + 1, LV + 3], 0, 0)
    e("s_cmp_eq_u64 vcc, 0")
    e(f"s_cbranch_scc1 {lab}_d")
    e(f"s_sub_u32 s{T + 17}, s{T + 17}, 1")
    e(f"s_cbranch_scc1 {lab}_d")
    e("s_sleep 1")
    lse_loads()
    e(f"s_branch {lab}")
    e(f"{lab}_d:")
    e(f"v_max_f32 v110, v{LV}, v{LV + 2}")
    xrow_reduce("v_max_f32", 110, 111)
    e(f"v_sub_f32 v{LV}, v{LV}, v110")
    e(f"v_sub_f32 v{LV + 2}, v{LV + 2}, v110")
    e(f"v_exp_f32 v{LV}, v{LV}")
    e(f"v_exp_f32 v{LV + 2}, v{LV + 2}")
    e("s_nop 0")
    e(f"v_add_f32 v110, v{LV}, v{LV + 2}")
    xrow_reduce("v_add_f32", 110, 111)
    e("v_rcp_f32 v110, v110")
    e("s_nop 0")
    e(f"v_mul_f32 v111, v{LV + 2}, v110")
    e(f"v_mul_f32 v110, v{LV}, v110")
    e(f"s_lshl_b32 s{T}, s{S_XI}, 16")
    e(f"s_lshl_b32 s{T + 1}, s{S_B}, 14")
    e(f"s_add_u32 s{T}, s{T}, s{T + 1}")
    e(f"s_lshl_b32 s{T + 1}, s{S_WAVE}, 8")
    e(f"s_add_u32 s{T}, s{T}, s{T + 1}")
    e(f"s_add_u32 s{T}, s{T}, {WS_OP}")
    e(f"s_add_u32 s{T + 1}, s{T}, 8192")
    e("v_lshlrev_b32 v5, 11, v1")
    e("v_lshl_add_u32 v5, v2, 4, v5")
    OG = 48
    e(f"s_lshl_b32 s{T + 2}, s{S_WAVE}, 7")
    e(f"s_add_u32 s{T + 2}, s{T + 2}, {L_OBF}")
    e("v_lshlrev_b32 v3, 3, v2")
    e("v_lshl_add_u32 v3, v1, 1, v3")
    e(f"v_add_u32 v3, s{T + 2}, v3")
    e("s_barrier")
    e(f"s_cmp_lt_u32 s{S_WAVE}, 4")
    e("s_cbranch_scc0 L_nowo")
    for t in range(4):
        e(f"ds_read_b64_tr_b16 {vr(WF + 4 * t, 2)}, v4 offset:{t * 4096}")
        e(f"ds_read_b64_tr_b16 {vr(WF + 4 * t + 2, 2)}, v4 offset:{t * 4096 + 512}")
    e("L_nowo:")
    if hint:
        e("v_lshlrev_b32 v6, 11, v0")
        e("v_add_u32 v6, 252, v6")
        e("s_mov_b64 exec, 0xff")
        lab = poll_begin("ph2")
        e(f"buffer_load_dword v8, v6, {WSR}, s{T} offen sc1")
        e("s_waitcnt vmcnt(0)")
        tagcheck([8], 0, 0)
        poll_end(lab, tsleep)
        e("s_mov_b64 exec, -1")
    lab = poll_begin("po")
    e(f"buffer_load_dwordx4 v[{OG}:{OG + 3}], v5, {WSR}, s{T} offen sc1")
    e(f"buffer_load_dwordx4 v[{OG + 4}:{OG + 7}], v5, {WSR}, s{T + 1} offen sc1")
    e("s_waitcnt vmcnt(0)")
    tagcheck([OG + 1, OG + 3, OG + 5, OG + 7], 8, 7)
    poll_end(lab, tsleep)
    stamp(10)
    e(f"v_lshlrev_b32 v56, 16, v{OG}")
    e(f"v_and_b32 v57, s{S_M16}, v{OG}")
    e(f"v_lshlrev_b32 v58, 16, v{OG + 2}")
    e(f"v_and_b32 v59, s{S_M16}, v{OG + 2}")
    e(f"v_lshlrev_b32 v60, 16, v{OG + 4}")
    e(f"v_and_b32 v61, s{S_M16}, v{OG + 4}")
    e(f"v_lshlrev_b32 v62, 16, v{OG + 6}")
    e(f"v_and_b32 v63, s{S_M16}, v{OG + 6}")
    for i in range(4):
        e(f"v_mul_f32 v{56 + i}, v{56 + i}, v110")
    for i in range(4):
        e(f"v_fmac_f32 v{56 + i}, v{60 + i}, v111")
    e("s_nop 0")
    e("v_permlane32_swap_b32 v56, v58")
    e("v_permlane32_swap_b32 v57, v59")
    e("s_nop 0")
    e("v_add_f32 v56, v56, v58")
    e("v_add_f32 v57, v57, v59")
    e("s_nop 1")
    e("v_permlane16_swap_b32 v56, v57")
    e("s_nop 1")
    e("v_add_f32 v56, v56, v57")
    e("v_cvt_pk_bf16_f32 v56, v56, v56")
    e("ds_write_b16 v3, v56")
    e("s_waitcnt lgkmcnt(0)")
    e("s_barrier")
    e(f"s_cmp_lt_u32 s{S_WAVE}, 4")
    e("s_cbranch_scc0 L_final")
    BB = 96
    for t in range(4):
        e(f"ds_read_b128 {vr(BB + 4 * t, 4)}, v12 offset:{64 * t}")
    e("v_cmp_gt_u32 vcc, 4, v2")
    for t in range(4):
        e(f"s_waitcnt lgkmcnt({3 - t})")
        c = "0" if t == 0 else "v[12:15]"
        e(f"v_mfma_f32_16x16x32_bf16 v[12:15], {vr(WF + 4 * t, 4)}, {vr(BB + 4 * t, 4)}, {c}")
    e("s_nop 7")
    e("v_cvt_pk_bf16_f32 v16, v12, v13")
    e("v_cvt_pk_bf16_f32 v18, v14, v15")
    e("s_and_saveexec_b64 s[64:65], vcc")
    e(f"buffer_store_dwordx4 v[16:19], v9, {WSR}, s{T + 14} offen sc1")
    stamp(11)
    stamp_flush()
    e("s_endpgm")

    e("L_final:")
    e(f"s_cmp_eq_u32 s{S_WAVE}, 4")
    e("s_cbranch_scc1 L_fin0")
    stamp_flush()
    e("s_endpgm")
    e("L_fin0:")
    e("v_lshrrev_b32 v3, 1, v0")
    e("v_lshlrev_b32 v3, 10, v3")
    e("v_and_b32 v4, 1, v0")
    e("v_lshl_add_u32 v3, v4, 4, v3")
    e(f"s_lshl_b32 s{T}, s{S_XI}, 15")
    e(f"s_lshl_b32 s{T + 1}, s{S_B}, 6")
    e(f"s_add_u32 s{T}, s{T}, s{T + 1}")
    e(f"s_lshr_b32 s{T + 1}, s{S_SP}, 1")
    e(f"s_lshl_b32 s{T + 1}, s{T + 1}, 8")
    e(f"s_add_u32 s{T}, s{T}, s{T + 1}")
    e(f"s_and_b32 s{T + 1}, s{S_SP}, 1")
    e(f"s_lshl_b32 s{T + 1}, s{T + 1}, 5")
    e(f"s_add_u32 s{T}, s{T}, s{T + 1}")
    e(f"s_add_u32 s{T + 2}, s{T}, {WS_GP}")
    e(f"s_add_u32 s{T + 3}, s{T}, {WS_SP}")
    e(f"s_lshl_b32 s{T + 4}, s{S_B}, 10")
    e(f"s_lshl_b32 s{T + 5}, s{S_XI}, 7")
    e(f"s_add_u32 s{T + 4}, s{T + 4}, s{T + 5}")
    e(f"s_lshl_b32 s{T + 5}, s{S_SP}, 4")
    e(f"s_add_u32 s{T + 4}, s{T + 4}, s{T + 5}")
    e("v_lshlrev_b32 v5, 3, v4")
    srd(R_A, S_X, S_X + 1, 4096)
    srd(R_B, S_OUT, S_OUT + 1, 4096)
    e(f"buffer_load_dwordx2 v[20:21], v5, s[{R_A}:{R_A + 3}], s{T + 4} offen")

    def unpack4(dst, lo, hi):
        e(f"v_lshlrev_b32 v{dst}, 16, v{lo}")
        e(f"v_and_b32 v{dst + 1}, s{S_M16}, v{lo}")
        e(f"v_lshlrev_b32 v{dst + 2}, 16, v{hi}")
        e(f"v_and_b32 v{dst + 3}, s{S_M16}, v{hi}")

    def red32(base):
        e("s_nop 0")
        for rot in (2, 4, 8):
            for i in range(4):
                e(f"v_add_f32_dpp v{base + i}, v{base + i}, v{base + i} row_ror:{rot} row_mask:0xf bank_mask:0xf")
        for sw_ in ("v_permlane16_swap_b32", "v_permlane32_swap_b32"):
            for i in range(4):
                e(f"v_mov_b32 v{base + 4 + i}, v{base + i}")
            e("s_nop 0")
            for i in range(4):
                e(f"{sw_} v{base + 4 + i}, v{base + i}")
            for i in range(4):
                e(f"v_add_f32 v{base + i}, v{base + i}, v{base + 4 + i}")

    e("v_cmp_gt_u32 s[66:67], 14, v0")
    lab = poll_begin("pgp")
    e(f"buffer_load_dwordx4 v[32:35], v3, {WSR}, s{T + 2} offen sc1")
    e("s_waitcnt vmcnt(0)")
    tagcheck([33, 35], 0, 0)
    e("s_and_b64 vcc, vcc, s[66:67]")
    poll_end(lab, tsleep)
    e("v_cndmask_b32 v32, 0, v32, s[66:67]")
    e("v_cndmask_b32 v34, 0, v34, s[66:67]")
    unpack4(24, 32, 34)
    red32(24)
    e("v_cvt_pk_bf16_f32 v8, v24, v25")
    e("v_cvt_pk_bf16_f32 v9, v26, v27")
    unpack4(24, 8, 9)
    e(f"s_mov_b32 s{T + 5}, 0xbfb8aa3b")
    for i in range(4):
        e(f"v_mul_f32 v{28 + i}, s{T + 5}, v{24 + i}")
    for i in range(4):
        e(f"v_exp_f32 v{28 + i}, v{28 + i}")
    e("s_nop 0")
    for i in range(4):
        e(f"v_add_f32 v{28 + i}, 1.0, v{28 + i}")
    for i in range(4):
        e(f"v_rcp_f32 v{28 + i}, v{28 + i}")
    e("s_nop 0")
    for i in range(4):
        e(f"v_mul_f32 v{24 + i}, v{24 + i}, v{28 + i}")
    e("v_cvt_pk_bf16_f32 v8, v24, v25")
    e("v_cvt_pk_bf16_f32 v9, v26, v27")
    unpack4(24, 8, 9)
    unpack4(28, 20, 21)
    stamp(10)
    lab = poll_begin("psp")
    e(f"buffer_load_dwordx4 v[32:35], v3, {WSR}, s{T + 3} offen sc1")
    e("s_waitcnt vmcnt(0)")
    tagcheck([33, 35], 0, 0)
    poll_end(lab, tsleep)
    unpack4(40, 32, 34)
    red32(40)
    e("v_cvt_pk_bf16_f32 v8, v40, v41")
    e("v_cvt_pk_bf16_f32 v9, v42, v43")
    unpack4(40, 8, 9)
    for i in range(4):
        e(f"v_mul_f32 v{40 + i}, v{40 + i}, v{24 + i}")
    e("v_cvt_pk_bf16_f32 v8, v40, v41")
    e("v_cvt_pk_bf16_f32 v9, v42, v43")
    unpack4(40, 8, 9)
    for i in range(4):
        e(f"v_add_f32 v{40 + i}, v{40 + i}, v{28 + i}")
    e("v_cvt_pk_bf16_f32 v8, v40, v41")
    e("v_cvt_pk_bf16_f32 v9, v42, v43")
    e("s_mov_b64 exec, 3")
    e(f"buffer_store_dwordx2 v[8:9], v5, s[{R_B}:{R_B + 3}], s{T + 4} offen")
    e("s_cmp_eq_u32 s2, 0")
    e("s_cbranch_scc0 L_noep")
    e("s_mov_b64 exec, 1")
    e(f"v_mov_b32 v6, {WS_E}")
    e(f"v_mov_b32 v7, s{S_TAG}")
    e(f"buffer_store_dword v7, v6, {WSR}, 0 offen")
    e("L_noep:")
    stamp(11)
    stamp_flush()
    e("L_end:")
    e("s_endpgm")
    e(f".fill ({20480 if diag else 16384} - (. - {KN}_kernel)) / 4, 4, 0xbf800000")
    e('.section .rodata,"a"')
    e(".p2align 6")
    e(f".amdhsa_kernel {KN}_kernel")
    e("  .amdhsa_next_free_vgpr 256")
    e("  .amdhsa_next_free_sgpr 102")
    e("  .amdhsa_accum_offset 256")
    e("  .amdhsa_group_segment_fixed_size 0")
    e("  .amdhsa_kernarg_size 88")
    e("  .amdhsa_user_sgpr_count 2")
    e("  .amdhsa_user_sgpr_kernarg_segment_ptr 1")
    e("  .amdhsa_system_sgpr_workgroup_id_x 1")
    e(".end_amdhsa_kernel")
    return e.text()


if __name__ == "__main__":
    import argparse
    ap = argparse.ArgumentParser()
    ap.add_argument("-o", default="k.s")
    ap.add_argument("--diag", action="store_true")
    ap.add_argument("--early", action="store_true")
    ap.add_argument("--thr", type=int, default=6)
    ap.add_argument("--kpol", default="nt")
    ap.add_argument("--wpol", default="nt")
    ap.add_argument("--hint", action="store_true")
    ap.add_argument("--thr2", type=int, default=10)
    ap.add_argument("--nshallow", type=int, default=4)
    ap.add_argument("--light", action="store_true")
    ap.add_argument("--xp", default="")
    ap.add_argument("--tsleep", type=int, default=1)
    a = ap.parse_args()
    open(a.o, "w").write(gen(diag=a.diag, thr=a.thr, kpol=a.kpol, wpol=a.wpol, early=a.early, hint=a.hint, thr2=a.thr2, nshallow=a.nshallow, tsleep=a.tsleep, light=a.light, xp=tuple(a.xp.split(','))))
```

```python
import sys

KN = "recurrent_scan__sliding_block_cached__dense_activation_relu__decode"

WS_E = 0x00000
WS_LSE = 0x01000
WS_Q = 0x10000
WS_H = 0x90000
WS_OP = 0xD0000
WS_SP = 0x150000
WS_GP = 0x190000
WS_SIZE = 0x1D0000
WS_STAMP = 0x200000

L_K = 0
L_RED = 0
L_LSUM = 8192
L_OBF = 10240
L_T0 = 131072
L_QB = L_T0 + 24576
L_MAX = L_T0 + 25600
L_SCALE = L_T0 + 26624
L_HB = L_T0 + 28672
L_FIN = 12288
L_W2B = 16384
L_WO = 32768
LDS_BYTES = 163840

POLL_LIMIT = 200000
EPOCH_STEP = 0x9E3779B9

HEADER = """; Kernarg layout for this problem (88 bytes, ptrs only, base s[0:1]):
;
; Workgroups hand data to each other through d_ws in 8-byte {payload, tag} granules; the tag is derived from an epoch
"""


class Asm:
    def __init__(self):
        self.L = []
        self.nlab = 0

    def __call__(self, s):
        for line in s.split("\n"):
            line = line.strip()
            if line:
                self.L.append(line)

    def label(self, base):
        self.nlab += 1
        return f"L_{base}_{self.nlab}"

    def text(self):
        out = []
        for l in self.L:
            if l.endswith(":") or l.startswith(".") or l.startswith(";"):
                out.append(l)
            else:
                out.append("    " + l)
        return "\n".join(out) + "\n"


def vr(a, n=1):
    return f"v{a}" if n == 1 else f"v[{a}:{a + n - 1}]"


def gen(diag=False, thr=6, kpol="nt", wpol="nt", early=False, hint=False, tsleep=1, thr2=10, light=False, nshallow=4, xp=(), tailst=False, spld='sc1', spst='sc1'):
    e = Asm()
    PF2 = True
    S_X, S_K, S_V, S_WQ, S_WO, S_BX, S_W1, S_W2 = 4, 6, 8, 10, 12, 14, 16, 18
    S_OUT, S_DBG, S_WS = 20, 22, 24
    S_XI, S_Y, S_WAVE, S_B, S_SP, S_TAG = 26, 27, 28, 29, 30, 31
    R_A, R_B, R_WS, R_C, R_D = 32, 36, 40, 44, 48
    T = 52
    S_STAMP = 72
    S_M16, S_SC, S_L2E, S_PLO, S_PHI = 96, 97, 98, 99, 100
    S_RES = 48
    S_SAME = 101
    WSR = f"s[{R_WS}:{R_WS + 3}]"

    def estamp(k):
        if diag and early:
            e(f"s_memrealtime s[{S_STAMP + 2 * k}:{S_STAMP + 2 * k + 1}]")
            e("s_waitcnt lgkmcnt(0)")

    def tstamp(k):
        if diag and tailst:
            e(f"s_memrealtime s[{S_STAMP + 2 * k}:{S_STAMP + 2 * k + 1}]")
            e("s_waitcnt lgkmcnt(0)")

    def stamp(k):
        if diag and tailst:
            if k == 11:
                tstamp(11)
            return
        if diag and not (early and k != 11) and not (light and k not in (8, 10, 11)):
            assert k < 12
            e(f"s_memrealtime s[{S_STAMP + 2 * k}:{S_STAMP + 2 * k + 1}]")
            e("s_waitcnt lgkmcnt(0)")

    def stamp_flush():
        if diag:
            e("s_waitcnt vmcnt(0) lgkmcnt(0)")
            e(f"s_lshl_b32 s{T}, s2, 3")
            e(f"s_add_u32 s{T}, s{T}, s{S_WAVE}")
            e(f"s_lshl_b32 s{T}, s{T}, 7")
            e(f"s_add_u32 s{T}, s{T}, {WS_STAMP}")
            e("s_mov_b64 exec, 1")
            e(f"v_mov_b32 v1, s{T}")
            for k in range(12):
                e(f"v_mov_b32 v2, s{S_STAMP + 2 * k}")
                e(f"v_mov_b32 v3, s{S_STAMP + 2 * k + 1}")
                e(f"global_store_dwordx2 v1, v[2:3], s[{S_WS}:{S_WS + 1}] offset:{8 * k}")
            e("s_waitcnt vmcnt(0)")

    def karg2():
        e("s_load_dwordx4 s[20:23], s[0:1], 64")
        e("s_load_dwordx2 s[24:25], s[0:1], 80")

    def epoch_load():
        if "wsend" in xp:
            e(f"s_add_u32 s{S_WS}, s{S_WS}, {512 * 1024 * 1024 - 4 * 1024 * 1024}")
            e(f"s_addc_u32 s{S_WS + 1}, s{S_WS + 1}, 0")
        e(f"s_load_dword s{S_TAG}, s[{S_WS}:{S_WS + 1}], {WS_E}")

    def epoch_tag():
        e(f"s_add_u32 s{S_TAG}, s{S_TAG}, {EPOCH_STEP:#x}")

    def srd(r, lo, hi, size):
        if lo != r:
            e(f"s_mov_b32 s{r}, s{lo}")
            e(f"s_mov_b32 s{r + 1}, s{hi}")
        e(f"s_mov_b32 s{r + 2}, {size}")
        e(f"s_mov_b32 s{r + 3}, 0x20000")

    def srd_off(r, base, soff, size):
        e(f"s_add_u32 s{r}, s{base}, s{soff}")
        e(f"s_addc_u32 s{r + 1}, s{base + 1}, 0")
        e(f"s_mov_b32 s{r + 2}, {size}")
        e(f"s_mov_b32 s{r + 3}, 0x20000")

    def poll_begin(name):
        lab = e.label(name)
        e(f"s_mov_b32 s{T + 17}, {POLL_LIMIT}")
        e(f"{lab}:")
        return lab

    def poll_end(lab, sleep=1, masked=True):
        done = lab + "_d"
        e("s_cmp_eq_u64 vcc, 0")
        e(f"s_cbranch_scc1 {done}")
        e(f"s_sub_u32 s{T + 17}, s{T + 17}, 1")
        e(f"s_cbranch_scc1 {done}")
        if masked and "nomask" not in xp:
            e("s_mov_b64 exec, vcc")
        if sleep:
            e(f"s_sleep {sleep}")
        e(f"s_branch {lab}")
        e(f"{done}:")
        if masked:
            e("s_mov_b64 exec, -1")

    def tagcheck(tags, t0, t1):
        if len(tags) == 1:
            e(f"v_cmp_ne_u32 vcc, s{S_TAG}, v{tags[0]}")
            return
        if len(tags) == 2:
            e(f"v_cmp_ne_u32 s[{T + 12}:{T + 13}], s{S_TAG}, v{tags[0]}")
            e(f"v_cmp_ne_u32 vcc, s{S_TAG}, v{tags[1]}")
            e(f"s_or_b64 vcc, vcc, s[{T + 12}:{T + 13}]")
            return
        for op, acc in (("max", t0), ("min", t1)):
            rest = list(tags)
            if len(rest) >= 3:
                e(f"v_{op}3_u32 v{acc}, v{rest[0]}, v{rest[1]}, v{rest[2]}")
                rest = rest[3:]
            while len(rest) >= 2:
                e(f"v_{op}3_u32 v{acc}, v{acc}, v{rest[0]}, v{rest[1]}")
                rest = rest[2:]
            if rest:
                e(f"v_{op}_u32 v{acc}, v{acc}, v{rest[0]}")
        e(f"v_cmp_ne_u32 s[{T + 12}:{T + 13}], s{S_TAG}, v{t0}")
        e(f"v_cmp_ne_u32 vcc, s{S_TAG}, v{t1}")
        e(f"s_or_b64 vcc, vcc, s[{T + 12}:{T + 13}]")

    def xrow_reduce(op, r, t):
        e(f"v_mov_b32 v{t}, v{r}")
        e("s_nop 1")
        e(f"v_permlane32_swap_b32 v{t}, v{r}")
        e("s_nop 1")
        e(f"{op} v{r}, v{t}, v{r}")
        e(f"v_mov_b32 v{t}, v{r}")
        e("s_nop 1")
        e(f"v_permlane16_swap_b32 v{t}, v{r}")
        e("s_nop 1")
        e(f"{op} v{r}, v{t}, v{r}")

    LA, LV = 104, 106

    def lse_addr():
        e(f"s_lshl_b32 s{T + 15}, s{S_XI}, 12")
        e(f"s_lshr_b32 s{T + 16}, s{S_WAVE}, 1")
        e(f"s_lshl_b32 s{T + 16}, s{T + 16}, 10")
        e(f"s_add_u32 s{T + 15}, s{T + 15}, s{T + 16}")
        e(f"s_lshl_b32 s{T + 16}, s{S_B}, 3")
        e(f"s_add_u32 s{T + 15}, s{T + 15}, s{T + 16}")
        e(f"s_add_u32 s{T + 15}, s{T + 15}, {WS_LSE}")
        e(f"v_lshlrev_b32 v{LA}, 7, v1")

    def lse_loads():
        e(f"buffer_load_dwordx2 v[{LV}:{LV + 1}], v{LA}, {WSR}, s{T + 15} offen sc1")
        e(f"buffer_load_dwordx2 v[{LV + 2}:{LV + 3}], v{LA}, {WSR}, s{T + 15} offen offset:512 sc1")

    def weights(waited=False):
        lab = e.label("pw")
        e(f"s_mov_b32 s{T + 17}, {POLL_LIMIT}")
        if waited:
            e(f"s_branch {lab}_c")
        e(f"{lab}:")
        e("s_waitcnt vmcnt(0)")
        if waited:
            e(f"{lab}_c:")
        tagcheck([LV + 1, LV + 3], 0, 0)
        e("s_cmp_eq_u64 vcc, 0")
        e(f"s_cbranch_scc1 {lab}_d")
        e(f"s_sub_u32 s{T + 17}, s{T + 17}, 1")
        e(f"s_cbranch_scc1 {lab}_d")
        e("s_mov_b64 exec, vcc")
        e("s_sleep 2")
        lse_loads()
        e(f"s_branch {lab}")
        e(f"{lab}_d:")
        e("s_mov_b64 exec, -1")
        e(f"v_max_f32 v110, v{LV}, v{LV + 2}")
        xrow_reduce("v_max_f32", 110, 111)
        e(f"v_sub_f32 v{LV}, v{LV}, v110")
        e(f"v_sub_f32 v{LV + 2}, v{LV + 2}, v110")
        e(f"v_exp_f32 v{LV}, v{LV}")
        e(f"v_exp_f32 v{LV + 2}, v{LV + 2}")
        e("s_nop 0")
        e(f"v_add_f32 v110, v{LV}, v{LV + 2}")
        xrow_reduce("v_add_f32", 110, 111)
        e("v_rcp_f32 v110, v110")
        e("s_nop 0")
        e(f"v_mul_f32 v111, v{LV + 2}, v110")
        e(f"v_mul_f32 v110, v{LV}, v110")

    for l in HEADER.strip("\n").split("\n"):
        e.L.append(l)
    e.L.append(f"; @launch grid=(256,1,1) block=(512,1,1) lds={LDS_BYTES}")
    e('.amdgcn_target "amdgcn-amd-amdhsa--gfx950"')
    e(".text")
    e(f".globl {KN}_kernel")
    e(".p2align 8")
    e(f".type {KN}_kernel,@function")
    e(f"{KN}_kernel:")
    if diag:
        e(f"s_memrealtime s[{S_STAMP}:{S_STAMP + 1}]")
    e("s_cmp_ge_u32 s2, 256")
    e("s_cbranch_scc1 L_end")
    e("s_load_dwordx16 s[4:19], s[0:1], 0")
    e("v_lshrrev_b32 v1, 6, v0")
    e(f"s_and_b32 s{S_XI}, s2, 7")
    e(f"s_lshr_b32 s{S_Y}, s2, 3")
    e(f"v_readfirstlane_b32 s{S_WAVE}, v1")
    e("s_getpc_b64 s[60:61]")
    e("L_pc:")
    e(f"s_sub_u32 s60, s60, L_pc-{KN}_kernel")
    e("s_subb_u32 s61, s61, 0")
    e("v_lshlrev_b32 v1, 4, v0")
    e("global_load_dword v255, v1, s[60:61]")
    e("v_add_u32 v1, 0x2000, v1")
    e("global_load_dword v255, v1, s[60:61]")
    e("v_and_b32 v0, 63, v0")
    e(f"s_lshr_b32 s{S_B}, s{S_Y}, 3")
    e(f"s_and_b32 s{S_SP}, s{S_Y}, 7")
    e("v_lshrrev_b32 v1, 4, v0")
    e("v_and_b32 v2, 15, v0")
    e(f"s_cmp_lt_u32 s{S_WAVE}, 4")
    e("s_cbranch_scc1 L_H")

    S_L, S_KH = 70, 71

    def roles():
        e(f"s_mov_b32 s{S_M16}, 0xffff0000")
        e("v_mov_b32 v9, 0")
        e(f"s_sub_u32 s{S_L}, s{S_Y}, 16")
        e(f"s_lshl_b32 s{S_L}, s{S_L}, 3")
        e(f"s_add_u32 s{S_L}, s{S_L}, s{S_XI}")
        e(f"s_cmp_lt_u32 s{S_Y}, 16")
        e(f"s_cselect_b32 s{S_KH}, s{S_B}, s{S_L}")
        e(f"s_and_b32 s{S_KH}, s{S_KH}, 1")
        e(f"s_lshr_b32 s{S_L}, s{S_L}, 1")

    SW = T
    ROT = T + 1
    VK = 4
    VV = 8
    e(f"s_sub_u32 s{SW}, s{S_WAVE}, 4")
    e(f"s_lshl_b32 s{T + 2}, s{S_B}, 25")
    e(f"s_lshl_b32 s{T + 3}, s{S_XI}, 22")
    e(f"s_add_u32 s{T + 2}, s{T + 2}, s{T + 3}")
    e(f"s_lshl_b32 s{T + 3}, s{S_SP}, 17")
    e(f"s_add_u32 s{T + 2}, s{T + 2}, s{T + 3}")
    e(f"s_add_u32 s{T + 2}, s{T + 2}, 0x300000")
    e(f"s_add_u32 s{ROT}, s{S_XI}, s{S_Y}")
    e(f"s_add_u32 s{ROT}, s{ROT}, s{SW}")
    e(f"s_and_b32 s{ROT}, s{ROT}, 31")
    e(f"s_lshl_b32 s{ROT}, s{ROT}, 12")
    e("v_lshlrev_b32 v3, 2, v1")
    e("v_xor_b32 v3, v2, v3")
    e("v_lshlrev_b32 v3, 4, v3")
    e(f"v_lshl_add_u32 v{VK}, v1, 8, v3")
    e(f"v_xor_b32 v{VK + 1}, 16, v{VK}")
    e(f"v_xor_b32 v{VK + 2}, 32, v{VK}")
    e(f"v_xor_b32 v{VK + 3}, 48, v{VK}")
    e(f"s_lshl_b32 s{T + 4}, s{SW}, 15")
    e(f"s_mov_b32 m0, s{T + 4}")
    e(f"s_mov_b32 s{R_A + 2}, 0x20000")
    e(f"s_mov_b32 s{R_A + 3}, 0x20000")
    estamp(1)
    e("s_waitcnt lgkmcnt(0)")
    estamp(2)
    e(f"s_add_u32 s{R_A}, s{S_K}, s{T + 2}")
    e(f"s_addc_u32 s{R_A + 1}, s{S_K + 1}, 0")

    def ktile(th, off=None):
        so = f"s{ROT}" if off is None else f"s{off}"
        for q in range(4):
            e(f"buffer_load_dwordx4 v{VK + q}, s[{R_A}:{R_A + 3}], {so} offen offset:{q * 1024} {kpol} lds")
            if th is not None:
                e(f"s_waitcnt vmcnt({th})")

    def knext():
        e(f"s_add_u32 s{T + 5}, s{T + 5}, 16384")
        e(f"s_and_b32 s{T + 5}, s{T + 5}, 0x1ffff")
        e(f"s_add_u32 s{T + 4}, s{T + 4}, 4096")
        e(f"s_mov_b32 m0, s{T + 4}")

    ktile(None)
    karg2()
    roles()
    e(f"s_sub_u32 s{T + 14}, s{S_Y}, 23")
    e(f"s_lshl_b32 s{T + 8}, s{S_KH}, 2")
    e(f"s_add_u32 s{T + 8}, s{T + 8}, s{SW}")
    e(f"s_lshl_b32 s{T + 8}, s{T + 8}, 6")
    e(f"s_mul_i32 s{T + 9}, s{SW}, 48")
    e(f"s_lshl_b32 s{T + 10}, s{T + 14}, 8")
    e(f"s_add_u32 s{T + 9}, s{T + 9}, s{T + 10}")
    e(f"s_cmp_lt_u32 s{T + 14}, 7")
    e(f"s_cselect_b32 s{T + 8}, s{T + 9}, s{T + 8}")
    e(f"s_cselect_b32 s{T + 15}, 1, 0")
    e(f"s_lshl_b32 s{T + 12}, s{SW}, 13")
    e(f"s_cmp_eq_u32 s{T + 15}, 1")
    e(f"s_mul_i32 s{T + 11}, s{SW}, 6144")
    e(f"s_cselect_b32 s{T + 11}, s{T + 11}, s{T + 12}")
    e(f"s_add_u32 s{T + 11}, s{T + 11}, {L_T0}")
    e(f"s_lshl_b32 s{T + 9}, s{S_XI}, 10")
    if "cgrot" in xp:
        e(f"s_add_u32 s{T + 10}, s{S_SP}, 2")
        e(f"s_and_b32 s{T + 10}, s{T + 10}, 7")
        e(f"s_lshl_b32 s{T + 10}, s{T + 10}, 7")
    else:
        e(f"s_lshl_b32 s{T + 10}, s{S_SP}, 7")
    e(f"s_add_u32 s{T + 9}, s{T + 9}, s{T + 10}")
    e(f"s_mov_b32 s{T + 10}, 8192")
    e(f"s_mov_b32 s{T + 12}, {512 * 8192}")
    e(f"s_mov_b32 s{R_C}, s{S_WQ}")
    e(f"s_mov_b32 s{R_C + 1}, s{S_WQ + 1}")
    e(f"s_cmp_lt_u32 s{S_Y}, 16")
    e("s_cbranch_scc1 L_et")
    e(f"s_lshl_b32 s{T + 9}, s{S_L}, 7")
    e(f"s_mov_b32 s{T + 10}, 3584")
    e(f"s_mov_b32 s{T + 12}, {512 * 3584}")
    e(f"s_mov_b32 s{R_C}, s{S_W1}")
    e(f"s_mov_b32 s{R_C + 1}, s{S_W1 + 1}")
    e(f"s_cmp_lt_u32 s{S_Y}, 23")
    e("s_cbranch_scc1 L_et")
    e(f"s_lshl_b32 s{T + 9}, s{S_XI}, 7")
    e(f"s_mov_b32 s{T + 10}, 1024")
    e(f"s_mov_b32 s{R_C}, s{S_W2}")
    e(f"s_mov_b32 s{R_C + 1}, s{S_W2 + 1}")
    e(f"s_cmp_eq_u32 s{T + 15}, 1")
    e(f"s_cselect_b32 s{T + 12}, {1792 * 1024}, 0")
    e("L_et:")
    e(f"s_mul_i32 s{T + 8}, s{T + 8}, s{T + 10}")
    e(f"s_add_u32 s{T + 8}, s{T + 8}, s{T + 9}")
    e(f"s_lshl_b32 s{T + 9}, s{T + 10}, 3")
    e(f"s_mov_b32 s{R_C + 2}, s{T + 12}")
    e(f"s_mov_b32 s{R_C + 3}, 0x20000")
    e("v_lshrrev_b32 v9, 3, v0")
    e(f"v_mul_lo_u32 v9, v9, s{T + 10}")
    e("v_and_b32 v10, 7, v0")
    e("v_lshl_add_u32 v11, v10, 4, v9")
    for ii in range(8):
        if ii == 6:
            e(f"s_cmp_eq_u32 s{T + 15}, 1")
            e("s_cbranch_scc1 L_et2")
        e(f"s_mov_b32 m0, s{T + 11}")
        e(f"s_add_u32 s{T + 11}, s{T + 11}, 1024")
        e(f"buffer_load_dwordx4 v11, s[{R_C}:{R_C + 3}], s{T + 8} offen {wpol} lds")
        e(f"s_add_u32 s{T + 8}, s{T + 8}, s{T + 9}")
    e("L_et2:")
    srd_off(R_B, S_V, T + 2, 0x20000)
    e(f"v_lshlrev_b32 v{VV}, 4, v0")
    e(f"s_mov_b32 s{T + 5}, s{ROT}")
    knext()
    ktile(thr + 2, T + 5)
    knext()
    ktile(thr + 2, T + 5)
    knext()
    e("s_waitcnt vmcnt(8)")
    e("s_barrier")
    estamp(3)
    e(f"s_mov_b32 s{T + 6}, {nshallow - 2}")
    e("L_kloop:")
    ktile(thr, T + 5)
    knext()
    e(f"s_sub_u32 s{T + 6}, s{T + 6}, 1")
    e(f"s_cmp_lg_u32 s{T + 6}, 0")
    e("s_cbranch_scc1 L_kloop")
    estamp(4)
    e(f"s_mov_b32 s{T + 6}, {7 - nshallow}")
    e("L_kloop2:")
    ktile(thr2, T + 5)
    knext()
    e(f"s_sub_u32 s{T + 6}, s{T + 6}, 1")
    e(f"s_cmp_lg_u32 s{T + 6}, 0")
    e("s_cbranch_scc1 L_kloop2")
    stamp(1)
    e("s_waitcnt lgkmcnt(0)")
    epoch_load()

    VB = 128

    def vtile_off(t):
        e(f"s_add_u32 s{T + 7}, s{ROT}, {t * 16384}")
        e(f"s_and_b32 s{T + 7}, s{T + 7}, 0x1ffff")

    def vload(u, k0, k1, throttle=None):
        for k in range(k0, k1):
            Tt, i = k >> 2, k & 3
            if i == 0 or k == k0:
                vtile_off(2 * u + Tt)
            r = VB + u * 32 + k * 4
            e(f"buffer_load_dwordx4 {vr(r, 4)}, v{VV}, s[{R_B}:{R_B + 3}], s{T + 7} offen offset:{i * 1024} {kpol}")
            if throttle is not None:
                e(f"s_waitcnt vmcnt({throttle})")

    vload(0, 0, 8, thr2)
    e(f"s_mov_b32 s{S_SC}, 0x3db504f3")
    e(f"s_mov_b32 s{S_L2E}, 0x3fb8aa3b")
    e(f"s_mov_b32 s{S_PLO}, 0x05040100")
    e(f"s_mov_b32 s{S_PHI}, 0x07060302")
    VKA = 9
    e("v_and_b32 v3, 3, v2")
    e("v_lshlrev_b32 v3, 2, v3")
    e("v_lshrrev_b32 v13, 2, v2")
    e("v_add_u32 v3, v3, v13")
    e("v_lshlrev_b32 v3, 8, v3")
    e("v_xor_b32 v13, v1, v2")
    e("v_lshl_add_u32 v3, v13, 4, v3")
    e(f"s_lshl_b32 s{T + 4}, s{SW}, 15")
    e(f"v_add_u32 v{VKA}, s{T + 4}, v3")
    e(f"v_xor_b32 v{VKA + 1}, 64, v{VKA}")
    e(f"v_xor_b32 v{VKA + 2}, 0x80, v{VKA}")
    e(f"v_xor_b32 v{VKA + 3}, 0xc0, v{VKA}")
    e("v_lshrrev_b32 v13, 2, v2")
    e("v_lshlrev_b32 v13, 8, v13")
    e("v_lshl_add_u32 v13, v1, 4, v13")
    e(f"v_add_u32 v13, {L_QB}, v13")
    e(f"s_lshl_b32 s{T + 4}, s{SW}, 8")
    e(f"s_add_u32 s{T + 4}, s{T + 4}, {L_MAX}")
    e("v_lshlrev_b32 v14, 2, v0")
    e(f"v_add_u32 v15, s{T + 4}, v14")
    e(f"v_add_u32 v14, {L_MAX}, v14")
    e("s_waitcnt vmcnt(8) lgkmcnt(0)")
    epoch_tag()
    stamp(2)
    e("s_barrier")
    stamp(3)
    QF = 16
    KF = 32
    SS = 64
    for s in range(4):
        e(f"ds_read_b128 {vr(QF + 4 * s, 4)}, v13 offset:{64 * s}")

    def kread(t):
        for s in range(4):
            e(f"ds_read_b128 {vr(KF + 16 * (t & 1) + 4 * s, 4)}, v{VKA + s} offset:{t * 4096}")

    kread(0)
    for t in range(8):
        vload(1, t, t + 1)
        if t < 7:
            kread(t + 1)
            e("s_waitcnt lgkmcnt(4)")
        else:
            e("s_waitcnt lgkmcnt(0)")
        for s in range(4):
            c = "0" if s == 0 else vr(SS + 4 * t, 4)
            e(f"v_mfma_f32_16x16x32_bf16 {vr(SS + 4 * t, 4)}, {vr(KF + 16 * (t & 1) + 4 * s, 4)}, {vr(QF + 4 * s, 4)}, {c}")
    stamp(4)
    TMP = 32
    e("s_nop 7")
    for p in range(16):
        a = SS + 2 * p
        t0 = TMP + (p & 1)
        if p % 4 == 1:
            vload(2, p // 4, p // 4 + 1)
        e(f"v_cvt_pk_bf16_f32 v{t0}, v{a}, v{a + 1}")
        e(f"v_lshlrev_b32 v{a}, 16, v{t0}")
        e(f"v_and_b32 v{a + 1}, s{S_M16}, v{t0}")
        e(f"v_mul_f32 v{a}, s{S_SC}, v{a}")
        e(f"v_mul_f32 v{a + 1}, s{S_SC}, v{a + 1}")
        e(f"v_cvt_pk_bf16_f32 v{t0}, v{a}, v{a + 1}")
        e(f"v_lshlrev_b32 v{a}, 16, v{t0}")
        e(f"v_and_b32 v{a + 1}, s{S_M16}, v{t0}")
    MX = 34
    e(f"v_max3_f32 v{MX}, v{SS}, v{SS + 1}, v{SS + 2}")
    for k in range(3, 31, 2):
        e(f"v_max3_f32 v{MX}, v{MX}, v{SS + k}, v{SS + k + 1}")
    e(f"v_max_f32 v{MX}, v{MX}, v{SS + 31}")
    xrow_reduce("v_max_f32", MX, 35)
    e(f"ds_write_b32 v15, v{MX}")
    e("s_waitcnt lgkmcnt(0)")
    stamp(5)
    e("s_barrier")
    e(f"ds_read2st64_b32 v[36:37], v14 offset0:0 offset1:1")
    e(f"ds_read2st64_b32 v[38:39], v14 offset0:2 offset1:3")
    e("s_waitcnt lgkmcnt(0)")
    e(f"v_max3_f32 v{MX}, v36, v37, v38")
    e(f"v_max_f32 v{MX}, v{MX}, v39")
    MC = 35
    e(f"v_mul_f32 v{MC}, s{S_L2E}, v{MX}")
    PP = 40
    e(f"s_sub_u32 s{T + 10}, s{S_Y}, 23")
    e(f"s_lshl_b32 s{T + 8}, s{T + 10}, 18")
    e(f"s_lshl_b32 s{T + 9}, s{S_XI}, 7")
    e(f"s_add_u32 s{T + 8}, s{T + 8}, s{T + 9}")
    e(f"s_lshl_b32 s{T + 9}, s{SW}, 14")
    e(f"s_add_u32 s{T + 8}, s{T + 8}, s{T + 9}")
    e(f"s_add_u32 s{T + 8}, s{T + 8}, {192 * 1024}")
    e(f"s_cmp_lt_u32 s{T + 10}, 7")
    e(f"s_cselect_b32 s{T + 10}, {1792 * 1024}, 0")
    srd(R_D, S_W2, S_W2 + 1, f"s{T + 10}")
    e(f"s_lshl_b32 s{T + 9}, s{SW}, 11")
    e(f"s_add_u32 s{T + 9}, s{T + 9}, {L_W2B}")
    e("v_lshrrev_b32 v3, 3, v0")
    e("v_lshlrev_b32 v3, 10, v3")
    e("v_and_b32 v4, 7, v0")
    e("v_lshl_add_u32 v3, v4, 4, v3")
    if "wlin" in xp:
        e("v_lshlrev_b32 v3, 4, v0")
        e(f"s_lshl_b32 s{T + 8}, s2, 14")
        e(f"s_and_b32 s{T + 8}, s{T + 8}, 0xfffff")

    def w2load():
        e(f"s_mov_b32 m0, s{T + 9}")
        e(f"s_add_u32 s{T + 9}, s{T + 9}, 1024")
        e(f"buffer_load_dwordx4 v3, s[{R_D}:{R_D + 3}], s{T + 8} offen {wpol} lds")
        e(f"s_add_u32 s{T + 8}, s{T + 8}, {1024 if 'wlin' in xp else 8192}")

    for p in range(16):
        a = SS + 2 * p
        e(f"v_fma_f32 v{a}, v{a}, s{S_L2E}, -v{MC}")
        e(f"v_fma_f32 v{a + 1}, v{a + 1}, s{S_L2E}, -v{MC}")
        e(f"v_exp_f32 v{a}, v{a}")
        e(f"v_exp_f32 v{a + 1}, v{a + 1}")
        if p > 0:
            e(f"v_cvt_pk_bf16_f32 v{PP + p - 1}, v{a - 2}, v{a - 1}")
        if p in (2, 5):
            w2load()
        if p >= 8 and p % 2 == 1:
            vload(2, 4 + (p - 8) // 2, 5 + (p - 8) // 2)
    ACC = 64
    ACL = 96
    ONE = 100
    PT = 16
    for k in range(4):
        e(f"v_mov_b32 v{ONE + k}, 0x3f803f80")
    e(f"v_cvt_pk_bf16_f32 v{PP + 15}, v{SS + 30}, v{SS + 31}")
    e(f"s_lshl_b32 s{T + 8}, s{SW}, 8")
    e(f"s_add_u32 s{T + 8}, s{T + 8}, {L_LSUM}")
    e("v_lshlrev_b32 v6, 2, v0")
    e(f"v_add_u32 v5, s{T + 8}, v6")
    for u in range(4):
        c = "0" if u == 0 else vr(ACL, 4)
        e(f"v_mfma_f32_16x16x32_bf16 {vr(ACL, 4)}, {vr(PP + 4 * u, 4)}, {vr(ONE, 4)}, {c}")
    e("s_nop 7")
    e(f"ds_write_b32 v5, v{ACL}")
    e("s_waitcnt lgkmcnt(0)")
    stamp(6)
    e("s_barrier")
    e(f"s_lshl_b32 s{T + 12}, s{S_B}, 10")
    e(f"s_lshl_b32 s{T + 13}, s{S_XI}, 7")
    e(f"s_add_u32 s{T + 12}, s{T + 12}, s{T + 13}")
    e(f"s_lshl_b32 s{T + 13}, s{S_SP}, 4")
    e(f"s_add_u32 s{T + 12}, s{T + 12}, s{T + 13}")
    e(f"s_load_dwordx4 s[{S_RES}:{S_RES + 3}], s[{S_X}:{S_X + 1}], s{T + 12}")

    def pv(u, loads=None):
        first = u == 0
        A = vr(PP + 4 * u, 4)

        def perms(w):
            base = PT + 8 * (w & 1)
            for d in range(4):
                a = VB + u * 32 + (2 * d) * 4 + w
                b = VB + u * 32 + (2 * d + 1) * 4 + w
                e(f"v_perm_b32 v{base + d}, v{b}, v{a}, s{S_PLO}")
            for d in range(4):
                a = VB + u * 32 + (2 * d) * 4 + w
                b = VB + u * 32 + (2 * d + 1) * 4 + w
                e(f"v_perm_b32 v{base + 4 + d}, v{b}, v{a}, s{S_PHI}")

        def mf(w):
            base = PT + 8 * (w & 1)
            for hi in range(2):
                j = 2 * w + hi
                c = "0" if first else vr(ACC + 4 * j, 4)
                e(f"v_mfma_f32_16x16x32_bf16 {vr(ACC + 4 * j, 4)}, {A}, {vr(base + 4 * hi, 4)}, {c}")

        if loads:
            loads(0)
        perms(0)
        for w in range(1, 4):
            if loads:
                loads(w)
            perms(w)
            mf(w - 1)
        e("s_nop 1")
        mf(3)

    e("s_waitcnt vmcnt(18)")
    pv(0, lambda w: vload(3, w, w + 1))
    e("s_waitcnt vmcnt(14)")
    pv(1, lambda w: vload(3, 4 + w, 5 + w))
    e(f"s_lshl_b32 s{T + 8}, s{S_XI}, 2")
    e(f"s_add_u32 s{T + 8}, s{T + 8}, s{S_B}")
    e(f"s_lshl_b32 s{T + 8}, s{T + 8}, 17")
    e(f"s_lshl_b32 s{T + 9}, s{S_SP}, 7")
    e(f"s_add_u32 s{T + 8}, s{T + 8}, s{T + 9}")
    e(f"s_lshl_b32 s{T + 9}, s{SW}, 15")
    e(f"s_add_u32 s{T + 8}, s{T + 8}, s{T + 9}")
    srd(R_C, S_WO, S_WO + 1, 4096 * 1024)
    e(f"s_lshl_b32 s{T + 9}, s{SW}, 12")
    e(f"s_add_u32 s{T + 9}, s{T + 9}, {L_WO}")
    if "wlin" in xp:
        e(f"s_lshl_b32 s{T + 8}, s2, 14")
        e(f"s_lshl_b32 s{T + 10}, s{SW}, 12")
        e(f"s_add_u32 s{T + 8}, s{T + 8}, s{T + 10}")
    for ii in range(4):
        e(f"s_mov_b32 m0, s{T + 9}")
        e(f"s_add_u32 s{T + 9}, s{T + 9}, 1024")
        e(f"buffer_load_dwordx4 v3, s[{R_C}:{R_C + 3}], s{T + 8} offen {wpol} lds")
        e(f"s_add_u32 s{T + 8}, s{T + 8}, {1024 if 'wlin' in xp else 8192}")
    srd(R_WS, S_WS, S_WS + 1, WS_SIZE)
    lse_addr()
    lse_loads()
    e("s_waitcnt vmcnt(14)")
    e("s_barrier")
    pv(2)
    e(f"s_lshl_b32 s{T + 8}, s{SW}, 11")
    e("v_lshlrev_b32 v3, 5, v0")
    e(f"v_add_u32 v4, s{T + 8}, v3")
    e("s_waitcnt vmcnt(6)")
    stamp(7)
    pv(3)
    e("s_nop 1")
    for j in range(8):
        e(f"v_mov_b32 v{16 + j}, v{ACC + 4 * j}")
    e("ds_write_b128 v4, v[16:19]")
    e("ds_write_b128 v4, v[20:23] offset:16")
    e("s_waitcnt lgkmcnt(0)")
    stamp(8)
    tstamp(1)
    e("s_barrier")
    tstamp(2)
    e("s_branch L_wts")

    e("L_H:")
    e("s_setprio 3")
    roles()
    e("v_mov_b32 v3, 0")
    estamp(1)
    e(f"s_cmp_lg_u32 s{S_WAVE}, 0")
    e("s_cbranch_scc1 L_H23")
    e(f"s_cmp_ge_u32 s{S_Y}, 23")
    e("s_cbranch_scc1 L_H23")
    P_QA, P_OUT = T + 5, T + 8
    e(f"s_lshl_b32 s{P_QA}, s{S_KH}, 1")
    e(f"s_lshl_b32 s{P_OUT}, s{S_XI}, 14")
    if "cgrot" in xp:
        e(f"s_add_u32 s{T}, s{S_SP}, 2")
        e(f"s_and_b32 s{T}, s{T}, 7")
        e(f"s_lshl_b32 s{T + 1}, s{S_KH}, 3")
        e(f"s_add_u32 s{T}, s{T}, s{T + 1}")
        e(f"s_lshl_b32 s{T}, s{T}, 10")
    else:
        e(f"s_lshl_b32 s{T}, s{S_Y}, 10")
    e(f"s_add_u32 s{P_OUT}, s{P_OUT}, s{T}")
    e(f"s_add_u32 s{P_OUT}, s{P_OUT}, {WS_Q}")
    e(f"s_lshl_b32 s{T}, s{S_L}, 1")
    e(f"s_add_u32 s{T}, s{T}, s{S_KH}")
    e(f"s_lshl_b32 s{T}, s{T}, 10")
    e(f"s_add_u32 s{T}, s{T}, {WS_H}")
    e(f"s_cmp_lt_u32 s{S_Y}, 16")
    e(f"s_cselect_b32 s{P_OUT}, s{P_OUT}, s{T}")
    e("v_and_b32 v3, 3, v2")
    e("v_lshrrev_b32 v10, 2, v2")
    e("v_lshlrev_b32 v4, 10, v3")
    e("v_lshl_add_u32 v4, v10, 8, v4")
    e("v_lshl_add_u32 v4, v1, 4, v4")
    e("s_waitcnt lgkmcnt(0)")
    estamp(2)
    srd(R_B, S_X, S_X + 1, 4096)
    XR = 16
    for tau in range(4):
        e(f"buffer_load_dwordx4 {vr(XR + 4 * tau, 4)}, v4, s[{R_B}:{R_B + 3}], 0 offen offset:{64 * tau}")
    karg2()
    estamp(4)
    e("v_lshlrev_b32 v14, 10, v1")
    e("v_lshl_add_u32 v14, v10, 7, v14")
    e("v_lshl_add_u32 v14, v3, 3, v14")
    e(f"v_add_u32 v14, {L_T0}, v14")
    e(f"v_subrev_u32 v11, s{P_QA}, v10")
    e("v_and_b32 v11, 3, v11")
    e("v_lshlrev_b32 v5, 8, v3")
    e("v_lshl_add_u32 v5, v11, 6, v5")
    e("v_lshl_add_u32 v5, v1, 4, v5")
    e("v_cmp_ne_u32 s[64:65], 1, v11")
    e("v_cmp_ne_u32 s[66:67], 2, v11")
    e("v_cmp_ne_u32 s[68:69], 3, v11")
    e("s_waitcnt lgkmcnt(0)")
    epoch_load()
    srd(R_WS, S_WS, S_WS + 1, WS_SIZE)
    e("s_waitcnt vmcnt(0)")
    estamp(6)
    stamp(2)
    XF = 32
    for k in range(16):
        e(f"v_lshlrev_b32 v{XF + 2 * k}, 16, v{XR + k}")
        e(f"v_and_b32 v{XF + 2 * k + 1}, s{S_M16}, v{XR + k}")

    def lane_sum(r, t):
        e("s_nop 1")
        e(f"v_add_f32_dpp v{r}, v{r}, v{r} row_ror:4 row_mask:0xf bank_mask:0xf")
        e("s_nop 1")
        e(f"v_add_f32_dpp v{r}, v{r}, v{r} row_ror:8 row_mask:0xf bank_mask:0xf")
        xrow_reduce("v_add_f32", r, t)

    e(f"v_add_f32 v7, v{XF}, v{XF + 1}")
    e(f"v_add_f32 v8, v{XF + 2}, v{XF + 3}")
    for k in range(4, 32, 2):
        e(f"v_add_f32 v7, v7, v{XF + k}")
        e(f"v_add_f32 v8, v8, v{XF + k + 1}")
    e("v_add_f32 v7, v7, v8")
    lane_sum(7, 9)
    e("v_mul_f32 v7, 0x3b000000, v7")
    e(f"v_sub_f32 v12, v{XF}, v7")
    e(f"v_sub_f32 v6, v{XF + 1}, v7")
    e("v_mul_f32 v8, v12, v12")
    e("v_mul_f32 v13, v6, v6")
    for k in range(2, 32, 2):
        e(f"v_sub_f32 v12, v{XF + k}, v7")
        e(f"v_sub_f32 v6, v{XF + k + 1}, v7")
        e("v_fmac_f32 v8, v12, v12")
        e("v_fmac_f32 v13, v6, v6")
    e("v_add_f32 v8, v8, v13")
    lane_sum(8, 9)
    e("v_mul_f32 v8, 0x3b000000, v8")
    e("v_cvt_pk_bf16_f32 v9, v7, v8")
    e("v_lshlrev_b32 v7, 16, v9")
    e(f"v_and_b32 v8, s{S_M16}, v9")
    e("v_add_f32 v8, 0x3727c5ac, v8")
    e("v_cvt_pk_bf16_f32 v9, v8, v8")
    e(f"v_and_b32 v8, s{S_M16}, v9")
    e("v_sqrt_f32 v8, v8")
    e("s_nop 0")
    e("v_cvt_pk_bf16_f32 v9, v8, v8")
    e(f"v_and_b32 v8, s{S_M16}, v9")
    e("v_rcp_f32 v8, v8")
    BF = 16
    for k in range(16):
        a = XF + 2 * k
        e(f"v_sub_f32 v{a}, v{a}, v7")
        e(f"v_sub_f32 v{a + 1}, v{a + 1}, v7")
        e(f"v_cvt_pk_bf16_f32 v9, v{a}, v{a + 1}")
        e(f"v_lshlrev_b32 v{a}, 16, v9")
        e(f"v_and_b32 v{a + 1}, s{S_M16}, v9")
        e(f"v_mul_f32 v{a}, v{a}, v8")
        e(f"v_mul_f32 v{a + 1}, v{a + 1}, v8")
        e(f"v_cvt_pk_bf16_f32 v{BF + k}, v{a}, v{a + 1}")
    e("s_waitcnt lgkmcnt(0)")
    epoch_tag()
    estamp(7)
    stamp(3)
    e("s_barrier")
    estamp(8)
    stamp(4)
    AF = 64
    DD = 96

    def wread(bi):
        ct, hf = bi >> 1, bi & 1
        for t in range(4):
            r = AF + 16 * (bi & 1) + 4 * t
            e(f"ds_read_b64_tr_b16 {vr(r, 2)}, v14 offset:{(4 * hf + t) * 4096 + ct * 32}")
            e(f"ds_read_b64_tr_b16 {vr(r + 2, 2)}, v14 offset:{(4 * hf + t) * 4096 + 512 + ct * 32}")

    wread(0)
    for bi in range(8):
        if bi < 7:
            wread(bi + 1)
            e("s_waitcnt lgkmcnt(8)")
        else:
            e("s_waitcnt lgkmcnt(0)")
        d = DD + 16 * (bi & 1) + 4 * (bi >> 1)
        for t in range(4):
            c = "0" if t == 0 else vr(d, 4)
            e(f"v_mfma_f32_16x16x32_bf16 {vr(d, 4)}, {vr(AF + 16 * (bi & 1) + 4 * t, 4)}, {vr(BF + 4 * t, 4)}, {c}")
    e(f"s_mov_b32 s{T}, 0x07060503")
    e(f"s_mov_b32 s{T + 1}, 0x07060502")
    e(f"s_mov_b32 s{T + 2}, 0x07060501")
    e("s_nop 4")
    for k in range(16):
        e(f"v_add_f32_dpp v{DD + k}, v{DD + 16 + k}, v{DD + k} row_ror:12 row_mask:0xf bank_mask:0xf")
    for ct in range(1, 4):
        e(f"s_mov_b64 vcc, s[{62 + 2 * ct}:{63 + 2 * ct}]")
        for i in range(4):
            e(f"v_cndmask_b32_dpp v{DD + i}, v{DD + 4 * ct + i}, v{DD + i}, vcc row_ror:{4 * ct} row_mask:0xf bank_mask:0xf")
    for i in range(4):
        e(f"v_add_u32 v{DD + i}, 0x80, v{DD + i}")
    for i in range(3):
        e(f"v_perm_b32 v{112 + i}, v{DD + i}, v{DD + 3}, s{T + i}")
    e("v_xor_b32 v115, v112, v113")
    e("v_xor_b32 v115, v115, v114")
    e(f"v_xor_b32 v115, s{S_TAG}, v115")
    if "nohand" not in xp:
        e(f"buffer_store_dwordx4 v[112:115], v5, {WSR}, s{P_OUT} offen sc1")
    stamp(5)
    e("s_waitcnt vmcnt(0)")
    stamp(6)
    e("L_qg:")
    if "nohand" in xp or "pubonly" in xp:
        e("s_branch L_Hb1")
    e(f"s_lshl_b32 s{T}, s{S_XI}, 14")
    e(f"s_lshl_b32 s{T + 1}, s{S_B}, 8")
    e(f"s_add_u32 s{T}, s{T}, s{T + 1}")
    e(f"s_add_u32 s{T}, s{T}, {WS_Q}")
    e(f"s_add_u32 s{T + 1}, s{T}, 4096")
    e(f"s_add_u32 s{T + 2}, s{T}, 8192")
    e(f"s_add_u32 s{T + 3}, s{T}, 12288")
    e("v_lshlrev_b32 v5, 10, v1")
    e("v_lshl_add_u32 v5, v2, 4, v5")
    e("v_lshlrev_b32 v6, 3, v0")
    e(f"v_add_u32 v6, {L_QB}, v6")
    e(f"s_mov_b32 s{T + 4}, 0x04000c0c")
    e(f"s_mov_b32 s{T + 5}, 0x0706000c")
    QG = 16

    def unit_checks(regs, t0, t1):
        for r in regs:
            e(f"v_xor_b32 v{r + 3}, v{r + 3}, v{r}")
        for r in regs:
            e(f"v_xor_b32 v{r + 3}, v{r + 3}, v{r + 1}")
        for r in regs:
            e(f"v_xor_b32 v{r + 3}, v{r + 3}, v{r + 2}")
        tagcheck([r + 3 for r in regs], t0, t1)

    def unit_unpack(r):
        e(f"v_perm_b32 v{r + 3}, v{r}, v{r + 1}, s{T + 4}")
        e(f"v_perm_b32 v{r + 3}, v{r + 3}, v{r + 2}, s{T + 5}")
        for i in range(3):
            e(f"v_and_b32 v{r + i}, 0xffffff00, v{r + i}")

    lab = poll_begin("pq")
    for kh in range(2):
        for m in range(2):
            r = QG + 8 * kh + 4 * m
            e(f"buffer_load_dwordx4 {vr(r, 4)}, v5, {WSR}, s{T + 2 * kh + m} offen sc1")
    e("s_waitcnt vmcnt(0)")
    unit_checks([QG + 4 * k for k in range(4)], 8, 9)
    if "once" in xp:
        e("s_mov_b64 vcc, 0")
    poll_end(lab, 6)
    for k in range(4):
        unit_unpack(QG + 4 * k)
    for m in range(2):
        r = QG + 4 * m
        for i in range(4):
            e(f"v_add_f32 v{r + i}, v{r + i}, v{r + 8 + i}")
        e(f"v_cvt_pk_bf16_f32 v{r}, v{r}, v{r + 1}")
        e(f"v_cvt_pk_bf16_f32 v{r + 1}, v{r + 2}, v{r + 3}")
        e(f"ds_write_b64 v6, {vr(r, 2)} offset:{512 * m}")
    e("s_waitcnt lgkmcnt(0)")
    stamp(7)
    e("s_branch L_Hb1")

    e("L_H23:")
    e("s_waitcnt lgkmcnt(0)")
    karg2()
    e("s_waitcnt lgkmcnt(0)")
    epoch_load()
    srd(R_WS, S_WS, S_WS + 1, WS_SIZE)
    e("s_waitcnt lgkmcnt(0)")
    epoch_tag()
    e(f"s_cmp_eq_u32 s{S_WAVE}, 2")
    e("s_cbranch_scc0 L_noid")
    e(f"s_lshl_b32 s{T}, s{S_XI}, 12")
    e(f"s_lshl_b32 s{T + 1}, s{S_Y}, 7")
    e(f"s_add_u32 s{T}, s{T}, s{T + 1}")
    e(f"s_add_u32 s{T}, s{T}, {WS_LSE + 32}")
    e(f"s_getreg_b32 s{T + 2}, hwreg(HW_REG_XCC_ID, 0, 4)")
    e(f"v_mov_b32 v6, s{T + 2}")
    e(f"v_mov_b32 v7, s{S_TAG}")
    e("v_mov_b32 v5, 0")
    e("s_mov_b64 exec, 1")
    e(f"buffer_store_dwordx2 v[6:7], v5, {WSR}, s{T} offen sc1")
    e("s_mov_b64 exec, -1")
    e("L_noid:")
    e("s_barrier")
    e(f"s_cmp_eq_u32 s{S_WAVE}, 0")
    e("s_cbranch_scc1 L_qg")

    e("L_Hb1:")
    e("s_barrier")
    HG = 32

    def hloads():
        for lp in range(4):
            for kh in range(2):
                r = HG + 8 * lp + 4 * kh
                e(f"buffer_load_dwordx4 {vr(r, 4)}, v3, {WSR}, s{T + (lp >> 1)} offen offset:{(lp & 1) * 2048 + 1024 * kh} sc1")

    e(f"s_sub_u32 s{T + 4}, s{S_Y}, 23")
    e(f"s_cmp_lt_u32 s{T + 4}, 7")
    e(f"s_cselect_b32 s{T + 6}, s{S_WAVE}, 0")
    if "nohand" in xp or "noh" in xp or "pubonly" in xp or "once" in xp:
        e(f"s_mov_b32 s{T + 6}, 0")
    e(f"s_cmp_eq_u32 s{T + 6}, 3")
    e("s_cbranch_scc0 L_noh1")
    e(f"s_lshl_b32 s{T}, s{T + 4}, 13")
    e(f"s_add_u32 s{T}, s{T}, {WS_H}")
    e(f"s_add_u32 s{T + 1}, s{T}, 4096")
    e("v_lshlrev_b32 v3, 4, v0")
    hloads()
    e("L_noh1:")
    e(f"s_lshl_b32 s{T + 10}, s{S_XI}, 12")
    e(f"s_add_u32 s{T + 10}, s{T + 10}, {WS_LSE + 32}")
    e("v_and_b32 v30, 31, v0")
    e("v_lshlrev_b32 v30, 7, v30")
    e(f"s_cmp_lt_u32 s{S_WAVE}, 2")
    e("s_cbranch_scc0 L_noid2")
    e(f"buffer_load_dwordx2 v[30:31], v30, {WSR}, s{T + 10} offen sc1")
    e("L_noid2:")
    e("s_barrier")
    e("s_barrier")
    stamp(8)
    e(f"s_mov_b32 s{S_SAME}, 0")
    e(f"s_cmp_lt_u32 s{S_WAVE}, 2")
    e("s_cbranch_scc0 L_noid3")
    e(f"s_getreg_b32 s{T + 10}, hwreg(HW_REG_XCC_ID, 0, 4)")
    e("s_waitcnt vmcnt(0)")
    e(f"v_cmp_ne_u32 s[64:65], s{S_TAG}, v31")
    e(f"v_cmp_ne_u32 vcc, s{T + 10}, v30")
    e("s_or_b64 vcc, vcc, s[64:65]")
    e("s_cmp_eq_u64 vcc, 0")
    e(f"s_cselect_b32 s{S_SAME}, 1, 0")
    if "noxcc" in xp:
        e(f"s_mov_b32 s{S_SAME}, 0")
    e("L_noid3:")
    e(f"s_cmp_eq_u32 s{T + 6}, 3")
    e("s_cbranch_scc0 L_noh2")
    e("v_lshlrev_b32 v6, 9, v1")
    e("v_lshl_add_u32 v6, v2, 3, v6")
    e(f"v_add_u32 v6, {L_HB}, v6")
    e(f"s_mov_b32 s{T + 4}, 0x04000c0c")
    e(f"s_mov_b32 s{T + 5}, 0x0706000c")
    lab = e.label("ph")
    e(f"s_mov_b32 s{T + 17}, {POLL_LIMIT}")
    e(f"{lab}:")
    e("s_waitcnt vmcnt(0)")
    unit_checks([HG + 4 * k for k in range(8)], 8, 9)
    e("s_cmp_eq_u64 vcc, 0")
    e(f"s_cbranch_scc1 {lab}_d")
    e(f"s_sub_u32 s{T + 17}, s{T + 17}, 1")
    e(f"s_cbranch_scc1 {lab}_d")
    e("s_sleep 4")
    hloads()
    e(f"s_branch {lab}")
    e(f"{lab}_d:")
    for k in range(8):
        unit_unpack(HG + 4 * k)
    for lp in range(4):
        r = HG + 8 * lp
        for i in range(4):
            e(f"v_add_f32 v{r + i}, v{r + i}, v{r + 4 + i}")
        for i in range(4):
            e(f"v_max_f32 v{r + i}, 0, v{r + i}")
        e(f"v_cvt_pk_bf16_f32 v{r}, v{r}, v{r + 1}")
        e(f"v_cvt_pk_bf16_f32 v{r + 1}, v{r + 2}, v{r + 3}")
        e(f"ds_write_b64 v6, {vr(r, 2)} offset:{128 * lp}")
    e("L_noh2:")
    e(f"s_cmp_eq_u32 s{S_WAVE}, 2")
    e("s_cbranch_scc0 L_nolse")
    e("v_lshlrev_b32 v3, 2, v0")
    e(f"ds_read2st64_b32 v[6:7], v3 offset0:{L_LSUM // 256} offset1:{L_LSUM // 256 + 1}")
    e(f"ds_read2st64_b32 v[8:9], v3 offset0:{L_LSUM // 256 + 2} offset1:{L_LSUM // 256 + 3}")
    e("v_lshlrev_b32 v4, 4, v1")
    e(f"v_add_u32 v4, {L_MAX}, v4")
    e("ds_read2st64_b32 v[10:11], v4 offset0:0 offset1:1")
    e("ds_read2st64_b32 v[12:13], v4 offset0:2 offset1:3")
    e(f"s_mov_b32 s{S_L2E}, 0x3fb8aa3b")
    e(f"s_lshl_b32 s{T}, s{S_XI}, 12")
    e(f"s_lshl_b32 s{T + 1}, s{S_B}, 10")
    e(f"s_add_u32 s{T}, s{T}, s{T + 1}")
    e(f"s_add_u32 s{T}, s{T}, {WS_LSE}")
    e(f"s_lshl_b32 s{T + 1}, s{S_SP}, 7")
    e(f"s_add_u32 s{T + 1}, s{T + 1}, s{T}")
    e("s_waitcnt lgkmcnt(0)")
    e("v_add_f32 v6, v6, v7")
    e("v_add_f32 v8, v8, v9")
    e("v_max3_f32 v10, v10, v11, v12")
    e("v_add_f32 v6, v6, v8")
    e("v_max_f32 v10, v10, v13")
    e("v_rcp_f32 v11, v6")
    e("v_log_f32 v6, v6")
    e(f"v_mul_f32 v10, s{S_L2E}, v10")
    e("v_lshlrev_b32 v5, 3, v1")
    e("v_add_f32 v6, v6, v10")
    e(f"v_mov_b32 v7, s{S_TAG}")
    e("v_cmp_eq_u32 vcc, 0, v2")
    e("s_and_saveexec_b64 s[64:65], vcc")
    e(f"buffer_store_dwordx2 v[6:7], v5, {WSR}, s{T + 1} offen sc1")
    e("s_mov_b64 exec, s[64:65]")
    e("v_lshlrev_b32 v5, 2, v1")
    e(f"v_add_u32 v5, {L_SCALE}, v5")
    e("v_cmp_eq_u32 vcc, 0, v2")
    e("s_and_saveexec_b64 s[64:65], vcc")
    e("ds_write_b32 v5, v11")
    e("s_mov_b64 exec, s[64:65]")
    e("L_nolse:")
    WF = 32
    e("v_lshrrev_b32 v10, 2, v2")
    e("v_and_b32 v11, 3, v2")
    e("v_lshlrev_b32 v4, 10, v1")
    e("v_lshl_add_u32 v4, v10, 7, v4")
    e("v_lshl_add_u32 v4, v11, 3, v4")
    e(f"s_lshl_b32 s{T}, s{S_WAVE}, 5")
    e(f"v_add_u32 v4, s{T}, v4")
    e("v_lshlrev_b32 v6, 9, v11")
    e("v_lshl_add_u32 v6, v1, 4, v6")
    e(f"v_add_u32 v6, {L_HB}, v6")
    e("v_lshlrev_b32 v9, 6, v2")
    e("v_lshl_add_u32 v9, v1, 4, v9")
    e(f"v_mov_b32 v17, s{S_TAG}")
    e(f"v_mov_b32 v19, s{S_TAG}")
    e("s_waitcnt lgkmcnt(0)")
    e("s_barrier")
    lse_addr()
    lse_loads()
    e(f"s_sub_u32 s{T + 4}, s{S_Y}, 23")
    e(f"s_cmp_ge_u32 s{T + 4}, 7")
    e("s_cbranch_scc1 L_nog2")
    e(f"v_add_u32 v7, {L_T0}, v4")
    for t in range(8):
        ad, off = ("v7", t * 4096) if t < 6 else ("v4", L_W2B + (t - 6) * 4096)
        e(f"ds_read_b64_tr_b16 {vr(64 + 4 * t, 2)}, {ad} offset:{off}")
        e(f"ds_read_b64_tr_b16 {vr(64 + 4 * t + 2, 2)}, {ad} offset:{off + 512}")
        if t == 3:
            e("s_waitcnt lgkmcnt(4)")
    e("s_waitcnt lgkmcnt(4)")
    for t in range(8):
        e(f"ds_read_b128 {vr(128 + 4 * t, 4)}, v6 offset:{64 * t}")
    e("s_waitcnt lgkmcnt(0)")
    for t in range(8):
        c = "0" if t == 0 else "v[12:15]"
        e(f"v_mfma_f32_16x16x32_bf16 v[12:15], {vr(64 + 4 * t, 4)}, {vr(128 + 4 * t, 4)}, {c}")
    e("s_nop 7")
    e("v_cvt_pk_bf16_f32 v20, v12, v13")
    e("v_cvt_pk_bf16_f32 v22, v14, v15")
    e(f"s_lshl_b32 s{T}, s{S_XI}, 15")
    e(f"s_lshl_b32 s{T + 1}, s{T + 4}, 10")
    e(f"s_add_u32 s{T}, s{T}, s{T + 1}")
    e(f"s_lshl_b32 s{T + 1}, s{S_WAVE}, 8")
    e(f"s_add_u32 s{T}, s{T}, s{T + 1}")
    e(f"s_add_u32 s{T}, s{T}, {WS_GP}")
    e(f"v_mov_b32 v21, s{S_TAG}")
    e(f"v_mov_b32 v23, s{S_TAG}")
    e("v_cmp_gt_u32 vcc, 4, v2")
    e("s_and_saveexec_b64 s[64:65], vcc")
    e(f"buffer_store_dwordx4 v[20:23], v9, {WSR}, s{T} offen sc1")
    e("s_mov_b64 exec, s[64:65]")
    e("L_nog2:")
    e("v_lshrrev_b32 v24, 5, v0")
    e(f"s_lshl_b32 s{T}, s{S_WAVE}, 1")
    e(f"v_add_u32 v24, s{T}, v24")
    e("v_and_b32 v25, 31, v0")
    e("v_lshlrev_b32 v25, 4, v25")
    e("v_lshl_add_u32 v26, v24, 9, v25")
    e("v_lshl_add_u32 v27, v24, 14, v25")
    e("v_lshlrev_b32 v28, 2, v24")
    e(f"v_add_u32 v28, {L_SCALE}, v28")
    e(f"s_lshl_b32 s{T + 11}, s{S_XI}, 16")
    e(f"s_lshl_b32 s{T + 1}, s{S_SP}, 11")
    e(f"s_add_u32 s{T + 11}, s{T + 11}, s{T + 1}")
    e(f"s_lshl_b32 s{T + 1}, s{S_B}, 9")
    e(f"s_add_u32 s{T + 11}, s{T + 11}, s{T + 1}")
    e(f"s_add_u32 s{T + 11}, s{T + 11}, {WS_OP}")
    e(f"v_mov_b32 v81, s{S_TAG}")
    e(f"v_mov_b32 v83, s{S_TAG}")
    e(f"s_lshl_b32 s{T + 14}, s{S_XI}, 2")
    e(f"s_add_u32 s{T + 14}, s{T + 14}, s{S_B}")
    e(f"s_lshl_b32 s{T + 14}, s{T + 14}, 10")
    e(f"s_lshl_b32 s{T + 1}, s{S_SP}, 15")
    e(f"s_add_u32 s{T + 14}, s{T + 14}, s{T + 1}")
    e(f"s_lshl_b32 s{T + 1}, s{S_WAVE}, 8")
    e(f"s_add_u32 s{T + 14}, s{T + 14}, s{T + 1}")
    e(f"s_add_u32 s{T + 14}, s{T + 14}, {WS_SP}")
    e("v_and_b32 v12, 3, v2")
    e("v_lshlrev_b32 v12, 8, v12")
    e("v_lshl_add_u32 v12, v1, 4, v12")
    e(f"v_add_u32 v12, {L_OBF}, v12")
    e(f"v_add_u32 v4, {L_WO}, v4")
    stamp(9)

    tstamp(1)
    e("s_barrier")
    tstamp(2)
    e(f"s_cmp_lt_u32 s{S_WAVE}, 2")
    e("s_cbranch_scc0 L_nopub")
    for sw_ in range(4):
        e(f"ds_read_b128 {vr(64 + 4 * sw_, 4)}, v26 offset:{sw_ * 2048}")
    e("ds_read_b32 v29, v28")
    e("s_waitcnt lgkmcnt(0)")
    for i in range(4):
        e(f"v_add_f32 v{64 + i}, v{64 + i}, v{68 + i}")
        e(f"v_add_f32 v{72 + i}, v{72 + i}, v{76 + i}")
    for i in range(4):
        e(f"v_add_f32 v{64 + i}, v{64 + i}, v{72 + i}")
    for i in range(4):
        e(f"v_mul_f32 v{64 + i}, v{64 + i}, v29")
    e("v_cvt_pk_bf16_f32 v80, v64, v65")
    e("v_cvt_pk_bf16_f32 v82, v66, v67")
    e(f"s_cmp_eq_u32 s{S_SAME}, 1")
    e("s_cbranch_scc1 L_publ")
    e(f"buffer_store_dwordx4 v[80:83], v27, {WSR}, s{T + 11} offen sc1")
    e("s_branch L_pubs")
    e("L_publ:")
    e(f"buffer_store_dwordx4 v[80:83], v27, {WSR}, s{T + 11} offen")
    e("L_pubs:")
    tstamp(3)
    e(f"s_sub_u32 s{T + 4}, s{S_Y}, 23")
    e(f"s_cmp_lt_u32 s{T + 4}, 7")
    e("s_cbranch_scc1 L_pubw2")
    e("s_waitcnt vmcnt(1)")
    e("s_branch L_pubd")
    e("L_pubw2:")
    e("s_waitcnt vmcnt(2)")
    e("s_branch L_pubd")
    e("L_nopub:")
    e(f"s_sub_u32 s{T + 4}, s{S_Y}, 23")
    e(f"s_cmp_lt_u32 s{T + 4}, 7")
    e("s_cbranch_scc1 L_pubw1")
    e("s_waitcnt vmcnt(0)")
    e("s_branch L_pubd")
    e("L_pubw1:")
    e("s_waitcnt vmcnt(1)")
    e("L_pubd:")
    weights(waited=True)
    e("s_branch L_wts2")
    e("L_wts:")
    weights()
    e("L_wts2:")
    tstamp(4)
    e(f"s_lshl_b32 s{T}, s{S_XI}, 16")
    e(f"s_lshl_b32 s{T + 1}, s{S_B}, 14")
    e(f"s_add_u32 s{T}, s{T}, s{T + 1}")
    e(f"s_lshl_b32 s{T + 1}, s{S_WAVE}, 8")
    e(f"s_add_u32 s{T}, s{T}, s{T + 1}")
    e(f"s_add_u32 s{T}, s{T}, {WS_OP}")
    e(f"s_add_u32 s{T + 1}, s{T}, 8192")
    e("v_lshlrev_b32 v5, 11, v1")
    e("v_lshl_add_u32 v5, v2, 4, v5")
    OG = 48
    e(f"s_lshl_b32 s{T + 2}, s{S_WAVE}, 7")
    e(f"s_add_u32 s{T + 2}, s{T + 2}, {L_OBF}")
    e("v_lshlrev_b32 v3, 3, v2")
    e("v_lshl_add_u32 v3, v1, 1, v3")
    e(f"v_add_u32 v3, s{T + 2}, v3")
    e("s_barrier")
    tstamp(5)
    e(f"s_cmp_lt_u32 s{S_WAVE}, 4")
    e("s_cbranch_scc0 L_nowo")
    for t in range(4):
        e(f"ds_read_b64_tr_b16 {vr(WF + 4 * t, 2)}, v4 offset:{t * 4096}")
        e(f"ds_read_b64_tr_b16 {vr(WF + 4 * t + 2, 2)}, v4 offset:{t * 4096 + 512}")
    e("L_nowo:")
    if hint:
        e("v_lshlrev_b32 v6, 11, v0")
        e("v_add_u32 v6, 252, v6")
        e("s_mov_b64 exec, 0xff")
        lab = poll_begin("ph2")
        e(f"buffer_load_dword v8, v6, {WSR}, s{T} offen sc1")
        e("s_waitcnt vmcnt(0)")
        tagcheck([8], 0, 0)
        poll_end(lab, tsleep)
    lab = poll_begin("po")
    e(f"buffer_load_dwordx4 v[{OG}:{OG + 3}], v5, {WSR}, s{T} offen sc1")
    e(f"buffer_load_dwordx4 v[{OG + 4}:{OG + 7}], v5, {WSR}, s{T + 1} offen sc1")
    e("s_waitcnt vmcnt(0)")
    tagcheck([OG + 1, OG + 3, OG + 5, OG + 7], 8, 7)
    poll_end(lab, tsleep)
    stamp(10)
    tstamp(6)
    e(f"v_lshlrev_b32 v56, 16, v{OG}")
    e(f"v_and_b32 v57, s{S_M16}, v{OG}")
    e(f"v_lshlrev_b32 v58, 16, v{OG + 2}")
    e(f"v_and_b32 v59, s{S_M16}, v{OG + 2}")
    e(f"v_lshlrev_b32 v60, 16, v{OG + 4}")
    e(f"v_and_b32 v61, s{S_M16}, v{OG + 4}")
    e(f"v_lshlrev_b32 v62, 16, v{OG + 6}")
    e(f"v_and_b32 v63, s{S_M16}, v{OG + 6}")
    for i in range(4):
        e(f"v_mul_f32 v{56 + i}, v{56 + i}, v110")
    for i in range(4):
        e(f"v_fmac_f32 v{56 + i}, v{60 + i}, v111")
    e("s_nop 0")
    e("v_permlane32_swap_b32 v56, v58")
    e("v_permlane32_swap_b32 v57, v59")
    e("s_nop 0")
    e("v_add_f32 v56, v56, v58")
    e("v_add_f32 v57, v57, v59")
    e("s_nop 1")
    e("v_permlane16_swap_b32 v56, v57")
    e("s_nop 1")
    e("v_add_f32 v56, v56, v57")
    e("v_cvt_pk_bf16_f32 v56, v56, v56")
    e("ds_write_b16 v3, v56")
    e("s_waitcnt lgkmcnt(0)")
    e("s_barrier")
    tstamp(7)
    e(f"s_cmp_lt_u32 s{S_WAVE}, 4")
    e("s_cbranch_scc0 L_final")
    BB = 96
    for t in range(4):
        e(f"ds_read_b128 {vr(BB + 4 * t, 4)}, v12 offset:{64 * t}")
    e("v_cmp_gt_u32 vcc, 4, v2")
    for t in range(4):
        e(f"s_waitcnt lgkmcnt({3 - t})")
        c = "0" if t == 0 else "v[12:15]"
        e(f"v_mfma_f32_16x16x32_bf16 v[12:15], {vr(WF + 4 * t, 4)}, {vr(BB + 4 * t, 4)}, {c}")
    e("s_nop 7")
    e("v_cvt_pk_bf16_f32 v16, v12, v13")
    e("v_cvt_pk_bf16_f32 v18, v14, v15")
    e("s_and_saveexec_b64 s[64:65], vcc")
    e(f"buffer_store_dwordx4 v[16:19], v9, {WSR}, s{T + 14} offen {spst}")
    stamp(11)
    stamp_flush()
    e("s_endpgm")

    e("L_final:")
    e(f"s_cmp_gt_u32 s{S_WAVE}, 5")
    e("s_cbranch_scc0 L_fin0")
    stamp_flush()
    e("s_endpgm")
    e("L_fin0:")
    e("v_lshrrev_b32 v3, 1, v0")
    e("v_lshlrev_b32 v3, 10, v3")
    e("v_and_b32 v4, 1, v0")
    e("v_lshl_add_u32 v3, v4, 4, v3")
    e(f"s_lshl_b32 s{T}, s{S_XI}, 15")
    e(f"s_lshl_b32 s{T + 1}, s{S_B}, 6")
    e(f"s_add_u32 s{T}, s{T}, s{T + 1}")
    e(f"s_lshr_b32 s{T + 1}, s{S_SP}, 1")
    e(f"s_lshl_b32 s{T + 1}, s{T + 1}, 8")
    e(f"s_add_u32 s{T}, s{T}, s{T + 1}")
    e(f"s_and_b32 s{T + 1}, s{S_SP}, 1")
    e(f"s_lshl_b32 s{T + 1}, s{T + 1}, 5")
    e(f"s_add_u32 s{T}, s{T}, s{T + 1}")
    e(f"s_lshl_b32 s{T + 4}, s{S_B}, 10")
    e(f"s_lshl_b32 s{T + 5}, s{S_XI}, 7")
    e(f"s_add_u32 s{T + 4}, s{T + 4}, s{T + 5}")
    e(f"s_lshl_b32 s{T + 5}, s{S_SP}, 4")
    e(f"s_add_u32 s{T + 4}, s{T + 4}, s{T + 5}")
    e("v_lshlrev_b32 v5, 3, v4")
    e("v_lshlrev_b32 v6, 5, v4")
    e(f"v_add_u32 v6, {L_FIN}, v6")

    def unpack4(dst, lo, hi):
        e(f"v_lshlrev_b32 v{dst}, 16, v{lo}")
        e(f"v_and_b32 v{dst + 1}, s{S_M16}, v{lo}")
        e(f"v_lshlrev_b32 v{dst + 2}, 16, v{hi}")
        e(f"v_and_b32 v{dst + 3}, s{S_M16}, v{hi}")

    def red32(base):
        e("s_nop 0")
        for rot in (2, 4, 8):
            for i in range(4):
                e(f"v_add_f32_dpp v{base + i}, v{base + i}, v{base + i} row_ror:{rot} row_mask:0xf bank_mask:0xf")
        for sw_ in ("v_permlane16_swap_b32", "v_permlane32_swap_b32"):
            for i in range(4):
                e(f"v_mov_b32 v{base + 4 + i}, v{base + i}")
            e("s_nop 0")
            for i in range(4):
                e(f"{sw_} v{base + 4 + i}, v{base + i}")
            for i in range(4):
                e(f"v_add_f32 v{base + i}, v{base + i}, v{base + 4 + i}")

    e(f"s_cmp_eq_u32 s{S_WAVE}, 4")
    e("s_cbranch_scc1 L_fins")
    e(f"s_add_u32 s{T + 2}, s{T}, {WS_GP}")
    e("v_cmp_gt_u32 s[66:67], 14, v0")
    e("v_cmp_eq_u32 vcc, 1, v4")
    e(f"v_mov_b32 v20, s{S_RES}")
    e(f"v_mov_b32 v21, s{S_RES + 1}")
    e(f"v_mov_b32 v22, s{S_RES + 2}")
    e(f"v_mov_b32 v23, s{S_RES + 3}")
    e("v_cndmask_b32 v20, v20, v22, vcc")
    e("v_cndmask_b32 v21, v21, v23, vcc")
    lab = poll_begin("pgp")
    e(f"buffer_load_dwordx4 v[32:35], v3, {WSR}, s{T + 2} offen sc1")
    e("s_waitcnt vmcnt(0)")
    tagcheck([33, 35], 0, 0)
    e("s_and_b64 vcc, vcc, s[66:67]")
    poll_end(lab, tsleep)
    e("v_cndmask_b32 v32, 0, v32, s[66:67]")
    e("v_cndmask_b32 v34, 0, v34, s[66:67]")
    unpack4(24, 32, 34)
    red32(24)
    e("v_cvt_pk_bf16_f32 v8, v24, v25")
    e("v_cvt_pk_bf16_f32 v9, v26, v27")
    unpack4(24, 8, 9)
    e(f"s_mov_b32 s{T + 5}, 0xbfb8aa3b")
    for i in range(4):
        e(f"v_mul_f32 v{28 + i}, s{T + 5}, v{24 + i}")
    for i in range(4):
        e(f"v_exp_f32 v{28 + i}, v{28 + i}")
    e("s_nop 0")
    for i in range(4):
        e(f"v_add_f32 v{28 + i}, 1.0, v{28 + i}")
    for i in range(4):
        e(f"v_rcp_f32 v{28 + i}, v{28 + i}")
    e("s_nop 0")
    for i in range(4):
        e(f"v_mul_f32 v{24 + i}, v{24 + i}, v{28 + i}")
    e("v_cvt_pk_bf16_f32 v8, v24, v25")
    e("v_cvt_pk_bf16_f32 v9, v26, v27")
    unpack4(24, 8, 9)
    unpack4(28, 20, 21)
    e("s_mov_b64 exec, 3")
    e("ds_write_b128 v6, v[24:27]")
    e("ds_write_b128 v6, v[28:31] offset:16")
    e("s_waitcnt lgkmcnt(0)")
    tstamp(8)
    e("s_barrier")
    stamp_flush()
    e("s_endpgm")
    e("L_fins:")
    e(f"s_add_u32 s{T + 3}, s{T}, {WS_SP}")
    srd(R_B, S_OUT, S_OUT + 1, 4096)
    lab = poll_begin("psp")
    e(f"buffer_load_dwordx4 v[32:35], v3, {WSR}, s{T + 3} offen {spld}")
    e("s_waitcnt vmcnt(0)")
    tagcheck([33, 35], 0, 0)
    poll_end(lab, tsleep)
    tstamp(9)
    unpack4(40, 32, 34)
    red32(40)
    e("v_cvt_pk_bf16_f32 v8, v40, v41")
    e("v_cvt_pk_bf16_f32 v9, v42, v43")
    unpack4(40, 8, 9)
    e("s_barrier")
    e("ds_read_b128 v[24:27], v6")
    e("ds_read_b128 v[28:31], v6 offset:16")
    e("s_waitcnt lgkmcnt(0)")
    for i in range(4):
        e(f"v_mul_f32 v{40 + i}, v{40 + i}, v{24 + i}")
    e("v_cvt_pk_bf16_f32 v8, v40, v41")
    e("v_cvt_pk_bf16_f32 v9, v42, v43")
    unpack4(40, 8, 9)
    for i in range(4):
        e(f"v_add_f32 v{40 + i}, v{40 + i}, v{28 + i}")
    e("v_cvt_pk_bf16_f32 v8, v40, v41")
    e("v_cvt_pk_bf16_f32 v9, v42, v43")
    e("s_mov_b64 exec, 3")
    e(f"buffer_store_dwordx2 v[8:9], v5, s[{R_B}:{R_B + 3}], s{T + 4} offen")
    e("s_cmp_eq_u32 s2, 0")
    e("s_cbranch_scc0 L_noep")
    e("s_mov_b64 exec, 1")
    e(f"v_mov_b32 v6, {WS_E}")
    e(f"v_mov_b32 v7, s{S_TAG}")
    e(f"buffer_store_dword v7, v6, {WSR}, 0 offen")
    e("L_noep:")
    stamp(11)
    stamp_flush()
    e("L_end:")
    e("s_endpgm")
    e(f".fill ({20480 if diag else 16384} - (. - {KN}_kernel)) / 4, 4, 0xbf800000")
    e('.section .rodata,"a"')
    e(".p2align 6")
    e(f".amdhsa_kernel {KN}_kernel")
    e("  .amdhsa_next_free_vgpr 256")
    e("  .amdhsa_next_free_sgpr 102")
    e("  .amdhsa_accum_offset 256")
    e("  .amdhsa_group_segment_fixed_size 0")
    e("  .amdhsa_kernarg_size 88")
    e("  .amdhsa_user_sgpr_count 2")
    e("  .amdhsa_user_sgpr_kernarg_segment_ptr 1")
    e("  .amdhsa_system_sgpr_workgroup_id_x 1")
    e(".end_amdhsa_kernel")
    return e.text()


if __name__ == "__main__":
    import argparse
    ap = argparse.ArgumentParser()
    ap.add_argument("-o", default="k.s")
    ap.add_argument("--diag", action="store_true")
    ap.add_argument("--early", action="store_true")
    ap.add_argument("--thr", type=int, default=6)
    ap.add_argument("--kpol", default="nt")
    ap.add_argument("--wpol", default="nt")
    ap.add_argument("--hint", action="store_true")
    ap.add_argument("--thr2", type=int, default=10)
    ap.add_argument("--nshallow", type=int, default=4)
    ap.add_argument("--light", action="store_true")
    ap.add_argument("--tail", action="store_true")
    ap.add_argument("--spld", default="sc1")
    ap.add_argument("--spst", default="sc1")
    ap.add_argument("--xp", default="")
    ap.add_argument("--tsleep", type=int, default=1)
    a = ap.parse_args()
    open(a.o, "w").write(gen(diag=a.diag, thr=a.thr, kpol=a.kpol, wpol=a.wpol, early=a.early, hint=a.hint, thr2=a.thr2, nshallow=a.nshallow, tsleep=a.tsleep, light=a.light, xp=tuple(a.xp.split(',')), tailst=a.tail, spld=a.spld, spst=a.spst))
```

```python
import sys

KN = "recurrent_scan__sliding_block_cached__dense_activation_relu__decode"

WS_E = 0x00000
WS_LSE = 0x01000
WS_ID = 0x0A000
WS_Q = 0x10000
WS_H = 0x90000
WS_OP = 0xD0000
WS_SP = 0x150000
WS_GP = 0x190000
WS_SIZE = 0x1D0000
WS_STAMP = 0x200000

L_K = 0
L_RED = 0
L_LSUM = 8192
L_OBF = 10240
L_T0 = 131072
L_QB = L_T0 + 24576
L_MAX = L_T0 + 25600
L_SCALE = L_T0 + 26624
L_HB = L_T0 + 28672
L_FIN = 12288
L_W2B = 16384
L_WO = 32768
LDS_BYTES = 163840

POLL_LIMIT = 200000
EPOCH_STEP = 0x9E3779B9

HEADER = """; Kernarg layout for this problem (88 bytes, ptrs only, base s[0:1]):
;
; Workgroups hand data to each other through d_ws in 8-byte {payload, tag} granules; the tag is derived from an epoch
"""


class Asm:
    def __init__(self):
        self.L = []
        self.nlab = 0

    def __call__(self, s):
        for line in s.split("\n"):
            line = line.strip()
            if line:
                self.L.append(line)

    def label(self, base):
        self.nlab += 1
        return f"L_{base}_{self.nlab}"

    def text(self):
        out = []
        for l in self.L:
            if l.endswith(":") or l.startswith(".") or l.startswith(";"):
                out.append(l)
            else:
                out.append("    " + l)
        return "\n".join(out) + "\n"


def vr(a, n=1):
    return f"v{a}" if n == 1 else f"v[{a}:{a + n - 1}]"


def gen(diag=False, thr=6, kpol="nt", wpol="nt", early=False, hint=False, tsleep=1, thr2=10, light=False, nshallow=4, xp=(), tailst=False, spld='sc1', spst='sc1', wint=False, pfn=8, late=1):
    e = Asm()
    PF2 = True
    S_X, S_K, S_V, S_WQ, S_WO, S_BX, S_W1, S_W2 = 4, 6, 8, 10, 12, 14, 16, 18
    S_OUT, S_DBG, S_WS = 20, 22, 24
    S_XI, S_Y, S_WAVE, S_B, S_SP, S_TAG = 26, 27, 28, 29, 30, 31
    R_A, R_B, R_WS, R_C, R_D = 32, 36, 40, 44, 48
    T = 52
    S_STAMP = 72
    S_M16, S_SC, S_L2E, S_PLO, S_PHI = 96, 97, 98, 99, 100
    S_RES = 48
    S_SAME = 101
    WSR = f"s[{R_WS}:{R_WS + 3}]"

    def estamp(k):
        if diag and early:
            e(f"s_memrealtime s[{S_STAMP + 2 * k}:{S_STAMP + 2 * k + 1}]")
            e("s_waitcnt lgkmcnt(0)")

    def tstamp(k):
        if diag and tailst:
            e(f"s_memrealtime s[{S_STAMP + 2 * k}:{S_STAMP + 2 * k + 1}]")
            e("s_waitcnt lgkmcnt(0)")

    def stamp(k):
        if diag and tailst:
            if k == 11:
                tstamp(11)
            return
        if diag and not (early and k != 11) and not (light and k not in (8, 10, 11)):
            assert k < 12
            e(f"s_memrealtime s[{S_STAMP + 2 * k}:{S_STAMP + 2 * k + 1}]")
            e("s_waitcnt lgkmcnt(0)")

    def stamp_flush():
        if diag:
            e("s_waitcnt vmcnt(0) lgkmcnt(0)")
            e(f"s_lshl_b32 s{T}, s2, 3")
            e(f"s_add_u32 s{T}, s{T}, s{S_WAVE}")
            e(f"s_lshl_b32 s{T}, s{T}, 7")
            e(f"s_add_u32 s{T}, s{T}, {WS_STAMP}")
            e("s_mov_b64 exec, 1")
            e(f"v_mov_b32 v1, s{T}")
            for k in range(12):
                e(f"v_mov_b32 v2, s{S_STAMP + 2 * k}")
                e(f"v_mov_b32 v3, s{S_STAMP + 2 * k + 1}")
                e(f"global_store_dwordx2 v1, v[2:3], s[{S_WS}:{S_WS + 1}] offset:{8 * k}")
            e("s_waitcnt vmcnt(0)")

    def karg2():
        e("s_load_dwordx4 s[20:23], s[0:1], 64")
        e("s_load_dwordx2 s[24:25], s[0:1], 80")

    def epoch_load():
        if "wsend" in xp:
            e(f"s_add_u32 s{S_WS}, s{S_WS}, {512 * 1024 * 1024 - 4 * 1024 * 1024}")
            e(f"s_addc_u32 s{S_WS + 1}, s{S_WS + 1}, 0")
        e(f"s_load_dword s{S_TAG}, s[{S_WS}:{S_WS + 1}], {WS_E}")

    def epoch_tag():
        e(f"s_add_u32 s{S_TAG}, s{S_TAG}, {EPOCH_STEP:#x}")

    def srd(r, lo, hi, size):
        if lo != r:
            e(f"s_mov_b32 s{r}, s{lo}")
            e(f"s_mov_b32 s{r + 1}, s{hi}")
        e(f"s_mov_b32 s{r + 2}, {size}")
        e(f"s_mov_b32 s{r + 3}, 0x20000")

    def srd_off(r, base, soff, size):
        e(f"s_add_u32 s{r}, s{base}, s{soff}")
        e(f"s_addc_u32 s{r + 1}, s{base + 1}, 0")
        e(f"s_mov_b32 s{r + 2}, {size}")
        e(f"s_mov_b32 s{r + 3}, 0x20000")

    def poll_begin(name):
        lab = e.label(name)
        e(f"s_mov_b32 s{T + 17}, {POLL_LIMIT}")
        e(f"{lab}:")
        return lab

    def poll_end(lab, sleep=1, masked=True):
        done = lab + "_d"
        e("s_cmp_eq_u64 vcc, 0")
        e(f"s_cbranch_scc1 {done}")
        e(f"s_sub_u32 s{T + 17}, s{T + 17}, 1")
        e(f"s_cbranch_scc1 {done}")
        if masked and "nomask" not in xp:
            e("s_mov_b64 exec, vcc")
        if sleep:
            e(f"s_sleep {sleep}")
        e(f"s_branch {lab}")
        e(f"{done}:")
        if masked:
            e("s_mov_b64 exec, -1")

    def tagcheck(tags, t0, t1):
        if len(tags) == 1:
            e(f"v_cmp_ne_u32 vcc, s{S_TAG}, v{tags[0]}")
            return
        if len(tags) == 2:
            e(f"v_cmp_ne_u32 s[{T + 12}:{T + 13}], s{S_TAG}, v{tags[0]}")
            e(f"v_cmp_ne_u32 vcc, s{S_TAG}, v{tags[1]}")
            e(f"s_or_b64 vcc, vcc, s[{T + 12}:{T + 13}]")
            return
        for op, acc in (("max", t0), ("min", t1)):
            rest = list(tags)
            if len(rest) >= 3:
                e(f"v_{op}3_u32 v{acc}, v{rest[0]}, v{rest[1]}, v{rest[2]}")
                rest = rest[3:]
            while len(rest) >= 2:
                e(f"v_{op}3_u32 v{acc}, v{acc}, v{rest[0]}, v{rest[1]}")
                rest = rest[2:]
            if rest:
                e(f"v_{op}_u32 v{acc}, v{acc}, v{rest[0]}")
        e(f"v_cmp_ne_u32 s[{T + 12}:{T + 13}], s{S_TAG}, v{t0}")
        e(f"v_cmp_ne_u32 vcc, s{S_TAG}, v{t1}")
        e(f"s_or_b64 vcc, vcc, s[{T + 12}:{T + 13}]")

    def xrow_reduce(op, r, t):
        e(f"v_mov_b32 v{t}, v{r}")
        e("s_nop 1")
        e(f"v_permlane32_swap_b32 v{t}, v{r}")
        e("s_nop 1")
        e(f"{op} v{r}, v{t}, v{r}")
        e(f"v_mov_b32 v{t}, v{r}")
        e("s_nop 1")
        e(f"v_permlane16_swap_b32 v{t}, v{r}")
        e("s_nop 1")
        e(f"{op} v{r}, v{t}, v{r}")

    LA, LV = 104, 106

    def lse_addr():
        e(f"s_lshl_b32 s{T + 15}, s{S_XI}, 12")
        e(f"s_lshr_b32 s{T + 16}, s{S_WAVE}, 1")
        e(f"s_lshl_b32 s{T + 16}, s{T + 16}, 10")
        e(f"s_add_u32 s{T + 15}, s{T + 15}, s{T + 16}")
        e(f"s_lshl_b32 s{T + 16}, s{S_B}, 3")
        e(f"s_add_u32 s{T + 15}, s{T + 15}, s{T + 16}")
        e(f"s_add_u32 s{T + 15}, s{T + 15}, {WS_LSE}")
        e(f"v_lshlrev_b32 v{LA}, 7, v1")

    def lse_loads():
        e(f"buffer_load_dwordx2 v[{LV}:{LV + 1}], v{LA}, {WSR}, s{T + 15} offen sc1")
        e(f"buffer_load_dwordx2 v[{LV + 2}:{LV + 3}], v{LA}, {WSR}, s{T + 15} offen offset:512 sc1")

    def weights(waited=False):
        lab = e.label("pw")
        e(f"s_mov_b32 s{T + 17}, {POLL_LIMIT}")
        if waited:
            e(f"s_branch {lab}_c")
        e(f"{lab}:")
        e("s_waitcnt vmcnt(0)")
        if waited:
            e(f"{lab}_c:")
        tagcheck([LV + 1, LV + 3], 0, 0)
        e("s_cmp_eq_u64 vcc, 0")
        e(f"s_cbranch_scc1 {lab}_d")
        e(f"s_sub_u32 s{T + 17}, s{T + 17}, 1")
        e(f"s_cbranch_scc1 {lab}_d")
        e("s_mov_b64 exec, vcc")
        e("s_sleep 2")
        lse_loads()
        e(f"s_branch {lab}")
        e(f"{lab}_d:")
        e("s_mov_b64 exec, -1")
        e(f"v_max_f32 v110, v{LV}, v{LV + 2}")
        xrow_reduce("v_max_f32", 110, 111)
        e(f"v_sub_f32 v{LV}, v{LV}, v110")
        e(f"v_sub_f32 v{LV + 2}, v{LV + 2}, v110")
        e(f"v_exp_f32 v{LV}, v{LV}")
        e(f"v_exp_f32 v{LV + 2}, v{LV + 2}")
        e("s_nop 0")
        e(f"v_add_f32 v110, v{LV}, v{LV + 2}")
        xrow_reduce("v_add_f32", 110, 111)
        e("v_rcp_f32 v110, v110")
        e("s_nop 0")
        e(f"v_mul_f32 v111, v{LV + 2}, v110")
        e(f"v_mul_f32 v110, v{LV}, v110")

    for l in HEADER.strip("\n").split("\n"):
        e.L.append(l)
    e.L.append(f"; @launch grid=(256,1,1) block=(512,1,1) lds={LDS_BYTES}")
    e('.amdgcn_target "amdgcn-amd-amdhsa--gfx950"')
    e(".text")
    e(f".globl {KN}_kernel")
    e(".p2align 8")
    e(f".type {KN}_kernel,@function")
    e(f"{KN}_kernel:")
    if diag:
        e(f"s_memrealtime s[{S_STAMP}:{S_STAMP + 1}]")
    e("s_cmp_ge_u32 s2, 256")
    e("s_cbranch_scc1 L_end")
    e("s_load_dwordx16 s[4:19], s[0:1], 0")
    e("v_lshrrev_b32 v1, 6, v0")
    e(f"s_and_b32 s{S_XI}, s2, 7")
    e(f"s_lshr_b32 s{S_Y}, s2, 3")
    e(f"v_readfirstlane_b32 s{S_WAVE}, v1")
    if pfn < 256:
        e(f"s_cmp_lt_u32 s2, {pfn}")
        e("s_cbranch_scc0 L_nopf")
    e("s_getpc_b64 s[60:61]")
    e("L_pc:")
    e(f"s_sub_u32 s60, s60, L_pc-{KN}_kernel")
    e("s_subb_u32 s61, s61, 0")
    e("v_lshlrev_b32 v1, 4, v0")
    e("global_load_dword v255, v1, s[60:61]")
    e("v_add_u32 v1, 0x2000, v1")
    e("global_load_dword v255, v1, s[60:61]")
    e("L_nopf:")
    e("v_and_b32 v0, 63, v0")
    e(f"s_lshr_b32 s{S_B}, s{S_Y}, 3")
    e(f"s_and_b32 s{S_SP}, s{S_Y}, 7")
    e("v_lshrrev_b32 v1, 4, v0")
    e("v_and_b32 v2, 15, v0")
    e(f"s_cmp_lt_u32 s{S_WAVE}, 4")
    e("s_cbranch_scc1 L_H")

    S_L, S_KH = 70, 71

    def roles():
        e(f"s_mov_b32 s{S_M16}, 0xffff0000")
        e("v_mov_b32 v9, 0")
        e(f"s_sub_u32 s{S_L}, s{S_Y}, 16")
        e(f"s_lshl_b32 s{S_L}, s{S_L}, 3")
        e(f"s_add_u32 s{S_L}, s{S_L}, s{S_XI}")
        e(f"s_cmp_lt_u32 s{S_Y}, 16")
        e(f"s_cselect_b32 s{S_KH}, s{S_B}, s{S_L}")
        e(f"s_and_b32 s{S_KH}, s{S_KH}, 1")
        e(f"s_lshr_b32 s{S_L}, s{S_L}, 1")

    SW = T
    ROT = T + 1
    VK = 4
    VV = 8
    e(f"s_sub_u32 s{SW}, s{S_WAVE}, 4")
    e(f"s_lshl_b32 s{T + 2}, s{S_B}, 25")
    e(f"s_lshl_b32 s{T + 3}, s{S_XI}, 22")
    e(f"s_add_u32 s{T + 2}, s{T + 2}, s{T + 3}")
    e(f"s_lshl_b32 s{T + 3}, s{S_SP}, 17")
    e(f"s_add_u32 s{T + 2}, s{T + 2}, s{T + 3}")
    e(f"s_add_u32 s{T + 2}, s{T + 2}, 0x300000")
    e(f"s_add_u32 s{ROT}, s{S_XI}, s{S_Y}")
    e(f"s_add_u32 s{ROT}, s{ROT}, s{SW}")
    e(f"s_and_b32 s{ROT}, s{ROT}, 31")
    e(f"s_lshl_b32 s{ROT}, s{ROT}, 12")
    e("v_lshlrev_b32 v3, 2, v1")
    e("v_xor_b32 v3, v2, v3")
    e("v_lshlrev_b32 v3, 4, v3")
    e(f"v_lshl_add_u32 v{VK}, v1, 8, v3")
    e(f"v_xor_b32 v{VK + 1}, 16, v{VK}")
    e(f"v_xor_b32 v{VK + 2}, 32, v{VK}")
    e(f"v_xor_b32 v{VK + 3}, 48, v{VK}")
    e(f"s_lshl_b32 s{T + 4}, s{SW}, 15")
    e(f"s_mov_b32 m0, s{T + 4}")
    e(f"s_mov_b32 s{R_A + 2}, 0x20000")
    e(f"s_mov_b32 s{R_A + 3}, 0x20000")
    estamp(1)
    e("s_waitcnt lgkmcnt(0)")
    estamp(2)
    e(f"s_add_u32 s{R_A}, s{S_K}, s{T + 2}")
    e(f"s_addc_u32 s{R_A + 1}, s{S_K + 1}, 0")

    def ktile(th, off=None):
        so = f"s{ROT}" if off is None else f"s{off}"
        for q in range(4):
            e(f"buffer_load_dwordx4 v{VK + q}, s[{R_A}:{R_A + 3}], {so} offen offset:{q * 1024} {kpol} lds")
            if th is not None:
                e(f"s_waitcnt vmcnt({th})")

    def knext():
        e(f"s_add_u32 s{T + 5}, s{T + 5}, 16384")
        e(f"s_and_b32 s{T + 5}, s{T + 5}, 0x1ffff")
        e(f"s_add_u32 s{T + 4}, s{T + 4}, 4096")
        e(f"s_mov_b32 m0, s{T + 4}")

    ktile(None)
    karg2()
    roles()
    e(f"s_sub_u32 s{T + 14}, s{S_Y}, 23")
    e(f"s_lshl_b32 s{T + 8}, s{S_KH}, 2")
    e(f"s_add_u32 s{T + 8}, s{T + 8}, s{SW}")
    e(f"s_lshl_b32 s{T + 8}, s{T + 8}, 6")
    e(f"s_mul_i32 s{T + 9}, s{SW}, 48")
    e(f"s_lshl_b32 s{T + 10}, s{T + 14}, 8")
    e(f"s_add_u32 s{T + 9}, s{T + 9}, s{T + 10}")
    e(f"s_cmp_lt_u32 s{T + 14}, 7")
    e(f"s_cselect_b32 s{T + 8}, s{T + 9}, s{T + 8}")
    e(f"s_cselect_b32 s{T + 15}, 1, 0")
    e(f"s_lshl_b32 s{T + 12}, s{SW}, 13")
    e(f"s_cmp_eq_u32 s{T + 15}, 1")
    e(f"s_mul_i32 s{T + 11}, s{SW}, 6144")
    e(f"s_cselect_b32 s{T + 11}, s{T + 11}, s{T + 12}")
    e(f"s_add_u32 s{T + 11}, s{T + 11}, {L_T0}")
    e(f"s_lshl_b32 s{T + 9}, s{S_XI}, 10")
    if "cgrot" in xp:
        e(f"s_add_u32 s{T + 10}, s{S_SP}, 2")
        e(f"s_and_b32 s{T + 10}, s{T + 10}, 7")
        e(f"s_lshl_b32 s{T + 10}, s{T + 10}, 7")
    else:
        e(f"s_lshl_b32 s{T + 10}, s{S_SP}, 7")
    e(f"s_add_u32 s{T + 9}, s{T + 9}, s{T + 10}")
    e(f"s_mov_b32 s{T + 10}, 8192")
    e(f"s_mov_b32 s{T + 12}, {512 * 8192}")
    e(f"s_mov_b32 s{R_C}, s{S_WQ}")
    e(f"s_mov_b32 s{R_C + 1}, s{S_WQ + 1}")
    e(f"s_cmp_lt_u32 s{S_Y}, 16")
    e("s_cbranch_scc1 L_et")
    e(f"s_lshl_b32 s{T + 9}, s{S_L}, 7")
    e(f"s_mov_b32 s{T + 10}, 3584")
    e(f"s_mov_b32 s{T + 12}, {512 * 3584}")
    e(f"s_mov_b32 s{R_C}, s{S_W1}")
    e(f"s_mov_b32 s{R_C + 1}, s{S_W1 + 1}")
    e(f"s_cmp_lt_u32 s{S_Y}, 23")
    e("s_cbranch_scc1 L_et")
    e(f"s_lshl_b32 s{T + 9}, s{S_XI}, 7")
    e(f"s_mov_b32 s{T + 10}, 1024")
    e(f"s_mov_b32 s{R_C}, s{S_W2}")
    e(f"s_mov_b32 s{R_C + 1}, s{S_W2 + 1}")
    e(f"s_cmp_eq_u32 s{T + 15}, 1")
    e(f"s_cselect_b32 s{T + 12}, {1792 * 1024}, 0")
    e("L_et:")
    e(f"s_mul_i32 s{T + 8}, s{T + 8}, s{T + 10}")
    e(f"s_add_u32 s{T + 8}, s{T + 8}, s{T + 9}")
    e(f"s_lshl_b32 s{T + 9}, s{T + 10}, 3")
    e(f"s_mov_b32 s{R_C + 2}, s{T + 12}")
    e(f"s_mov_b32 s{R_C + 3}, 0x20000")
    e("v_lshrrev_b32 v9, 3, v0")
    e(f"v_mul_lo_u32 v9, v9, s{T + 10}")
    e("v_and_b32 v10, 7, v0")
    e("v_lshl_add_u32 v11, v10, 4, v9")
    def wload():
        e(f"s_mov_b32 m0, s{T + 11}")
        e(f"s_add_u32 s{T + 11}, s{T + 11}, 1024")
        e(f"buffer_load_dwordx4 v11, s[{R_C}:{R_C + 3}], s{T + 8} offen {wpol} lds")
        e(f"s_add_u32 s{T + 8}, s{T + 8}, s{T + 9}")

    if not wint:
        for ii in range(8):
            if ii == 6:
                e(f"s_cmp_eq_u32 s{T + 15}, 1")
                e("s_cbranch_scc1 L_et2")
            wload()
        e("L_et2:")
        srd_off(R_B, S_V, T + 2, 0x20000)
        e(f"v_lshlrev_b32 v{VV}, 4, v0")
        e(f"s_mov_b32 s{T + 5}, s{ROT}")
        knext()
        ktile(thr + 2, T + 5)
        knext()
        ktile(thr + 2, T + 5)
        knext()
        e("s_waitcnt vmcnt(8)")
    else:
        srd_off(R_B, S_V, T + 2, 0x20000)
        e(f"v_lshlrev_b32 v{VV}, 4, v0")
        e(f"s_mov_b32 s{T + 5}, s{ROT}")
        for kt in range(2):
            knext()
            for q in range(4):
                if kt == 1 and q >= 2:
                    lb = e.label("w2s")
                    e(f"s_cmp_eq_u32 s{T + 15}, 1")
                    e(f"s_cbranch_scc1 {lb}")
                    wload()
                    e(f"{lb}:")
                else:
                    wload()
                e(f"s_mov_b32 m0, s{T + 4}")
                e("s_nop 0")
                e(f"buffer_load_dwordx4 v{VK + q}, s[{R_A}:{R_A + 3}], s{T + 5} offen offset:{q * 1024} {kpol} lds")
                e(f"s_waitcnt vmcnt({thr + 3})")
        knext()
        ktile(thr + 2, T + 5)
        knext()
        e("s_waitcnt vmcnt(5)")
    e("s_barrier")
    estamp(3)
    e(f"s_mov_b32 s{T + 6}, {nshallow - (3 if wint else 2)}")
    e("L_kloop:")
    ktile(thr, T + 5)
    knext()
    e(f"s_sub_u32 s{T + 6}, s{T + 6}, 1")
    e(f"s_cmp_lg_u32 s{T + 6}, 0")
    e("s_cbranch_scc1 L_kloop")
    estamp(4)
    e(f"s_mov_b32 s{T + 6}, {7 - nshallow}")
    e("L_kloop2:")
    ktile(thr2, T + 5)
    knext()
    e(f"s_sub_u32 s{T + 6}, s{T + 6}, 1")
    e(f"s_cmp_lg_u32 s{T + 6}, 0")
    e("s_cbranch_scc1 L_kloop2")
    stamp(1)
    e("s_waitcnt lgkmcnt(0)")
    epoch_load()

    VB = 128

    def vtile_off(t):
        e(f"s_add_u32 s{T + 7}, s{ROT}, {t * 16384}")
        e(f"s_and_b32 s{T + 7}, s{T + 7}, 0x1ffff")

    def vload(u, k0, k1, throttle=None):
        for k in range(k0, k1):
            Tt, i = k >> 2, k & 3
            if i == 0 or k == k0:
                vtile_off(2 * u + Tt)
            r = VB + u * 32 + k * 4
            e(f"buffer_load_dwordx4 {vr(r, 4)}, v{VV}, s[{R_B}:{R_B + 3}], s{T + 7} offen offset:{i * 1024} {kpol}")
            if throttle is not None:
                e(f"s_waitcnt vmcnt({throttle})")

    vload(0, 0, 8, thr2)
    if late:
        vload(1, 0, 8, thr2)
    e(f"s_mov_b32 s{S_SC}, 0x3db504f3")
    e(f"s_mov_b32 s{S_L2E}, 0x3fb8aa3b")
    e(f"s_mov_b32 s{S_PLO}, 0x05040100")
    e(f"s_mov_b32 s{S_PHI}, 0x07060302")
    VKA = 9
    e("v_and_b32 v3, 3, v2")
    e("v_lshlrev_b32 v3, 2, v3")
    e("v_lshrrev_b32 v13, 2, v2")
    e("v_add_u32 v3, v3, v13")
    e("v_lshlrev_b32 v3, 8, v3")
    e("v_xor_b32 v13, v1, v2")
    e("v_lshl_add_u32 v3, v13, 4, v3")
    e(f"s_lshl_b32 s{T + 4}, s{SW}, 15")
    e(f"v_add_u32 v{VKA}, s{T + 4}, v3")
    e(f"v_xor_b32 v{VKA + 1}, 64, v{VKA}")
    e(f"v_xor_b32 v{VKA + 2}, 0x80, v{VKA}")
    e(f"v_xor_b32 v{VKA + 3}, 0xc0, v{VKA}")
    e("v_lshrrev_b32 v13, 2, v2")
    e("v_lshlrev_b32 v13, 8, v13")
    e("v_lshl_add_u32 v13, v1, 4, v13")
    e(f"v_add_u32 v13, {L_QB}, v13")
    e(f"s_lshl_b32 s{T + 4}, s{SW}, 8")
    e(f"s_add_u32 s{T + 4}, s{T + 4}, {L_MAX}")
    e("v_lshlrev_b32 v14, 2, v0")
    e(f"v_add_u32 v15, s{T + 4}, v14")
    e(f"v_add_u32 v14, {L_MAX}, v14")
    e(f"s_waitcnt vmcnt({16 if late else 8}) lgkmcnt(0)")
    epoch_tag()
    stamp(2)
    e("s_barrier")
    stamp(3)
    QF = 16
    KF = 32
    SS = 64
    for s in range(4):
        e(f"ds_read_b128 {vr(QF + 4 * s, 4)}, v13 offset:{64 * s}")

    def kread(t):
        for s in range(4):
            e(f"ds_read_b128 {vr(KF + 16 * (t & 1) + 4 * s, 4)}, v{VKA + s} offset:{t * 4096}")

    kread(0)
    for t in range(8):
        vload(1 + late, t, t + 1)
        if t < 7:
            kread(t + 1)
            e("s_waitcnt lgkmcnt(4)")
        else:
            e("s_waitcnt lgkmcnt(0)")
        for s in range(4):
            c = "0" if s == 0 else vr(SS + 4 * t, 4)
            e(f"v_mfma_f32_16x16x32_bf16 {vr(SS + 4 * t, 4)}, {vr(KF + 16 * (t & 1) + 4 * s, 4)}, {vr(QF + 4 * s, 4)}, {c}")
    stamp(4)
    TMP = 32
    e("s_nop 7")
    for p in range(16):
        a = SS + 2 * p
        t0 = TMP + (p & 1)
        if p % 4 == 1:
            vload(2 + late, p // 4, p // 4 + 1)
        e(f"v_cvt_pk_bf16_f32 v{t0}, v{a}, v{a + 1}")
        e(f"v_lshlrev_b32 v{a}, 16, v{t0}")
        e(f"v_and_b32 v{a + 1}, s{S_M16}, v{t0}")
        e(f"v_mul_f32 v{a}, s{S_SC}, v{a}")
        e(f"v_mul_f32 v{a + 1}, s{S_SC}, v{a + 1}")
        e(f"v_cvt_pk_bf16_f32 v{t0}, v{a}, v{a + 1}")
        e(f"v_lshlrev_b32 v{a}, 16, v{t0}")
        e(f"v_and_b32 v{a + 1}, s{S_M16}, v{t0}")
    MX = 34
    e(f"v_max3_f32 v{MX}, v{SS}, v{SS + 1}, v{SS + 2}")
    for k in range(3, 31, 2):
        e(f"v_max3_f32 v{MX}, v{MX}, v{SS + k}, v{SS + k + 1}")
    e(f"v_max_f32 v{MX}, v{MX}, v{SS + 31}")
    xrow_reduce("v_max_f32", MX, 35)
    e(f"ds_write_b32 v15, v{MX}")
    e("s_waitcnt lgkmcnt(0)")
    stamp(5)
    e("s_barrier")
    e(f"ds_read2st64_b32 v[36:37], v14 offset0:0 offset1:1")
    e(f"ds_read2st64_b32 v[38:39], v14 offset0:2 offset1:3")
    e("s_waitcnt lgkmcnt(0)")
    e(f"v_max3_f32 v{MX}, v36, v37, v38")
    e(f"v_max_f32 v{MX}, v{MX}, v39")
    MC = 35
    e(f"v_mul_f32 v{MC}, s{S_L2E}, v{MX}")
    PP = 40
    e(f"s_sub_u32 s{T + 10}, s{S_Y}, 23")
    e(f"s_lshl_b32 s{T + 8}, s{T + 10}, 18")
    e(f"s_lshl_b32 s{T + 9}, s{S_XI}, 7")
    e(f"s_add_u32 s{T + 8}, s{T + 8}, s{T + 9}")
    e(f"s_lshl_b32 s{T + 9}, s{SW}, 14")
    e(f"s_add_u32 s{T + 8}, s{T + 8}, s{T + 9}")
    e(f"s_add_u32 s{T + 8}, s{T + 8}, {192 * 1024}")
    e(f"s_cmp_lt_u32 s{T + 10}, 7")
    e(f"s_cselect_b32 s{T + 10}, {1792 * 1024}, 0")
    srd(R_D, S_W2, S_W2 + 1, f"s{T + 10}")
    e(f"s_lshl_b32 s{T + 9}, s{SW}, 11")
    e(f"s_add_u32 s{T + 9}, s{T + 9}, {L_W2B}")
    e("v_lshrrev_b32 v3, 3, v0")
    e("v_lshlrev_b32 v3, 10, v3")
    e("v_and_b32 v4, 7, v0")
    e("v_lshl_add_u32 v3, v4, 4, v3")
    if "wlin" in xp:
        e("v_lshlrev_b32 v3, 4, v0")
        e(f"s_lshl_b32 s{T + 8}, s2, 14")
        e(f"s_and_b32 s{T + 8}, s{T + 8}, 0xfffff")

    def w2load():
        e(f"s_mov_b32 m0, s{T + 9}")
        e(f"s_add_u32 s{T + 9}, s{T + 9}, 1024")
        e(f"buffer_load_dwordx4 v3, s[{R_D}:{R_D + 3}], s{T + 8} offen {wpol} lds")
        e(f"s_add_u32 s{T + 8}, s{T + 8}, {1024 if 'wlin' in xp else 8192}")

    for p in range(16):
        a = SS + 2 * p
        e(f"v_fma_f32 v{a}, v{a}, s{S_L2E}, -v{MC}")
        e(f"v_fma_f32 v{a + 1}, v{a + 1}, s{S_L2E}, -v{MC}")
        e(f"v_exp_f32 v{a}, v{a}")
        e(f"v_exp_f32 v{a + 1}, v{a + 1}")
        if p > 0:
            e(f"v_cvt_pk_bf16_f32 v{PP + p - 1}, v{a - 2}, v{a - 1}")
        if p in (2, 5):
            w2load()
        if p >= 8 and p % 2 == 1:
            vload(2 + late, 4 + (p - 8) // 2, 5 + (p - 8) // 2)
    ACC = 64
    ACL = 96
    ONE = 100
    PT = 16
    for k in range(4):
        e(f"v_mov_b32 v{ONE + k}, 0x3f803f80")
    e(f"v_cvt_pk_bf16_f32 v{PP + 15}, v{SS + 30}, v{SS + 31}")
    e(f"s_lshl_b32 s{T + 8}, s{SW}, 8")
    e(f"s_add_u32 s{T + 8}, s{T + 8}, {L_LSUM}")
    e("v_lshlrev_b32 v6, 2, v0")
    e(f"v_add_u32 v5, s{T + 8}, v6")
    for u in range(4):
        c = "0" if u == 0 else vr(ACL, 4)
        e(f"v_mfma_f32_16x16x32_bf16 {vr(ACL, 4)}, {vr(PP + 4 * u, 4)}, {vr(ONE, 4)}, {c}")
    e("s_nop 7")
    e(f"ds_write_b32 v5, v{ACL}")
    e("s_waitcnt lgkmcnt(0)")
    stamp(6)
    e("s_barrier")
    e(f"s_lshl_b32 s{T + 12}, s{S_B}, 10")
    e(f"s_lshl_b32 s{T + 13}, s{S_XI}, 7")
    e(f"s_add_u32 s{T + 12}, s{T + 12}, s{T + 13}")
    e(f"s_lshl_b32 s{T + 13}, s{S_SP}, 4")
    e(f"s_add_u32 s{T + 12}, s{T + 12}, s{T + 13}")
    e(f"s_load_dwordx4 s[{S_RES}:{S_RES + 3}], s[{S_X}:{S_X + 1}], s{T + 12}")

    def pv(u, loads=None):
        first = u == 0
        A = vr(PP + 4 * u, 4)

        def perms(w):
            base = PT + 8 * (w & 1)
            for d in range(4):
                a = VB + u * 32 + (2 * d) * 4 + w
                b = VB + u * 32 + (2 * d + 1) * 4 + w
                e(f"v_perm_b32 v{base + d}, v{b}, v{a}, s{S_PLO}")
            for d in range(4):
                a = VB + u * 32 + (2 * d) * 4 + w
                b = VB + u * 32 + (2 * d + 1) * 4 + w
                e(f"v_perm_b32 v{base + 4 + d}, v{b}, v{a}, s{S_PHI}")

        def mf(w):
            base = PT + 8 * (w & 1)
            for hi in range(2):
                j = 2 * w + hi
                c = "0" if first else vr(ACC + 4 * j, 4)
                e(f"v_mfma_f32_16x16x32_bf16 {vr(ACC + 4 * j, 4)}, {A}, {vr(base + 4 * hi, 4)}, {c}")

        if loads:
            loads(0)
        perms(0)
        for w in range(1, 4):
            if loads:
                loads(w)
            perms(w)
            mf(w - 1)
        e("s_nop 1")
        mf(3)

    if not late:
        e("s_waitcnt vmcnt(18)")
        pv(0, lambda w: vload(3, w, w + 1))
        e("s_waitcnt vmcnt(14)")
        pv(1, lambda w: vload(3, 4 + w, 5 + w))
    srd(R_WS, S_WS, S_WS + 1, WS_SIZE)
    e(f"s_lshl_b32 s{T + 8}, s{S_XI}, 2")
    e(f"s_add_u32 s{T + 8}, s{T + 8}, s{S_B}")
    e(f"s_lshl_b32 s{T + 8}, s{T + 8}, 17")
    e(f"s_lshl_b32 s{T + 9}, s{S_SP}, 7")
    e(f"s_add_u32 s{T + 8}, s{T + 8}, s{T + 9}")
    e(f"s_lshl_b32 s{T + 9}, s{SW}, 15")
    e(f"s_add_u32 s{T + 8}, s{T + 8}, s{T + 9}")
    srd(R_C, S_WO, S_WO + 1, 4096 * 1024)
    e(f"s_lshl_b32 s{T + 9}, s{SW}, 12")
    e(f"s_add_u32 s{T + 9}, s{T + 9}, {L_WO}")
    if "wlin" in xp:
        e(f"s_lshl_b32 s{T + 8}, s2, 14")
        e(f"s_lshl_b32 s{T + 10}, s{SW}, 12")
        e(f"s_add_u32 s{T + 8}, s{T + 8}, s{T + 10}")

    def woload(w=None):
        e(f"s_mov_b32 m0, s{T + 9}")
        e(f"s_add_u32 s{T + 9}, s{T + 9}, 1024")
        e(f"buffer_load_dwordx4 v3, s[{R_C}:{R_C + 3}], s{T + 8} offen {wpol} lds")
        e(f"s_add_u32 s{T + 8}, s{T + 8}, {1024 if 'wlin' in xp else 8192}")

    if not late:
        for ii in range(4):
            woload()
        e("s_waitcnt vmcnt(12)")
        e("s_barrier")
        pv(2)
    else:
        e("s_waitcnt vmcnt(26)")
        pv(0, woload)
        e("s_waitcnt vmcnt(22)")
        pv(1)
        e("s_waitcnt vmcnt(8)")
        e("s_barrier")
        pv(2)
    e(f"s_lshl_b32 s{T + 8}, s{SW}, 11")
    e("v_lshlrev_b32 v3, 5, v0")
    e(f"v_add_u32 v4, s{T + 8}, v3")
    e("s_waitcnt vmcnt(4)")
    stamp(7)
    pv(3)
    e("s_nop 1")
    for j in range(8):
        e(f"v_mov_b32 v{16 + j}, v{ACC + 4 * j}")
    e("ds_write_b128 v4, v[16:19]")
    e("ds_write_b128 v4, v[20:23] offset:16")
    e("s_waitcnt lgkmcnt(0)")
    stamp(8)
    tstamp(1)
    e("s_barrier")
    tstamp(2)
    e("s_branch L_wts2")

    e("L_H:")
    e("s_setprio 3")
    roles()
    e("v_mov_b32 v3, 0")
    estamp(1)
    e(f"s_cmp_lg_u32 s{S_WAVE}, 0")
    e("s_cbranch_scc1 L_H23")
    e(f"s_cmp_ge_u32 s{S_Y}, 23")
    e("s_cbranch_scc1 L_H23")
    P_QA, P_OUT = T + 5, T + 8
    e(f"s_lshl_b32 s{P_QA}, s{S_KH}, 1")
    e(f"s_lshl_b32 s{P_OUT}, s{S_XI}, 14")
    if "cgrot" in xp:
        e(f"s_add_u32 s{T}, s{S_SP}, 2")
        e(f"s_and_b32 s{T}, s{T}, 7")
        e(f"s_lshl_b32 s{T + 1}, s{S_KH}, 3")
        e(f"s_add_u32 s{T}, s{T}, s{T + 1}")
        e(f"s_lshl_b32 s{T}, s{T}, 10")
    else:
        e(f"s_lshl_b32 s{T}, s{S_Y}, 10")
    e(f"s_add_u32 s{P_OUT}, s{P_OUT}, s{T}")
    e(f"s_add_u32 s{P_OUT}, s{P_OUT}, {WS_Q}")
    e(f"s_lshl_b32 s{T}, s{S_L}, 1")
    e(f"s_add_u32 s{T}, s{T}, s{S_KH}")
    e(f"s_lshl_b32 s{T}, s{T}, 10")
    e(f"s_add_u32 s{T}, s{T}, {WS_H}")
    e(f"s_cmp_lt_u32 s{S_Y}, 16")
    e(f"s_cselect_b32 s{P_OUT}, s{P_OUT}, s{T}")
    e("v_and_b32 v3, 3, v2")
    e("v_lshrrev_b32 v10, 2, v2")
    e("v_lshlrev_b32 v4, 10, v3")
    e("v_lshl_add_u32 v4, v10, 8, v4")
    e("v_lshl_add_u32 v4, v1, 4, v4")
    e("s_waitcnt lgkmcnt(0)")
    estamp(2)
    srd(R_B, S_X, S_X + 1, 4096)
    XR = 16
    for tau in range(4):
        e(f"buffer_load_dwordx4 {vr(XR + 4 * tau, 4)}, v4, s[{R_B}:{R_B + 3}], 0 offen offset:{64 * tau}")
    karg2()
    estamp(4)
    e("v_lshlrev_b32 v14, 10, v1")
    e("v_lshl_add_u32 v14, v10, 7, v14")
    e("v_lshl_add_u32 v14, v3, 3, v14")
    e(f"v_add_u32 v14, {L_T0}, v14")
    e(f"v_subrev_u32 v11, s{P_QA}, v10")
    e("v_and_b32 v11, 3, v11")
    e("v_lshlrev_b32 v5, 8, v3")
    e("v_lshl_add_u32 v5, v11, 6, v5")
    e("v_lshl_add_u32 v5, v1, 4, v5")
    e("v_cmp_ne_u32 s[64:65], 1, v11")
    e("v_cmp_ne_u32 s[66:67], 2, v11")
    e("v_cmp_ne_u32 s[68:69], 3, v11")
    e("s_waitcnt lgkmcnt(0)")
    epoch_load()
    srd(R_WS, S_WS, S_WS + 1, WS_SIZE)
    e("s_waitcnt vmcnt(0)")
    estamp(6)
    stamp(2)
    XF = 32
    for k in range(16):
        e(f"v_lshlrev_b32 v{XF + 2 * k}, 16, v{XR + k}")
        e(f"v_and_b32 v{XF + 2 * k + 1}, s{S_M16}, v{XR + k}")

    def lane_sum(r, t):
        e("s_nop 1")
        e(f"v_add_f32_dpp v{r}, v{r}, v{r} row_ror:4 row_mask:0xf bank_mask:0xf")
        e("s_nop 1")
        e(f"v_add_f32_dpp v{r}, v{r}, v{r} row_ror:8 row_mask:0xf bank_mask:0xf")
        xrow_reduce("v_add_f32", r, t)

    e(f"v_add_f32 v7, v{XF}, v{XF + 1}")
    e(f"v_add_f32 v8, v{XF + 2}, v{XF + 3}")
    for k in range(4, 32, 2):
        e(f"v_add_f32 v7, v7, v{XF + k}")
        e(f"v_add_f32 v8, v8, v{XF + k + 1}")
    e("v_add_f32 v7, v7, v8")
    lane_sum(7, 9)
    e("v_mul_f32 v7, 0x3b000000, v7")
    e(f"v_sub_f32 v12, v{XF}, v7")
    e(f"v_sub_f32 v6, v{XF + 1}, v7")
    e("v_mul_f32 v8, v12, v12")
    e("v_mul_f32 v13, v6, v6")
    for k in range(2, 32, 2):
        e(f"v_sub_f32 v12, v{XF + k}, v7")
        e(f"v_sub_f32 v6, v{XF + k + 1}, v7")
        e("v_fmac_f32 v8, v12, v12")
        e("v_fmac_f32 v13, v6, v6")
    e("v_add_f32 v8, v8, v13")
    lane_sum(8, 9)
    e("v_mul_f32 v8, 0x3b000000, v8")
    e("v_cvt_pk_bf16_f32 v9, v7, v8")
    e("v_lshlrev_b32 v7, 16, v9")
    e(f"v_and_b32 v8, s{S_M16}, v9")
    e("v_add_f32 v8, 0x3727c5ac, v8")
    e("v_cvt_pk_bf16_f32 v9, v8, v8")
    e(f"v_and_b32 v8, s{S_M16}, v9")
    e("v_sqrt_f32 v8, v8")
    e("s_nop 0")
    e("v_cvt_pk_bf16_f32 v9, v8, v8")
    e(f"v_and_b32 v8, s{S_M16}, v9")
    e("v_rcp_f32 v8, v8")
    BF = 16
    for k in range(16):
        a = XF + 2 * k
        e(f"v_sub_f32 v{a}, v{a}, v7")
        e(f"v_sub_f32 v{a + 1}, v{a + 1}, v7")
        e(f"v_cvt_pk_bf16_f32 v9, v{a}, v{a + 1}")
        e(f"v_lshlrev_b32 v{a}, 16, v9")
        e(f"v_and_b32 v{a + 1}, s{S_M16}, v9")
        e(f"v_mul_f32 v{a}, v{a}, v8")
        e(f"v_mul_f32 v{a + 1}, v{a + 1}, v8")
        e(f"v_cvt_pk_bf16_f32 v{BF + k}, v{a}, v{a + 1}")
    e("s_waitcnt lgkmcnt(0)")
    epoch_tag()
    estamp(7)
    stamp(3)
    e("s_barrier")
    estamp(8)
    stamp(4)
    AF = 64
    DD = 96

    def wread(bi):
        ct, hf = bi >> 1, bi & 1
        for t in range(4):
            r = AF + 16 * (bi & 1) + 4 * t
            e(f"ds_read_b64_tr_b16 {vr(r, 2)}, v14 offset:{(4 * hf + t) * 4096 + ct * 32}")
            e(f"ds_read_b64_tr_b16 {vr(r + 2, 2)}, v14 offset:{(4 * hf + t) * 4096 + 512 + ct * 32}")

    wread(0)
    for bi in range(8):
        if bi < 7:
            wread(bi + 1)
            e("s_waitcnt lgkmcnt(8)")
        else:
            e("s_waitcnt lgkmcnt(0)")
        d = DD + 16 * (bi & 1) + 4 * (bi >> 1)
        for t in range(4):
            c = "0" if t == 0 else vr(d, 4)
            e(f"v_mfma_f32_16x16x32_bf16 {vr(d, 4)}, {vr(AF + 16 * (bi & 1) + 4 * t, 4)}, {vr(BF + 4 * t, 4)}, {c}")
    e(f"s_mov_b32 s{T}, 0x07060503")
    e(f"s_mov_b32 s{T + 1}, 0x07060502")
    e(f"s_mov_b32 s{T + 2}, 0x07060501")
    e("s_nop 4")
    for k in range(16):
        e(f"v_add_f32_dpp v{DD + k}, v{DD + 16 + k}, v{DD + k} row_ror:12 row_mask:0xf bank_mask:0xf")
    for ct in range(1, 4):
        e(f"s_mov_b64 vcc, s[{62 + 2 * ct}:{63 + 2 * ct}]")
        for i in range(4):
            e(f"v_cndmask_b32_dpp v{DD + i}, v{DD + 4 * ct + i}, v{DD + i}, vcc row_ror:{4 * ct} row_mask:0xf bank_mask:0xf")
    for i in range(4):
        e(f"v_add_u32 v{DD + i}, 0x80, v{DD + i}")
    for i in range(3):
        e(f"v_perm_b32 v{112 + i}, v{DD + i}, v{DD + 3}, s{T + i}")
    e("v_xor_b32 v115, v112, v113")
    e("v_xor_b32 v115, v115, v114")
    e(f"v_xor_b32 v115, s{S_TAG}, v115")
    if "nohand" not in xp:
        e(f"buffer_store_dwordx4 v[112:115], v5, {WSR}, s{P_OUT} offen sc1")
    stamp(5)
    e("s_waitcnt vmcnt(0)")
    stamp(6)
    e("L_qg:")
    if "nohand" in xp or "pubonly" in xp:
        e("s_branch L_Hb1")
    e(f"s_lshl_b32 s{T}, s{S_XI}, 14")
    e(f"s_lshl_b32 s{T + 1}, s{S_B}, 8")
    e(f"s_add_u32 s{T}, s{T}, s{T + 1}")
    e(f"s_add_u32 s{T}, s{T}, {WS_Q}")
    e(f"s_add_u32 s{T + 1}, s{T}, 4096")
    e(f"s_add_u32 s{T + 2}, s{T}, 8192")
    e(f"s_add_u32 s{T + 3}, s{T}, 12288")
    e("v_lshlrev_b32 v5, 10, v1")
    e("v_lshl_add_u32 v5, v2, 4, v5")
    e("v_lshlrev_b32 v6, 3, v0")
    e(f"v_add_u32 v6, {L_QB}, v6")
    e(f"s_mov_b32 s{T + 4}, 0x04000c0c")
    e(f"s_mov_b32 s{T + 5}, 0x0706000c")
    QG = 16

    def unit_checks(regs, t0, t1):
        for r in regs:
            e(f"v_xor_b32 v{r + 3}, v{r + 3}, v{r}")
        for r in regs:
            e(f"v_xor_b32 v{r + 3}, v{r + 3}, v{r + 1}")
        for r in regs:
            e(f"v_xor_b32 v{r + 3}, v{r + 3}, v{r + 2}")
        tagcheck([r + 3 for r in regs], t0, t1)

    def unit_unpack(r):
        e(f"v_perm_b32 v{r + 3}, v{r}, v{r + 1}, s{T + 4}")
        e(f"v_perm_b32 v{r + 3}, v{r + 3}, v{r + 2}, s{T + 5}")
        for i in range(3):
            e(f"v_and_b32 v{r + i}, 0xffffff00, v{r + i}")

    lab = poll_begin("pq")
    for kh in range(2):
        for m in range(2):
            r = QG + 8 * kh + 4 * m
            e(f"buffer_load_dwordx4 {vr(r, 4)}, v5, {WSR}, s{T + 2 * kh + m} offen sc1")
    e("s_waitcnt vmcnt(0)")
    unit_checks([QG + 4 * k for k in range(4)], 8, 9)
    if "once" in xp:
        e("s_mov_b64 vcc, 0")
    poll_end(lab, 6)
    for k in range(4):
        unit_unpack(QG + 4 * k)
    for m in range(2):
        r = QG + 4 * m
        for i in range(4):
            e(f"v_add_f32 v{r + i}, v{r + i}, v{r + 8 + i}")
        e(f"v_cvt_pk_bf16_f32 v{r}, v{r}, v{r + 1}")
        e(f"v_cvt_pk_bf16_f32 v{r + 1}, v{r + 2}, v{r + 3}")
        e(f"ds_write_b64 v6, {vr(r, 2)} offset:{512 * m}")
    e("s_waitcnt lgkmcnt(0)")
    stamp(7)
    e("s_branch L_Hb1")

    e("L_H23:")
    e("s_waitcnt lgkmcnt(0)")
    karg2()
    e("s_waitcnt lgkmcnt(0)")
    epoch_load()
    srd(R_WS, S_WS, S_WS + 1, WS_SIZE)
    e("s_waitcnt lgkmcnt(0)")
    epoch_tag()
    e(f"s_cmp_eq_u32 s{S_WAVE}, 2")
    e("s_cbranch_scc0 L_noid")
    e(f"s_lshl_b32 s{T}, s{S_XI}, 8")
    e(f"s_lshl_b32 s{T + 1}, s{S_Y}, 3")
    e(f"s_add_u32 s{T}, s{T}, s{T + 1}")
    e(f"s_add_u32 s{T}, s{T}, {WS_ID}")
    e(f"s_getreg_b32 s{T + 2}, hwreg(HW_REG_XCC_ID, 0, 4)")
    e(f"v_mov_b32 v6, s{T + 2}")
    e(f"v_mov_b32 v7, s{S_TAG}")
    e("v_mov_b32 v5, 0")
    e("s_mov_b64 exec, 1")
    e(f"buffer_store_dwordx2 v[6:7], v5, {WSR}, s{T} offen sc1")
    e("s_mov_b64 exec, -1")
    e("L_noid:")
    e("s_barrier")
    e(f"s_cmp_eq_u32 s{S_WAVE}, 0")
    e("s_cbranch_scc1 L_qg")

    e("L_Hb1:")
    e("s_barrier")
    HG = 32

    def hloads():
        for lp in range(4):
            for kh in range(2):
                r = HG + 8 * lp + 4 * kh
                e(f"buffer_load_dwordx4 {vr(r, 4)}, v3, {WSR}, s{T + (lp >> 1)} offen offset:{(lp & 1) * 2048 + 1024 * kh} sc1")

    e(f"s_sub_u32 s{T + 4}, s{S_Y}, 23")
    e(f"s_cmp_lt_u32 s{T + 4}, 7")
    e(f"s_cselect_b32 s{T + 6}, s{S_WAVE}, 0")
    if "nohand" in xp or "noh" in xp or "pubonly" in xp or "once" in xp:
        e(f"s_mov_b32 s{T + 6}, 0")
    e(f"s_cmp_eq_u32 s{T + 6}, 3")
    e("s_cbranch_scc0 L_noh1")
    e(f"s_lshl_b32 s{T}, s{T + 4}, 13")
    e(f"s_add_u32 s{T}, s{T}, {WS_H}")
    e(f"s_add_u32 s{T + 1}, s{T}, 4096")
    e("v_lshlrev_b32 v3, 4, v0")
    hloads()
    e("L_noh1:")
    e(f"s_lshl_b32 s{T + 10}, s{S_XI}, 8")
    e(f"s_add_u32 s{T + 10}, s{T + 10}, {WS_ID}")
    e("v_and_b32 v30, 31, v0")
    e("v_lshlrev_b32 v30, 3, v30")
    e(f"s_cmp_eq_u32 s{S_WAVE}, 0")
    e("s_cbranch_scc0 L_noid2")
    e(f"buffer_load_dwordx2 v[30:31], v30, {WSR}, s{T + 10} offen sc1")
    e("L_noid2:")
    e("s_barrier")
    e("s_barrier")
    stamp(8)
    e(f"s_mov_b32 s{S_SAME}, 0")
    e(f"s_cmp_eq_u32 s{S_WAVE}, 0")
    e("s_cbranch_scc0 L_noid3")
    e(f"s_getreg_b32 s{T + 10}, hwreg(HW_REG_XCC_ID, 0, 4)")
    e("s_waitcnt vmcnt(0)")
    e(f"v_cmp_ne_u32 s[64:65], s{S_TAG}, v31")
    e(f"v_cmp_ne_u32 vcc, s{T + 10}, v30")
    e("s_or_b64 vcc, vcc, s[64:65]")
    e("s_cmp_eq_u64 vcc, 0")
    e(f"s_cselect_b32 s{S_SAME}, 1, 0")
    if "noxcc" in xp:
        e(f"s_mov_b32 s{S_SAME}, 0")
    e(f"v_mov_b32 v30, {L_SCALE + 16}")
    e(f"v_mov_b32 v31, s{S_SAME}")
    e("ds_write_b32 v30, v31")
    e("L_noid3:")
    e(f"s_cmp_eq_u32 s{T + 6}, 3")
    e("s_cbranch_scc0 L_noh2")
    e("v_lshlrev_b32 v6, 9, v1")
    e("v_lshl_add_u32 v6, v2, 3, v6")
    e(f"v_add_u32 v6, {L_HB}, v6")
    e(f"s_mov_b32 s{T + 4}, 0x04000c0c")
    e(f"s_mov_b32 s{T + 5}, 0x0706000c")
    lab = e.label("ph")
    e(f"s_mov_b32 s{T + 17}, {POLL_LIMIT}")
    e(f"{lab}:")
    e("s_waitcnt vmcnt(0)")
    unit_checks([HG + 4 * k for k in range(8)], 8, 9)
    e("s_cmp_eq_u64 vcc, 0")
    e(f"s_cbranch_scc1 {lab}_d")
    e(f"s_sub_u32 s{T + 17}, s{T + 17}, 1")
    e(f"s_cbranch_scc1 {lab}_d")
    e("s_sleep 4")
    hloads()
    e(f"s_branch {lab}")
    e(f"{lab}_d:")
    for k in range(8):
        unit_unpack(HG + 4 * k)
    for lp in range(4):
        r = HG + 8 * lp
        for i in range(4):
            e(f"v_add_f32 v{r + i}, v{r + i}, v{r + 4 + i}")
        for i in range(4):
            e(f"v_max_f32 v{r + i}, 0, v{r + i}")
        e(f"v_cvt_pk_bf16_f32 v{r}, v{r}, v{r + 1}")
        e(f"v_cvt_pk_bf16_f32 v{r + 1}, v{r + 2}, v{r + 3}")
        e(f"ds_write_b64 v6, {vr(r, 2)} offset:{128 * lp}")
    e("L_noh2:")
    e(f"s_cmp_eq_u32 s{S_WAVE}, 2")
    e("s_cbranch_scc0 L_nolse")
    e("v_lshlrev_b32 v3, 2, v0")
    e(f"ds_read2st64_b32 v[6:7], v3 offset0:{L_LSUM // 256} offset1:{L_LSUM // 256 + 1}")
    e(f"ds_read2st64_b32 v[8:9], v3 offset0:{L_LSUM // 256 + 2} offset1:{L_LSUM // 256 + 3}")
    e("v_lshlrev_b32 v4, 4, v1")
    e(f"v_add_u32 v4, {L_MAX}, v4")
    e("ds_read2st64_b32 v[10:11], v4 offset0:0 offset1:1")
    e("ds_read2st64_b32 v[12:13], v4 offset0:2 offset1:3")
    e(f"s_mov_b32 s{S_L2E}, 0x3fb8aa3b")
    e(f"s_lshl_b32 s{T}, s{S_XI}, 12")
    e(f"s_lshl_b32 s{T + 1}, s{S_B}, 10")
    e(f"s_add_u32 s{T}, s{T}, s{T + 1}")
    e(f"s_add_u32 s{T}, s{T}, {WS_LSE}")
    e(f"s_lshl_b32 s{T + 1}, s{S_SP}, 7")
    e(f"s_add_u32 s{T + 1}, s{T + 1}, s{T}")
    e("s_waitcnt lgkmcnt(0)")
    e("v_add_f32 v6, v6, v7")
    e("v_add_f32 v8, v8, v9")
    e("v_max3_f32 v10, v10, v11, v12")
    e("v_add_f32 v6, v6, v8")
    e("v_max_f32 v10, v10, v13")
    e("v_rcp_f32 v11, v6")
    e("v_log_f32 v6, v6")
    e(f"v_mul_f32 v10, s{S_L2E}, v10")
    e("v_lshlrev_b32 v5, 3, v1")
    e("v_add_f32 v6, v6, v10")
    e(f"v_mov_b32 v7, s{S_TAG}")
    e("v_cmp_eq_u32 vcc, 0, v2")
    e("s_and_saveexec_b64 s[64:65], vcc")
    e(f"buffer_store_dwordx2 v[6:7], v5, {WSR}, s{T + 1} offen sc1")
    e("s_mov_b64 exec, s[64:65]")
    e("v_lshlrev_b32 v5, 2, v1")
    e(f"v_add_u32 v5, {L_SCALE}, v5")
    e("v_cmp_eq_u32 vcc, 0, v2")
    e("s_and_saveexec_b64 s[64:65], vcc")
    e("ds_write_b32 v5, v11")
    e("s_mov_b64 exec, s[64:65]")
    e("L_nolse:")
    WF = 32
    e("v_lshrrev_b32 v10, 2, v2")
    e("v_and_b32 v11, 3, v2")
    e("v_lshlrev_b32 v4, 10, v1")
    e("v_lshl_add_u32 v4, v10, 7, v4")
    e("v_lshl_add_u32 v4, v11, 3, v4")
    e(f"s_lshl_b32 s{T}, s{S_WAVE}, 5")
    e(f"v_add_u32 v4, s{T}, v4")
    e("v_lshlrev_b32 v6, 9, v11")
    e("v_lshl_add_u32 v6, v1, 4, v6")
    e(f"v_add_u32 v6, {L_HB}, v6")
    e("v_lshlrev_b32 v9, 6, v2")
    e("v_lshl_add_u32 v9, v1, 4, v9")
    e(f"v_mov_b32 v17, s{S_TAG}")
    e(f"v_mov_b32 v19, s{S_TAG}")
    e("s_waitcnt lgkmcnt(0)")
    e("s_barrier")
    e(f"s_cmp_eq_u32 s{S_WAVE}, 1")
    e("s_cbranch_scc0 L_noid4")
    e(f"v_mov_b32 v30, {L_SCALE + 16}")
    e("ds_read_b32 v30, v30")
    e("s_waitcnt lgkmcnt(0)")
    e(f"v_readfirstlane_b32 s{S_SAME}, v30")
    e("L_noid4:")
    e(f"s_sub_u32 s{T + 4}, s{S_Y}, 23")
    e(f"s_cmp_ge_u32 s{T + 4}, 7")
    e("s_cbranch_scc1 L_nog2")
    e(f"v_add_u32 v7, {L_T0}, v4")
    for t in range(8):
        ad, off = ("v7", t * 4096) if t < 6 else ("v4", L_W2B + (t - 6) * 4096)
        e(f"ds_read_b64_tr_b16 {vr(64 + 4 * t, 2)}, {ad} offset:{off}")
        e(f"ds_read_b64_tr_b16 {vr(64 + 4 * t + 2, 2)}, {ad} offset:{off + 512}")
        if t == 3:
            e("s_waitcnt lgkmcnt(4)")
    e("s_waitcnt lgkmcnt(4)")
    for t in range(8):
        e(f"ds_read_b128 {vr(128 + 4 * t, 4)}, v6 offset:{64 * t}")
    e("s_waitcnt lgkmcnt(0)")
    for t in range(8):
        c = "0" if t == 0 else "v[12:15]"
        e(f"v_mfma_f32_16x16x32_bf16 v[12:15], {vr(64 + 4 * t, 4)}, {vr(128 + 4 * t, 4)}, {c}")
    e("s_nop 7")
    e("v_cvt_pk_bf16_f32 v20, v12, v13")
    e("v_cvt_pk_bf16_f32 v22, v14, v15")
    e(f"s_lshl_b32 s{T}, s{S_XI}, 15")
    e(f"s_lshl_b32 s{T + 1}, s{T + 4}, 10")
    e(f"s_add_u32 s{T}, s{T}, s{T + 1}")
    e(f"s_lshl_b32 s{T + 1}, s{S_WAVE}, 8")
    e(f"s_add_u32 s{T}, s{T}, s{T + 1}")
    e(f"s_add_u32 s{T}, s{T}, {WS_GP}")
    e(f"v_mov_b32 v21, s{S_TAG}")
    e(f"v_mov_b32 v23, s{S_TAG}")
    e("v_cmp_gt_u32 vcc, 4, v2")
    e("s_and_saveexec_b64 s[64:65], vcc")
    e(f"buffer_store_dwordx4 v[20:23], v9, {WSR}, s{T} offen sc1")
    e("s_mov_b64 exec, s[64:65]")
    e("L_nog2:")
    e("v_lshrrev_b32 v24, 5, v0")
    e(f"s_lshl_b32 s{T}, s{S_WAVE}, 1")
    e(f"v_add_u32 v24, s{T}, v24")
    e("v_and_b32 v25, 31, v0")
    e("v_lshlrev_b32 v25, 4, v25")
    e("v_lshl_add_u32 v26, v24, 9, v25")
    e("v_lshl_add_u32 v27, v24, 14, v25")
    e("v_lshlrev_b32 v28, 2, v24")
    e(f"v_add_u32 v28, {L_SCALE}, v28")
    e(f"s_lshl_b32 s{T + 11}, s{S_XI}, 16")
    e(f"s_lshl_b32 s{T + 1}, s{S_SP}, 11")
    e(f"s_add_u32 s{T + 11}, s{T + 11}, s{T + 1}")
    e(f"s_lshl_b32 s{T + 1}, s{S_B}, 9")
    e(f"s_add_u32 s{T + 11}, s{T + 11}, s{T + 1}")
    e(f"s_add_u32 s{T + 11}, s{T + 11}, {WS_OP}")
    e(f"v_mov_b32 v81, s{S_TAG}")
    e(f"v_mov_b32 v83, s{S_TAG}")
    e(f"s_lshl_b32 s{T + 14}, s{S_XI}, 2")
    e(f"s_add_u32 s{T + 14}, s{T + 14}, s{S_B}")
    e(f"s_lshl_b32 s{T + 14}, s{T + 14}, 10")
    e(f"s_lshl_b32 s{T + 1}, s{S_SP}, 15")
    e(f"s_add_u32 s{T + 14}, s{T + 14}, s{T + 1}")
    e(f"s_lshl_b32 s{T + 1}, s{S_WAVE}, 8")
    e(f"s_add_u32 s{T + 14}, s{T + 14}, s{T + 1}")
    e(f"s_add_u32 s{T + 14}, s{T + 14}, {WS_SP}")
    e("v_and_b32 v12, 3, v2")
    e("v_lshlrev_b32 v12, 8, v12")
    e("v_lshl_add_u32 v12, v1, 4, v12")
    e(f"v_add_u32 v12, {L_OBF}, v12")
    e(f"v_add_u32 v4, {L_WO}, v4")
    stamp(9)

    tstamp(1)
    e("s_barrier")
    tstamp(2)
    e(f"s_cmp_lt_u32 s{S_WAVE}, 2")
    e("s_cbranch_scc0 L_nopub")
    for sw_ in range(4):
        e(f"ds_read_b128 {vr(64 + 4 * sw_, 4)}, v26 offset:{sw_ * 2048}")
    e("ds_read_b32 v29, v28")
    e("s_waitcnt lgkmcnt(0)")
    for i in range(4):
        e(f"v_add_f32 v{64 + i}, v{64 + i}, v{68 + i}")
        e(f"v_add_f32 v{72 + i}, v{72 + i}, v{76 + i}")
    for i in range(4):
        e(f"v_add_f32 v{64 + i}, v{64 + i}, v{72 + i}")
    for i in range(4):
        e(f"v_mul_f32 v{64 + i}, v{64 + i}, v29")
    e("v_cvt_pk_bf16_f32 v80, v64, v65")
    e("v_cvt_pk_bf16_f32 v82, v66, v67")
    e(f"s_cmp_eq_u32 s{S_SAME}, 1")
    e("s_cbranch_scc1 L_publ")
    e(f"buffer_store_dwordx4 v[80:83], v27, {WSR}, s{T + 11} offen sc1")
    e("s_branch L_pubs")
    e("L_publ:")
    e(f"buffer_store_dwordx4 v[80:83], v27, {WSR}, s{T + 11} offen")
    e("L_pubs:")
    tstamp(3)
    e("L_nopub:")
    e("L_wts2:")
    lse_addr()
    lse_loads()
    e(f"s_lshl_b32 s{T}, s{S_XI}, 16")
    e(f"s_lshl_b32 s{T + 1}, s{S_B}, 14")
    e(f"s_add_u32 s{T}, s{T}, s{T + 1}")
    e(f"s_lshl_b32 s{T + 1}, s{S_WAVE}, 8")
    e(f"s_add_u32 s{T}, s{T}, s{T + 1}")
    e(f"s_add_u32 s{T}, s{T}, {WS_OP}")
    e(f"s_add_u32 s{T + 1}, s{T}, 8192")
    e("v_lshlrev_b32 v5, 11, v1")
    e("v_lshl_add_u32 v5, v2, 4, v5")
    OG = 48
    e(f"s_lshl_b32 s{T + 2}, s{S_WAVE}, 7")
    e(f"s_add_u32 s{T + 2}, s{T + 2}, {L_OBF}")
    e("v_lshlrev_b32 v3, 3, v2")
    e("v_lshl_add_u32 v3, v1, 1, v3")
    e(f"v_add_u32 v3, s{T + 2}, v3")
    tstamp(5)
    if hint:
        e("v_lshlrev_b32 v6, 11, v0")
        e("v_add_u32 v6, 252, v6")
        e("s_mov_b64 exec, 0xff")
        lab = poll_begin("ph2")
        e(f"buffer_load_dword v8, v6, {WSR}, s{T} offen sc1")
        e("s_waitcnt vmcnt(0)")
        tagcheck([8], 0, 0)
        poll_end(lab, tsleep)
    def oloads():
        e(f"buffer_load_dwordx4 v[{OG}:{OG + 3}], v5, {WSR}, s{T} offen sc1")
        e(f"buffer_load_dwordx4 v[{OG + 4}:{OG + 7}], v5, {WSR}, s{T + 1} offen sc1")

    oloads()
    e("s_waitcnt vmcnt(2)")
    weights(waited=True)
    tstamp(4)
    lab = e.label("po")
    e(f"s_mov_b32 s{T + 17}, {POLL_LIMIT}")
    e(f"s_branch {lab}_c")
    e(f"{lab}:")
    oloads()
    e(f"{lab}_c:")
    e("s_waitcnt vmcnt(0)")
    tagcheck([OG + 1, OG + 3, OG + 5, OG + 7], 8, 7)
    poll_end(lab, tsleep)
    stamp(10)
    tstamp(6)
    e(f"v_lshlrev_b32 v56, 16, v{OG}")
    e(f"v_and_b32 v57, s{S_M16}, v{OG}")
    e(f"v_lshlrev_b32 v58, 16, v{OG + 2}")
    e(f"v_and_b32 v59, s{S_M16}, v{OG + 2}")
    e(f"v_lshlrev_b32 v60, 16, v{OG + 4}")
    e(f"v_and_b32 v61, s{S_M16}, v{OG + 4}")
    e(f"v_lshlrev_b32 v62, 16, v{OG + 6}")
    e(f"v_and_b32 v63, s{S_M16}, v{OG + 6}")
    for i in range(4):
        e(f"v_mul_f32 v{56 + i}, v{56 + i}, v110")
    for i in range(4):
        e(f"v_fmac_f32 v{56 + i}, v{60 + i}, v111")
    e("s_nop 0")
    e("v_permlane32_swap_b32 v56, v58")
    e("v_permlane32_swap_b32 v57, v59")
    e("s_nop 0")
    e("v_add_f32 v56, v56, v58")
    e("v_add_f32 v57, v57, v59")
    e("s_nop 1")
    e("v_permlane16_swap_b32 v56, v57")
    e("s_nop 1")
    e("v_add_f32 v56, v56, v57")
    e("v_cvt_pk_bf16_f32 v56, v56, v56")
    e("ds_write_b16 v3, v56")
    e("s_waitcnt vmcnt(0) lgkmcnt(0)")
    e("s_barrier")
    tstamp(7)
    e(f"s_cmp_lt_u32 s{S_WAVE}, 4")
    e("s_cbranch_scc0 L_final")
    BB = 96
    for t in range(4):
        e(f"ds_read_b128 {vr(BB + 4 * t, 4)}, v12 offset:{64 * t}")
        e(f"ds_read_b64_tr_b16 {vr(WF + 4 * t, 2)}, v4 offset:{t * 4096}")
        e(f"ds_read_b64_tr_b16 {vr(WF + 4 * t + 2, 2)}, v4 offset:{t * 4096 + 512}")
    e("v_cmp_gt_u32 vcc, 4, v2")
    for t in range(4):
        e(f"s_waitcnt lgkmcnt({9 - 3 * t})")
        c = "0" if t == 0 else "v[12:15]"
        e(f"v_mfma_f32_16x16x32_bf16 v[12:15], {vr(WF + 4 * t, 4)}, {vr(BB + 4 * t, 4)}, {c}")
    e("s_nop 7")
    e("v_cvt_pk_bf16_f32 v16, v12, v13")
    e("v_cvt_pk_bf16_f32 v18, v14, v15")
    e("s_and_saveexec_b64 s[64:65], vcc")
    e(f"buffer_store_dwordx4 v[16:19], v9, {WSR}, s{T + 14} offen {spst}")
    stamp(11)
    stamp_flush()
    e("s_endpgm")

    e("L_final:")
    e(f"s_cmp_gt_u32 s{S_WAVE}, 5")
    e("s_cbranch_scc0 L_fin0")
    stamp_flush()
    e("s_endpgm")
    e("L_fin0:")
    e("v_lshrrev_b32 v3, 1, v0")
    e("v_lshlrev_b32 v3, 10, v3")
    e("v_and_b32 v4, 1, v0")
    e("v_lshl_add_u32 v3, v4, 4, v3")
    e(f"s_lshl_b32 s{T}, s{S_XI}, 15")
    e(f"s_lshl_b32 s{T + 1}, s{S_B}, 6")
    e(f"s_add_u32 s{T}, s{T}, s{T + 1}")
    e(f"s_lshr_b32 s{T + 1}, s{S_SP}, 1")
    e(f"s_lshl_b32 s{T + 1}, s{T + 1}, 8")
    e(f"s_add_u32 s{T}, s{T}, s{T + 1}")
    e(f"s_and_b32 s{T + 1}, s{S_SP}, 1")
    e(f"s_lshl_b32 s{T + 1}, s{T + 1}, 5")
    e(f"s_add_u32 s{T}, s{T}, s{T + 1}")
    e(f"s_lshl_b32 s{T + 4}, s{S_B}, 10")
    e(f"s_lshl_b32 s{T + 5}, s{S_XI}, 7")
    e(f"s_add_u32 s{T + 4}, s{T + 4}, s{T + 5}")
    e(f"s_lshl_b32 s{T + 5}, s{S_SP}, 4")
    e(f"s_add_u32 s{T + 4}, s{T + 4}, s{T + 5}")
    e("v_lshlrev_b32 v5, 3, v4")
    e("v_lshlrev_b32 v6, 5, v4")
    e(f"v_add_u32 v6, {L_FIN}, v6")

    def unpack4(dst, lo, hi):
        e(f"v_lshlrev_b32 v{dst}, 16, v{lo}")
        e(f"v_and_b32 v{dst + 1}, s{S_M16}, v{lo}")
        e(f"v_lshlrev_b32 v{dst + 2}, 16, v{hi}")
        e(f"v_and_b32 v{dst + 3}, s{S_M16}, v{hi}")

    def red32(base):
        e("s_nop 0")
        for rot in (2, 4, 8):
            for i in range(4):
                e(f"v_add_f32_dpp v{base + i}, v{base + i}, v{base + i} row_ror:{rot} row_mask:0xf bank_mask:0xf")
        for sw_ in ("v_permlane16_swap_b32", "v_permlane32_swap_b32"):
            for i in range(4):
                e(f"v_mov_b32 v{base + 4 + i}, v{base + i}")
            e("s_nop 0")
            for i in range(4):
                e(f"{sw_} v{base + 4 + i}, v{base + i}")
            for i in range(4):
                e(f"v_add_f32 v{base + i}, v{base + i}, v{base + 4 + i}")

    e(f"s_cmp_eq_u32 s{S_WAVE}, 4")
    e("s_cbranch_scc1 L_fins")
    e(f"s_add_u32 s{T + 2}, s{T}, {WS_GP}")
    e("v_cmp_gt_u32 s[66:67], 14, v0")
    e("v_cmp_eq_u32 vcc, 1, v4")
    e(f"v_mov_b32 v20, s{S_RES}")
    e(f"v_mov_b32 v21, s{S_RES + 1}")
    e(f"v_mov_b32 v22, s{S_RES + 2}")
    e(f"v_mov_b32 v23, s{S_RES + 3}")
    e("v_cndmask_b32 v20, v20, v22, vcc")
    e("v_cndmask_b32 v21, v21, v23, vcc")
    lab = poll_begin("pgp")
    e(f"buffer_load_dwordx4 v[32:35], v3, {WSR}, s{T + 2} offen sc1")
    e("s_waitcnt vmcnt(0)")
    tagcheck([33, 35], 0, 0)
    e("s_and_b64 vcc, vcc, s[66:67]")
    poll_end(lab, tsleep)
    e("v_cndmask_b32 v32, 0, v32, s[66:67]")
    e("v_cndmask_b32 v34, 0, v34, s[66:67]")
    unpack4(24, 32, 34)
    red32(24)
    e("v_cvt_pk_bf16_f32 v8, v24, v25")
    e("v_cvt_pk_bf16_f32 v9, v26, v27")
    unpack4(24, 8, 9)
    e(f"s_mov_b32 s{T + 5}, 0xbfb8aa3b")
    for i in range(4):
        e(f"v_mul_f32 v{28 + i}, s{T + 5}, v{24 + i}")
    for i in range(4):
        e(f"v_exp_f32 v{28 + i}, v{28 + i}")
    e("s_nop 0")
    for i in range(4):
        e(f"v_add_f32 v{28 + i}, 1.0, v{28 + i}")
    for i in range(4):
        e(f"v_rcp_f32 v{28 + i}, v{28 + i}")
    e("s_nop 0")
    for i in range(4):
        e(f"v_mul_f32 v{24 + i}, v{24 + i}, v{28 + i}")
    e("v_cvt_pk_bf16_f32 v8, v24, v25")
    e("v_cvt_pk_bf16_f32 v9, v26, v27")
    unpack4(24, 8, 9)
    unpack4(28, 20, 21)
    e("s_mov_b64 exec, 3")
    e("ds_write_b128 v6, v[24:27]")
    e("ds_write_b128 v6, v[28:31] offset:16")
    e("s_waitcnt lgkmcnt(0)")
    tstamp(8)
    e("s_barrier")
    stamp_flush()
    e("s_endpgm")
    e("L_fins:")
    e(f"s_add_u32 s{T + 3}, s{T}, {WS_SP}")
    srd(R_B, S_OUT, S_OUT + 1, 4096)
    lab = poll_begin("psp")
    e(f"buffer_load_dwordx4 v[32:35], v3, {WSR}, s{T + 3} offen {spld}")
    e("s_waitcnt vmcnt(0)")
    tagcheck([33, 35], 0, 0)
    poll_end(lab, tsleep)
    tstamp(9)
    unpack4(40, 32, 34)
    red32(40)
    e("v_cvt_pk_bf16_f32 v8, v40, v41")
    e("v_cvt_pk_bf16_f32 v9, v42, v43")
    unpack4(40, 8, 9)
    e("s_barrier")
    e("ds_read_b128 v[24:27], v6")
    e("ds_read_b128 v[28:31], v6 offset:16")
    e("s_waitcnt lgkmcnt(0)")
    for i in range(4):
        e(f"v_mul_f32 v{40 + i}, v{40 + i}, v{24 + i}")
    e("v_cvt_pk_bf16_f32 v8, v40, v41")
    e("v_cvt_pk_bf16_f32 v9, v42, v43")
    unpack4(40, 8, 9)
    for i in range(4):
        e(f"v_add_f32 v{40 + i}, v{40 + i}, v{28 + i}")
    e("v_cvt_pk_bf16_f32 v8, v40, v41")
    e("v_cvt_pk_bf16_f32 v9, v42, v43")
    e("s_mov_b64 exec, 3")
    e(f"buffer_store_dwordx2 v[8:9], v5, s[{R_B}:{R_B + 3}], s{T + 4} offen")
    e("s_cmp_eq_u32 s2, 0")
    e("s_cbranch_scc0 L_noep")
    e("s_mov_b64 exec, 1")
    e(f"v_mov_b32 v6, {WS_E}")
    e(f"v_mov_b32 v7, s{S_TAG}")
    e(f"buffer_store_dword v7, v6, {WSR}, 0 offen")
    e("L_noep:")
    stamp(11)
    stamp_flush()
    e("L_end:")
    e("s_endpgm")
    e(f".fill ({20480 if diag else 16384} - (. - {KN}_kernel)) / 4, 4, 0xbf800000")
    e('.section .rodata,"a"')
    e(".p2align 6")
    e(f".amdhsa_kernel {KN}_kernel")
    e("  .amdhsa_next_free_vgpr 256")
    e("  .amdhsa_next_free_sgpr 102")
    e("  .amdhsa_accum_offset 256")
    e("  .amdhsa_group_segment_fixed_size 0")
    e("  .amdhsa_kernarg_size 88")
    e("  .amdhsa_user_sgpr_count 2")
    e("  .amdhsa_user_sgpr_kernarg_segment_ptr 1")
    e("  .amdhsa_system_sgpr_workgroup_id_x 1")
    e(".end_amdhsa_kernel")
    return e.text()


if __name__ == "__main__":
    import argparse
    ap = argparse.ArgumentParser()
    ap.add_argument("-o", default="k.s")
    ap.add_argument("--diag", action="store_true")
    ap.add_argument("--early", action="store_true")
    ap.add_argument("--thr", type=int, default=6)
    ap.add_argument("--kpol", default="nt")
    ap.add_argument("--wpol", default="nt")
    ap.add_argument("--hint", action="store_true")
    ap.add_argument("--thr2", type=int, default=10)
    ap.add_argument("--nshallow", type=int, default=4)
    ap.add_argument("--light", action="store_true")
    ap.add_argument("--tail", action="store_true")
    ap.add_argument("--wint", action="store_true")
    ap.add_argument("--late", type=int, default=1)
    ap.add_argument("--pfn", type=int, default=8)
    ap.add_argument("--spld", default="sc1")
    ap.add_argument("--spst", default="sc1")
    ap.add_argument("--xp", default="")
    ap.add_argument("--tsleep", type=int, default=1)
    a = ap.parse_args()
    open(a.o, "w").write(gen(diag=a.diag, thr=a.thr, kpol=a.kpol, wpol=a.wpol, early=a.early, hint=a.hint, thr2=a.thr2, nshallow=a.nshallow, tsleep=a.tsleep, light=a.light, xp=tuple(a.xp.split(',')), tailst=a.tail, spld=a.spld, spst=a.spst, wint=a.wint, pfn=a.pfn, late=a.late))
```

```python
import sys

KN = "recurrent_scan__sliding_block_cached__dense_activation_relu__decode"

WS_E = 0x00000
WS_LSE = 0x01000
WS_ID = 0x0A000
WS_Q = 0x10000
WS_QX = 0x30000
WS_H = 0x90000
WS_OP = 0xD0000
WS_SP = 0x150000
WS_GP = 0x190000
WS_SIZE = 0x1D0000
WS_STAMP = 0x200000

L_K = 0
L_RED = 0
L_LSUM = 8192
L_OBF = 10240
L_T0 = 131072
L_QB = L_T0 + 24576
L_MAX = L_T0 + 25600
L_SCALE = L_T0 + 26624
L_HB = L_T0 + 28672
L_FIN = 12288
L_W2B = 16384
L_WO = 32768
LDS_BYTES = 163840

POLL_LIMIT = 200000
EPOCH_STEP = 0x9E3779B9

HEADER = """; Kernarg layout for this problem (88 bytes, ptrs only, base s[0:1]):
;
; Workgroups hand data to each other through d_ws in 8-byte {payload, tag} granules; the tag is derived from an epoch
"""


class Asm:
    def __init__(self):
        self.L = []
        self.nlab = 0

    def __call__(self, s):
        for line in s.split("\n"):
            line = line.strip()
            if line:
                self.L.append(line)

    def label(self, base):
        self.nlab += 1
        return f"L_{base}_{self.nlab}"

    def text(self):
        out = []
        for l in self.L:
            if l.endswith(":") or l.startswith(".") or l.startswith(";"):
                out.append(l)
            else:
                out.append("    " + l)
        return "\n".join(out) + "\n"


def vr(a, n=1):
    return f"v{a}" if n == 1 else f"v[{a}:{a + n - 1}]"


def gen(diag=False, thr=6, kpol="nt", wpol="nt", early=False, hint=False, tsleep=1, thr2=10, light=False, nshallow=4, xp=(), tailst=False, spld='sc1', spst='sc1', wint=False, pfn=8, late=1, rs8=False, qx=True):
    e = Asm()
    PF2 = True
    S_X, S_K, S_V, S_WQ, S_WO, S_BX, S_W1, S_W2 = 4, 6, 8, 10, 12, 14, 16, 18
    S_OUT, S_DBG, S_WS = 20, 22, 24
    S_XI, S_Y, S_WAVE, S_B, S_SP, S_TAG = 26, 27, 28, 29, 30, 31
    R_A, R_B, R_WS, R_C, R_D = 32, 36, 40, 44, 48
    T = 52
    S_STAMP = 72
    S_M16, S_SC, S_L2E, S_PLO, S_PHI = 96, 97, 98, 99, 100
    S_RES = 48
    S_O0, S_O1 = 14, 15
    OG = 48
    VO, VL = 105, 112
    S_SAME = 101
    WSR = f"s[{R_WS}:{R_WS + 3}]"

    def estamp(k):
        if diag and early:
            e(f"s_memrealtime s[{S_STAMP + 2 * k}:{S_STAMP + 2 * k + 1}]")
            e("s_waitcnt lgkmcnt(0)")

    def tstamp(k):
        if diag and tailst:
            e(f"s_memrealtime s[{S_STAMP + 2 * k}:{S_STAMP + 2 * k + 1}]")
            e("s_waitcnt lgkmcnt(0)")

    def stamp(k):
        if diag and tailst:
            if k == 11:
                tstamp(11)
            return
        if diag and not (early and k != 11) and not (light and k not in (8, 10, 11)):
            assert k < 12
            e(f"s_memrealtime s[{S_STAMP + 2 * k}:{S_STAMP + 2 * k + 1}]")
            e("s_waitcnt lgkmcnt(0)")

    def stamp_flush():
        if diag:
            e("s_waitcnt vmcnt(0) lgkmcnt(0)")
            e(f"s_lshl_b32 s{T}, s2, 3")
            e(f"s_add_u32 s{T}, s{T}, s{S_WAVE}")
            e(f"s_lshl_b32 s{T}, s{T}, 7")
            e(f"s_add_u32 s{T}, s{T}, {WS_STAMP}")
            e("s_mov_b64 exec, 1")
            e(f"v_mov_b32 v1, s{T}")
            for k in range(12):
                e(f"v_mov_b32 v2, s{S_STAMP + 2 * k}")
                e(f"v_mov_b32 v3, s{S_STAMP + 2 * k + 1}")
                e(f"global_store_dwordx2 v1, v[2:3], s[{S_WS}:{S_WS + 1}] offset:{8 * k}")
            e("s_waitcnt vmcnt(0)")

    def karg2():
        e("s_load_dwordx4 s[20:23], s[0:1], 64")
        e("s_load_dwordx2 s[24:25], s[0:1], 80")

    def epoch_load():
        if "wsend" in xp:
            e(f"s_add_u32 s{S_WS}, s{S_WS}, {512 * 1024 * 1024 - 4 * 1024 * 1024}")
            e(f"s_addc_u32 s{S_WS + 1}, s{S_WS + 1}, 0")
        e(f"s_load_dword s{S_TAG}, s[{S_WS}:{S_WS + 1}], {WS_E}")

    def epoch_tag():
        e(f"s_add_u32 s{S_TAG}, s{S_TAG}, {EPOCH_STEP:#x}")

    def srd(r, lo, hi, size):
        if lo != r:
            e(f"s_mov_b32 s{r}, s{lo}")
            e(f"s_mov_b32 s{r + 1}, s{hi}")
        e(f"s_mov_b32 s{r + 2}, {size}")
        e(f"s_mov_b32 s{r + 3}, 0x20000")

    def srd_off(r, base, soff, size):
        e(f"s_add_u32 s{r}, s{base}, s{soff}")
        e(f"s_addc_u32 s{r + 1}, s{base + 1}, 0")
        e(f"s_mov_b32 s{r + 2}, {size}")
        e(f"s_mov_b32 s{r + 3}, 0x20000")

    def poll_begin(name):
        lab = e.label(name)
        e(f"s_mov_b32 s{T + 17}, {POLL_LIMIT}")
        e(f"{lab}:")
        return lab

    def poll_end(lab, sleep=1, masked=True):
        done = lab + "_d"
        e("s_cmp_eq_u64 vcc, 0")
        e(f"s_cbranch_scc1 {done}")
        e(f"s_sub_u32 s{T + 17}, s{T + 17}, 1")
        e(f"s_cbranch_scc1 {done}")
        if masked and "nomask" not in xp:
            e("s_mov_b64 exec, vcc")
        if sleep:
            e(f"s_sleep {sleep}")
        e(f"s_branch {lab}")
        e(f"{done}:")
        if masked:
            e("s_mov_b64 exec, -1")

    def tagcheck(tags, t0, t1):
        if len(tags) == 1:
            e(f"v_cmp_ne_u32 vcc, s{S_TAG}, v{tags[0]}")
            return
        if len(tags) == 2:
            e(f"v_cmp_ne_u32 s[{T + 12}:{T + 13}], s{S_TAG}, v{tags[0]}")
            e(f"v_cmp_ne_u32 vcc, s{S_TAG}, v{tags[1]}")
            e(f"s_or_b64 vcc, vcc, s[{T + 12}:{T + 13}]")
            return
        for op, acc in (("max", t0), ("min", t1)):
            rest = list(tags)
            if len(rest) >= 3:
                e(f"v_{op}3_u32 v{acc}, v{rest[0]}, v{rest[1]}, v{rest[2]}")
                rest = rest[3:]
            while len(rest) >= 2:
                e(f"v_{op}3_u32 v{acc}, v{acc}, v{rest[0]}, v{rest[1]}")
                rest = rest[2:]
            if rest:
                e(f"v_{op}_u32 v{acc}, v{acc}, v{rest[0]}")
        e(f"v_cmp_ne_u32 s[{T + 12}:{T + 13}], s{S_TAG}, v{t0}")
        e(f"v_cmp_ne_u32 vcc, s{S_TAG}, v{t1}")
        e(f"s_or_b64 vcc, vcc, s[{T + 12}:{T + 13}]")

    def xrow_reduce(op, r, t):
        e(f"v_mov_b32 v{t}, v{r}")
        e("s_nop 1")
        e(f"v_permlane32_swap_b32 v{t}, v{r}")
        e("s_nop 1")
        e(f"{op} v{r}, v{t}, v{r}")
        e(f"v_mov_b32 v{t}, v{r}")
        e("s_nop 1")
        e(f"v_permlane16_swap_b32 v{t}, v{r}")
        e("s_nop 1")
        e(f"{op} v{r}, v{t}, v{r}")

    LA, LV = 104, 106

    def lse_addr():
        e(f"s_lshl_b32 s{T + 15}, s{S_XI}, 12")
        e(f"s_lshr_b32 s{T + 16}, s{S_WAVE}, 1")
        e(f"s_lshl_b32 s{T + 16}, s{T + 16}, 10")
        e(f"s_add_u32 s{T + 15}, s{T + 15}, s{T + 16}")
        e(f"s_lshl_b32 s{T + 16}, s{S_B}, 3")
        e(f"s_add_u32 s{T + 15}, s{T + 15}, s{T + 16}")
        e(f"s_add_u32 s{T + 15}, s{T + 15}, {WS_LSE}")
        e(f"v_lshlrev_b32 v{LA}, 7, v1")

    def lse_loads():
        e(f"buffer_load_dwordx2 v[{LV}:{LV + 1}], v{LA}, {WSR}, s{T + 15} offen sc1")
        e(f"buffer_load_dwordx2 v[{LV + 2}:{LV + 3}], v{LA}, {WSR}, s{T + 15} offen offset:512 sc1")

    def tail_addrs():
        lse_addr()
        e(f"s_lshl_b32 s{S_O0}, s{S_XI}, 16")
        e(f"s_lshl_b32 s{S_O1}, s{S_B}, 14")
        e(f"s_add_u32 s{S_O0}, s{S_O0}, s{S_O1}")
        e(f"s_lshl_b32 s{S_O1}, s{S_WAVE}, 8")
        e(f"s_add_u32 s{S_O0}, s{S_O0}, s{S_O1}")
        e(f"s_add_u32 s{S_O0}, s{S_O0}, {WS_OP}")
        e(f"s_add_u32 s{S_O1}, s{S_O0}, 8192")
        e(f"v_lshlrev_b32 v{VO}, 11, v1")
        e(f"v_lshl_add_u32 v{VO}, v2, 4, v{VO}")
        e(f"s_lshl_b32 s{T + 9}, s{S_WAVE}, 7")
        e(f"s_add_u32 s{T + 9}, s{T + 9}, {L_OBF}")
        e(f"v_lshlrev_b32 v{VL}, 3, v2")
        e(f"v_lshl_add_u32 v{VL}, v1, 1, v{VL}")
        e(f"v_add_u32 v{VL}, s{T + 9}, v{VL}")


    def weights(waited=False):
        lab = e.label("pw")
        e(f"s_mov_b32 s{T + 17}, {POLL_LIMIT}")
        if waited:
            e(f"s_branch {lab}_c")
        e(f"{lab}:")
        e("s_waitcnt vmcnt(0)")
        if waited:
            e(f"{lab}_c:")
        tagcheck([LV + 1, LV + 3], 0, 0)
        e("s_cmp_eq_u64 vcc, 0")
        e(f"s_cbranch_scc1 {lab}_d")
        e(f"s_sub_u32 s{T + 17}, s{T + 17}, 1")
        e(f"s_cbranch_scc1 {lab}_d")
        e("s_mov_b64 exec, vcc")
        e("s_sleep 2")
        lse_loads()
        e(f"s_branch {lab}")
        e(f"{lab}_d:")
        e("s_mov_b64 exec, -1")
        e(f"v_max_f32 v110, v{LV}, v{LV + 2}")
        xrow_reduce("v_max_f32", 110, 111)
        e(f"v_sub_f32 v{LV}, v{LV}, v110")
        e(f"v_sub_f32 v{LV + 2}, v{LV + 2}, v110")
        e(f"v_exp_f32 v{LV}, v{LV}")
        e(f"v_exp_f32 v{LV + 2}, v{LV + 2}")
        e("s_nop 0")
        e(f"v_add_f32 v110, v{LV}, v{LV + 2}")
        xrow_reduce("v_add_f32", 110, 111)
        e("v_rcp_f32 v110, v110")
        e("s_nop 0")
        e(f"v_mul_f32 v111, v{LV + 2}, v110")
        e(f"v_mul_f32 v110, v{LV}, v110")

    for l in HEADER.strip("\n").split("\n"):
        e.L.append(l)
    e.L.append(f"; @launch grid=(256,1,1) block=(512,1,1) lds={LDS_BYTES}")
    e('.amdgcn_target "amdgcn-amd-amdhsa--gfx950"')
    e(".text")
    e(f".globl {KN}_kernel")
    e(".p2align 8")
    e(f".type {KN}_kernel,@function")
    e(f"{KN}_kernel:")
    if diag:
        e(f"s_memrealtime s[{S_STAMP}:{S_STAMP + 1}]")
    e("s_cmp_ge_u32 s2, 256")
    e("s_cbranch_scc1 L_end")
    e("s_load_dwordx16 s[4:19], s[0:1], 0")
    e("v_lshrrev_b32 v1, 6, v0")
    e(f"s_and_b32 s{S_XI}, s2, 7")
    e(f"s_lshr_b32 s{S_Y}, s2, 3")
    e(f"v_readfirstlane_b32 s{S_WAVE}, v1")
    if pfn < 256:
        e(f"s_cmp_lt_u32 s2, {pfn}")
        e("s_cbranch_scc0 L_nopf")
    e("s_getpc_b64 s[60:61]")
    e("L_pc:")
    e(f"s_sub_u32 s60, s60, L_pc-{KN}_kernel")
    e("s_subb_u32 s61, s61, 0")
    e("v_lshlrev_b32 v1, 4, v0")
    e("global_load_dword v255, v1, s[60:61]")
    e("v_add_u32 v1, 0x2000, v1")
    e("global_load_dword v255, v1, s[60:61]")
    e("L_nopf:")
    e("v_and_b32 v0, 63, v0")
    e(f"s_lshr_b32 s{S_B}, s{S_Y}, 3")
    e(f"s_and_b32 s{S_SP}, s{S_Y}, 7")
    e("v_lshrrev_b32 v1, 4, v0")
    e("v_and_b32 v2, 15, v0")
    e(f"s_cmp_lt_u32 s{S_WAVE}, 4")
    e("s_cbranch_scc1 L_H")

    S_L, S_KH = 70, 71
    S_HALF = 3

    def roles():
        e(f"s_mov_b32 s{S_M16}, 0xffff0000")
        e("v_mov_b32 v9, 0")
        e(f"s_sub_u32 s{S_L}, s{S_Y}, 16")
        e(f"s_lshl_b32 s{S_L}, s{S_L}, 3")
        e(f"s_add_u32 s{S_L}, s{S_L}, s{S_XI}")
        e(f"s_cmp_lt_u32 s{S_Y}, 16")
        e(f"s_cselect_b32 s{S_KH}, s{S_B}, s{S_L}")
        e(f"s_and_b32 s{S_KH}, s{S_KH}, 1")
        e(f"s_lshr_b32 s{S_L}, s{S_L}, 1")
        if qx:
            e(f"s_and_b32 s{T + 16}, s{S_Y}, 1")
            e(f"s_cmp_ge_u32 s{S_Y}, 30")
            e(f"s_cselect_b32 s{S_KH}, s{T + 16}, s{S_KH}")
            e(f"s_cselect_b32 s{T + 16}, 3, 0")
            e(f"s_and_b32 s{S_HALF}, s{S_Y}, 0x17")
            e(f"s_cmp_eq_u32 s{S_HALF}, 3")
            e(f"s_cselect_b32 s{S_HALF}, 1, s{T + 16}")

    SW = T
    ROT = T + 1
    VK = 4
    VV = 8
    e(f"s_sub_u32 s{SW}, s{S_WAVE}, 4")
    e(f"s_lshl_b32 s{T + 2}, s{S_B}, 25")
    e(f"s_lshl_b32 s{T + 3}, s{S_XI}, 22")
    e(f"s_add_u32 s{T + 2}, s{T + 2}, s{T + 3}")
    e(f"s_lshl_b32 s{T + 3}, s{S_SP}, 17")
    e(f"s_add_u32 s{T + 2}, s{T + 2}, s{T + 3}")
    e(f"s_add_u32 s{T + 2}, s{T + 2}, 0x300000")
    e(f"s_add_u32 s{ROT}, s{S_XI}, s{S_Y}")
    e(f"s_add_u32 s{ROT}, s{ROT}, s{SW}")
    e(f"s_and_b32 s{ROT}, s{ROT}, 31")
    e(f"s_lshl_b32 s{ROT}, s{ROT}, 12")
    e("v_lshlrev_b32 v3, 2, v1")
    e("v_xor_b32 v3, v2, v3")
    e("v_lshlrev_b32 v3, 4, v3")
    e(f"v_lshl_add_u32 v{VK}, v1, 8, v3")
    e(f"v_xor_b32 v{VK + 1}, 16, v{VK}")
    e(f"v_xor_b32 v{VK + 2}, 32, v{VK}")
    e(f"v_xor_b32 v{VK + 3}, 48, v{VK}")
    e(f"s_lshl_b32 s{T + 4}, s{SW}, 15")
    e(f"s_mov_b32 m0, s{T + 4}")
    e(f"s_mov_b32 s{R_A + 2}, 0x20000")
    e(f"s_mov_b32 s{R_A + 3}, 0x20000")
    estamp(1)
    e("s_waitcnt lgkmcnt(0)")
    estamp(2)
    e(f"s_add_u32 s{R_A}, s{S_K}, s{T + 2}")
    e(f"s_addc_u32 s{R_A + 1}, s{S_K + 1}, 0")

    def ktile(th, off=None):
        so = f"s{ROT}" if off is None else f"s{off}"
        for q in range(4):
            e(f"buffer_load_dwordx4 v{VK + q}, s[{R_A}:{R_A + 3}], {so} offen offset:{q * 1024} {kpol} lds")
            if th is not None:
                e(f"s_waitcnt vmcnt({th})")

    def knext():
        e(f"s_add_u32 s{T + 4}, s{T + 4}, 4096")
        e(f"s_mov_b32 m0, s{T + 4}")
        e(f"s_add_u32 s{T + 5}, s{T + 5}, 16384")
        e(f"s_and_b32 s{T + 5}, s{T + 5}, 0x1ffff")

    ktile(None)
    karg2()
    roles()
    e(f"s_sub_u32 s{T + 14}, s{S_Y}, 23")
    e(f"s_lshl_b32 s{T + 8}, s{S_KH}, 2")
    e(f"s_add_u32 s{T + 8}, s{T + 8}, s{SW}")
    e(f"s_lshl_b32 s{T + 8}, s{T + 8}, 6")
    e(f"s_mul_i32 s{T + 9}, s{SW}, 48")
    e(f"s_lshl_b32 s{T + 10}, s{T + 14}, 8")
    e(f"s_add_u32 s{T + 9}, s{T + 9}, s{T + 10}")
    e(f"s_cmp_lt_u32 s{T + 14}, 7")
    e(f"s_cselect_b32 s{T + 8}, s{T + 9}, s{T + 8}")
    e(f"s_cselect_b32 s{T + 15}, 1, 0")
    e(f"s_lshl_b32 s{T + 12}, s{SW}, 13")
    e(f"s_cmp_eq_u32 s{T + 15}, 1")
    e(f"s_mul_i32 s{T + 11}, s{SW}, 6144")
    e(f"s_cselect_b32 s{T + 11}, s{T + 11}, s{T + 12}")
    e(f"s_add_u32 s{T + 11}, s{T + 11}, {L_T0}")
    e(f"s_lshl_b32 s{T + 9}, s{S_XI}, 10")
    if "cgrot" in xp:
        e(f"s_add_u32 s{T + 10}, s{S_SP}, 2")
        e(f"s_and_b32 s{T + 10}, s{T + 10}, 7")
        e(f"s_lshl_b32 s{T + 10}, s{T + 10}, 7")
    else:
        e(f"s_lshl_b32 s{T + 10}, s{S_SP}, 7")
    e(f"s_add_u32 s{T + 9}, s{T + 9}, s{T + 10}")
    e(f"s_mov_b32 s{T + 10}, 8192")
    e(f"s_mov_b32 s{T + 12}, {512 * 8192}")
    e(f"s_mov_b32 s{R_C}, s{S_WQ}")
    e(f"s_mov_b32 s{R_C + 1}, s{S_WQ + 1}")
    if qx:
        e(f"s_cmp_eq_u32 s{S_HALF}, 0")
        e("s_cbranch_scc1 L_nohalf")
        e(f"s_lshl_b32 s{T + 8}, s{S_KH}, 1")
        e(f"s_lshr_b32 s{T + 9}, s{S_HALF}, 1")
        e(f"s_add_u32 s{T + 8}, s{T + 8}, s{T + 9}")
        e(f"s_lshl_b32 s{T + 8}, s{T + 8}, 2")
        e(f"s_add_u32 s{T + 8}, s{T + 8}, s{SW}")
        e(f"s_lshl_b32 s{T + 8}, s{T + 8}, 5")
        e(f"s_lshl_b32 s{T + 11}, s{SW}, 12")
        e(f"s_add_u32 s{T + 11}, s{T + 11}, {L_T0}")
        e(f"s_lshl_b32 s{T + 9}, s{S_XI}, 10")
        e(f"s_add_u32 s{T + 9}, s{T + 9}, 384")
        e("s_branch L_et")
        e("L_nohalf:")
    e(f"s_cmp_lt_u32 s{S_Y}, 16")
    e("s_cbranch_scc1 L_et")
    e(f"s_lshl_b32 s{T + 9}, s{S_L}, 7")
    e(f"s_mov_b32 s{T + 10}, 3584")
    e(f"s_mov_b32 s{T + 12}, {512 * 3584}")
    e(f"s_mov_b32 s{R_C}, s{S_W1}")
    e(f"s_mov_b32 s{R_C + 1}, s{S_W1 + 1}")
    e(f"s_cmp_lt_u32 s{S_Y}, 23")
    e("s_cbranch_scc1 L_et")
    e(f"s_lshl_b32 s{T + 9}, s{S_XI}, 7")
    e(f"s_mov_b32 s{T + 10}, 1024")
    e(f"s_mov_b32 s{R_C}, s{S_W2}")
    e(f"s_mov_b32 s{R_C + 1}, s{S_W2 + 1}")
    e(f"s_cmp_eq_u32 s{T + 15}, 1")
    e(f"s_cselect_b32 s{T + 12}, {1792 * 1024}, 0")
    e("L_et:")
    e(f"s_mul_i32 s{T + 8}, s{T + 8}, s{T + 10}")
    e(f"s_add_u32 s{T + 8}, s{T + 8}, s{T + 9}")
    e(f"s_lshl_b32 s{T + 9}, s{T + 10}, 3")
    e(f"s_mov_b32 s{R_C + 2}, s{T + 12}")
    e(f"s_mov_b32 s{R_C + 3}, 0x20000")
    if rs8:
        e(f"s_cmp_lt_u32 s{S_Y}, 23")
        e(f"s_cselect_b32 s{T + 13}, s{T + 9}, s{T + 10}")
        e(f"s_cselect_b32 s{T + 9}, s{T + 10}, s{T + 9}")
    else:
        e(f"s_mov_b32 s{T + 13}, s{T + 10}")
    e("v_lshrrev_b32 v9, 3, v0")
    e(f"v_mul_lo_u32 v9, v9, s{T + 13}")
    e("v_and_b32 v10, 7, v0")
    e("v_lshl_add_u32 v11, v10, 4, v9")
    if "wlin" in xp or "wlinE" in xp:
        e("v_lshlrev_b32 v11, 4, v0")
        e(f"s_lshl_b32 s{T + 8}, s2, 15")
        e(f"s_lshl_b32 s{T + 9}, s{SW}, 13")
        e(f"s_add_u32 s{T + 8}, s{T + 8}, s{T + 9}")
        e(f"s_mov_b32 s{T + 9}, 1024")
        e(f"s_cmp_eq_u32 s{R_C + 2}, 0")
        e(f"s_cselect_b32 s{R_C + 2}, 0, 0x1000000")
        e(f"s_mov_b32 s{R_C}, s{S_K}")
        e(f"s_mov_b32 s{R_C + 1}, s{S_K + 1}")
    def wload():
        e(f"s_mov_b32 m0, s{T + 11}")
        e(f"s_add_u32 s{T + 11}, s{T + 11}, 1024")
        e(f"buffer_load_dwordx4 v11, s[{R_C}:{R_C + 3}], s{T + 8} offen {wpol} lds")
        e(f"s_add_u32 s{T + 8}, s{T + 8}, s{T + 9}")

    if not wint:
        for ii in range(8):
            if ii == 4 and qx:
                e(f"s_cmp_eq_u32 s{S_HALF}, 0")
                e("s_cbranch_scc1 L_nohalf2")
                e(f"s_lshl_b32 s{T + 11}, s{SW}, 12")
                e(f"s_add_u32 s{T + 11}, s{T + 11}, {L_T0 + 16384}")
                e(f"s_mov_b32 s{R_C + 2}, 0")
                e("L_nohalf2:")
            if ii == 6:
                e(f"s_cmp_eq_u32 s{T + 15}, 1")
                e("s_cbranch_scc1 L_et2")
            wload()
        e("L_et2:")
        srd_off(R_B, S_V, T + 2, 0x20000)
        e(f"v_lshlrev_b32 v{VV}, 4, v0")
        e(f"s_mov_b32 s{T + 5}, s{ROT}")
        knext()
        ktile(thr + 2, T + 5)
        knext()
        ktile(thr + 2, T + 5)
        knext()
        e("s_waitcnt vmcnt(8)")
    else:
        srd_off(R_B, S_V, T + 2, 0x20000)
        e(f"v_lshlrev_b32 v{VV}, 4, v0")
        e(f"s_mov_b32 s{T + 5}, s{ROT}")
        for kt in range(2):
            knext()
            for q in range(4):
                if kt == 1 and q >= 2:
                    lb = e.label("w2s")
                    e(f"s_cmp_eq_u32 s{T + 15}, 1")
                    e(f"s_cbranch_scc1 {lb}")
                    wload()
                    e(f"{lb}:")
                else:
                    wload()
                e(f"s_mov_b32 m0, s{T + 4}")
                e("s_nop 0")
                e(f"buffer_load_dwordx4 v{VK + q}, s[{R_A}:{R_A + 3}], s{T + 5} offen offset:{q * 1024} {kpol} lds")
                e(f"s_waitcnt vmcnt({thr + 3})")
        knext()
        ktile(thr + 2, T + 5)
        knext()
        e("s_waitcnt vmcnt(5)")
    e("s_barrier")
    estamp(3)
    e(f"s_mov_b32 s{T + 6}, {nshallow - (3 if wint else 2)}")
    e("L_kloop:")
    ktile(thr, T + 5)
    knext()
    e(f"s_sub_u32 s{T + 6}, s{T + 6}, 1")
    e(f"s_cmp_lg_u32 s{T + 6}, 0")
    e("s_cbranch_scc1 L_kloop")
    estamp(4)
    e(f"s_mov_b32 s{T + 6}, {7 - nshallow}")
    e("L_kloop2:")
    ktile(thr2, T + 5)
    knext()
    e(f"s_sub_u32 s{T + 6}, s{T + 6}, 1")
    e(f"s_cmp_lg_u32 s{T + 6}, 0")
    e("s_cbranch_scc1 L_kloop2")
    stamp(1)
    e("s_waitcnt lgkmcnt(0)")
    epoch_load()

    VB = 128

    def vtile_off(t):
        e(f"s_add_u32 s{T + 7}, s{ROT}, {t * 16384}")
        e(f"s_and_b32 s{T + 7}, s{T + 7}, 0x1ffff")

    def vload(u, k0, k1, throttle=None):
        for k in range(k0, k1):
            Tt, i = k >> 2, k & 3
            if i == 0 or k == k0:
                vtile_off(2 * u + Tt)
            r = VB + u * 32 + k * 4
            e(f"buffer_load_dwordx4 {vr(r, 4)}, v{VV}, s[{R_B}:{R_B + 3}], s{T + 7} offen offset:{i * 1024} {kpol}")
            if throttle is not None:
                e(f"s_waitcnt vmcnt({throttle})")

    vload(0, 0, 8, thr2)
    if late:
        vload(1, 0, 8, thr2)
    e(f"s_mov_b32 s{S_SC}, 0x3db504f3")
    e(f"s_mov_b32 s{S_L2E}, 0x3fb8aa3b")
    e(f"s_mov_b32 s{S_PLO}, 0x05040100")
    e(f"s_mov_b32 s{S_PHI}, 0x07060302")
    VKA = 9
    e("v_and_b32 v3, 3, v2")
    e("v_lshlrev_b32 v3, 2, v3")
    e("v_lshrrev_b32 v13, 2, v2")
    e("v_add_u32 v3, v3, v13")
    e("v_lshlrev_b32 v3, 8, v3")
    e("v_xor_b32 v13, v1, v2")
    e("v_lshl_add_u32 v3, v13, 4, v3")
    e(f"s_lshl_b32 s{T + 4}, s{SW}, 15")
    e(f"v_add_u32 v{VKA}, s{T + 4}, v3")
    e(f"v_xor_b32 v{VKA + 1}, 64, v{VKA}")
    e(f"v_xor_b32 v{VKA + 2}, 0x80, v{VKA}")
    e(f"v_xor_b32 v{VKA + 3}, 0xc0, v{VKA}")
    e("v_lshrrev_b32 v13, 2, v2")
    e("v_lshlrev_b32 v13, 8, v13")
    e("v_lshl_add_u32 v13, v1, 4, v13")
    e(f"v_add_u32 v13, {L_QB}, v13")
    e(f"s_lshl_b32 s{T + 4}, s{SW}, 8")
    e(f"s_add_u32 s{T + 4}, s{T + 4}, {L_MAX}")
    e("v_lshlrev_b32 v14, 2, v0")
    e(f"v_add_u32 v15, s{T + 4}, v14")
    e(f"v_add_u32 v14, {L_MAX}, v14")
    e(f"s_waitcnt vmcnt({16 if late else 8}) lgkmcnt(0)")
    epoch_tag()
    stamp(2)
    e("s_barrier")
    stamp(3)
    QF = 16
    KF = 32
    SS = 64
    for s in range(4):
        e(f"ds_read_b128 {vr(QF + 4 * s, 4)}, v13 offset:{64 * s}")

    def kread(t):
        for s in range(4):
            e(f"ds_read_b128 {vr(KF + 16 * (t & 1) + 4 * s, 4)}, v{VKA + s} offset:{t * 4096}")

    kread(0)
    for t in range(8):
        vload(1 + late, t, t + 1)
        if t < 7:
            kread(t + 1)
            e("s_waitcnt lgkmcnt(4)")
        else:
            e("s_waitcnt lgkmcnt(0)")
        for s in range(4):
            c = "0" if s == 0 else vr(SS + 4 * t, 4)
            e(f"v_mfma_f32_16x16x32_bf16 {vr(SS + 4 * t, 4)}, {vr(KF + 16 * (t & 1) + 4 * s, 4)}, {vr(QF + 4 * s, 4)}, {c}")
    stamp(4)
    TMP = 32
    e("s_nop 7")
    for p in range(16):
        a = SS + 2 * p
        t0 = TMP + (p & 1)
        if p % 4 == 1:
            vload(2 + late, p // 4, p // 4 + 1)
        e(f"v_cvt_pk_bf16_f32 v{t0}, v{a}, v{a + 1}")
        e(f"v_lshlrev_b32 v{a}, 16, v{t0}")
        e(f"v_and_b32 v{a + 1}, s{S_M16}, v{t0}")
        e(f"v_mul_f32 v{a}, s{S_SC}, v{a}")
        e(f"v_mul_f32 v{a + 1}, s{S_SC}, v{a + 1}")
        e(f"v_cvt_pk_bf16_f32 v{t0}, v{a}, v{a + 1}")
        e(f"v_lshlrev_b32 v{a}, 16, v{t0}")
        e(f"v_and_b32 v{a + 1}, s{S_M16}, v{t0}")
    MX = 34
    e(f"v_max3_f32 v{MX}, v{SS}, v{SS + 1}, v{SS + 2}")
    for k in range(3, 31, 2):
        e(f"v_max3_f32 v{MX}, v{MX}, v{SS + k}, v{SS + k + 1}")
    e(f"v_max_f32 v{MX}, v{MX}, v{SS + 31}")
    xrow_reduce("v_max_f32", MX, 35)
    e(f"ds_write_b32 v15, v{MX}")
    e("s_waitcnt lgkmcnt(0)")
    stamp(5)
    e("s_barrier")
    e(f"ds_read2st64_b32 v[36:37], v14 offset0:0 offset1:1")
    e(f"ds_read2st64_b32 v[38:39], v14 offset0:2 offset1:3")
    e("s_waitcnt lgkmcnt(0)")
    e(f"v_max3_f32 v{MX}, v36, v37, v38")
    e(f"v_max_f32 v{MX}, v{MX}, v39")
    MC = 35
    e(f"v_mul_f32 v{MC}, s{S_L2E}, v{MX}")
    PP = 40
    e(f"s_sub_u32 s{T + 10}, s{S_Y}, 23")
    e(f"s_lshl_b32 s{T + 8}, s{T + 10}, 18")
    e(f"s_lshl_b32 s{T + 9}, s{S_XI}, 7")
    e(f"s_add_u32 s{T + 8}, s{T + 8}, s{T + 9}")
    e(f"s_lshl_b32 s{T + 9}, s{SW}, 14")
    e(f"s_add_u32 s{T + 8}, s{T + 8}, s{T + 9}")
    e(f"s_add_u32 s{T + 8}, s{T + 8}, {192 * 1024}")
    e(f"s_cmp_lt_u32 s{T + 10}, 7")
    e(f"s_cselect_b32 s{T + 10}, {1792 * 1024}, 0")
    srd(R_D, S_W2, S_W2 + 1, f"s{T + 10}")
    e(f"s_lshl_b32 s{T + 9}, s{SW}, 11")
    e(f"s_add_u32 s{T + 9}, s{T + 9}, {L_W2B}")
    e("v_lshrrev_b32 v3, 3, v0")
    e("v_lshlrev_b32 v3, 10, v3")
    e("v_and_b32 v4, 7, v0")
    e("v_lshl_add_u32 v3, v4, 4, v3")
    if ("wlin" in xp or "wlinO" in xp):
        e("v_lshlrev_b32 v3, 4, v0")
        e(f"s_lshl_b32 s{T + 8}, s2, 14")
        e(f"s_and_b32 s{T + 8}, s{T + 8}, 0xfffff")

    def w2load():
        e(f"s_mov_b32 m0, s{T + 9}")
        e(f"s_add_u32 s{T + 9}, s{T + 9}, 1024")
        e(f"buffer_load_dwordx4 v3, s[{R_D}:{R_D + 3}], s{T + 8} offen {wpol} lds")
        e(f"s_add_u32 s{T + 8}, s{T + 8}, {1024 if ('wlin' in xp or 'wlinO' in xp) else 8192}")

    for p in range(16):
        a = SS + 2 * p
        e(f"v_fma_f32 v{a}, v{a}, s{S_L2E}, -v{MC}")
        e(f"v_fma_f32 v{a + 1}, v{a + 1}, s{S_L2E}, -v{MC}")
        e(f"v_exp_f32 v{a}, v{a}")
        e(f"v_exp_f32 v{a + 1}, v{a + 1}")
        if p > 0:
            e(f"v_cvt_pk_bf16_f32 v{PP + p - 1}, v{a - 2}, v{a - 1}")
        if p in (2, 5):
            w2load()
        if p >= 8 and p % 2 == 1:
            vload(2 + late, 4 + (p - 8) // 2, 5 + (p - 8) // 2)
    ACC = 64
    ACL = 96
    ONE = 100
    PT = 16
    for k in range(4):
        e(f"v_mov_b32 v{ONE + k}, 0x3f803f80")
    e(f"v_cvt_pk_bf16_f32 v{PP + 15}, v{SS + 30}, v{SS + 31}")
    e(f"s_lshl_b32 s{T + 8}, s{SW}, 8")
    e(f"s_add_u32 s{T + 8}, s{T + 8}, {L_LSUM}")
    e("v_lshlrev_b32 v6, 2, v0")
    e(f"v_add_u32 v5, s{T + 8}, v6")
    for u in range(4):
        c = "0" if u == 0 else vr(ACL, 4)
        e(f"v_mfma_f32_16x16x32_bf16 {vr(ACL, 4)}, {vr(PP + 4 * u, 4)}, {vr(ONE, 4)}, {c}")
    e("s_nop 7")
    e(f"ds_write_b32 v5, v{ACL}")
    e("s_waitcnt lgkmcnt(0)")
    stamp(6)
    e("s_barrier")
    e(f"s_lshl_b32 s{T + 12}, s{S_B}, 10")
    e(f"s_lshl_b32 s{T + 13}, s{S_XI}, 7")
    e(f"s_add_u32 s{T + 12}, s{T + 12}, s{T + 13}")
    e(f"s_lshl_b32 s{T + 13}, s{S_SP}, 4")
    e(f"s_add_u32 s{T + 12}, s{T + 12}, s{T + 13}")
    e(f"s_load_dwordx4 s[{S_RES}:{S_RES + 3}], s[{S_X}:{S_X + 1}], s{T + 12}")

    def pv(u, loads=None):
        first = u == 0
        A = vr(PP + 4 * u, 4)

        def perms(w):
            base = PT + 8 * (w & 1)
            for d in range(4):
                a = VB + u * 32 + (2 * d) * 4 + w
                b = VB + u * 32 + (2 * d + 1) * 4 + w
                e(f"v_perm_b32 v{base + d}, v{b}, v{a}, s{S_PLO}")
            for d in range(4):
                a = VB + u * 32 + (2 * d) * 4 + w
                b = VB + u * 32 + (2 * d + 1) * 4 + w
                e(f"v_perm_b32 v{base + 4 + d}, v{b}, v{a}, s{S_PHI}")

        def mf(w):
            base = PT + 8 * (w & 1)
            for hi in range(2):
                j = 2 * w + hi
                c = "0" if first else vr(ACC + 4 * j, 4)
                e(f"v_mfma_f32_16x16x32_bf16 {vr(ACC + 4 * j, 4)}, {A}, {vr(base + 4 * hi, 4)}, {c}")

        if loads:
            loads(0)
        perms(0)
        for w in range(1, 4):
            if loads:
                loads(w)
            perms(w)
            mf(w - 1)
        e("s_nop 1")
        mf(3)

    if not late:
        e("s_waitcnt vmcnt(18)")
        pv(0, lambda w: vload(3, w, w + 1))
        e("s_waitcnt vmcnt(14)")
        pv(1, lambda w: vload(3, 4 + w, 5 + w))
    srd(R_WS, S_WS, S_WS + 1, WS_SIZE)
    e(f"s_lshl_b32 s{T + 8}, s{S_XI}, 2")
    e(f"s_add_u32 s{T + 8}, s{T + 8}, s{S_B}")
    e(f"s_lshl_b32 s{T + 8}, s{T + 8}, 17")
    e(f"s_lshl_b32 s{T + 9}, s{S_SP}, 7")
    e(f"s_add_u32 s{T + 8}, s{T + 8}, s{T + 9}")
    e(f"s_lshl_b32 s{T + 9}, s{SW}, 15")
    e(f"s_add_u32 s{T + 8}, s{T + 8}, s{T + 9}")
    srd(R_C, S_WO, S_WO + 1, 4096 * 1024)
    e(f"s_lshl_b32 s{T + 9}, s{SW}, 12")
    e(f"s_add_u32 s{T + 9}, s{T + 9}, {L_WO}")
    if ("wlin" in xp or "wlinO" in xp):
        e(f"s_lshl_b32 s{T + 8}, s2, 14")
        e(f"s_lshl_b32 s{T + 10}, s{SW}, 12")
        e(f"s_add_u32 s{T + 8}, s{T + 8}, s{T + 10}")

    def woload(w=None):
        e(f"s_mov_b32 m0, s{T + 9}")
        e(f"s_add_u32 s{T + 9}, s{T + 9}, 1024")
        e(f"buffer_load_dwordx4 v3, s[{R_C}:{R_C + 3}], s{T + 8} offen {wpol} lds")
        e(f"s_add_u32 s{T + 8}, s{T + 8}, {1024 if ('wlin' in xp or 'wlinO' in xp) else 8192}")

    if not late:
        for ii in range(4):
            woload()
        e("s_waitcnt vmcnt(12)")
        e("s_barrier")
        pv(2)
    else:
        e("s_waitcnt vmcnt(26)")
        pv(0, woload)
        e("s_waitcnt vmcnt(22)")
        pv(1)
        e("s_waitcnt vmcnt(8)")
        e("s_barrier")
        pv(2)
    e(f"s_lshl_b32 s{T + 8}, s{SW}, 11")
    e("v_lshlrev_b32 v3, 5, v0")
    e(f"v_add_u32 v4, s{T + 8}, v3")
    tail_addrs()
    e("s_waitcnt vmcnt(4)")
    stamp(7)
    pv(3)
    e("s_nop 1")
    for j in range(8):
        e(f"v_mov_b32 v{16 + j}, v{ACC + 4 * j}")
    e("ds_write_b128 v4, v[16:19]")
    e("ds_write_b128 v4, v[20:23] offset:16")
    e("s_waitcnt lgkmcnt(0)")
    stamp(8)
    tstamp(1)
    e("s_barrier")
    tstamp(2)
    e("s_branch L_wts2")

    e("L_H:")
    e("s_setprio 3")
    roles()
    e("v_mov_b32 v3, 0")
    estamp(1)
    e(f"s_cmp_lg_u32 s{S_WAVE}, 0")
    e("s_cbranch_scc1 L_H23")
    e(f"s_sub_u32 s{T}, s{S_Y}, 23")
    e(f"s_cmp_lt_u32 s{T}, {7 if qx else 9}")
    e("s_cbranch_scc1 L_H23")
    P_QA, P_OUT = T + 5, T + 8
    e(f"s_lshl_b32 s{P_QA}, s{S_KH}, 1")
    if qx:
        e(f"s_lshr_b32 s{T}, s{S_HALF}, 1")
        e(f"s_add_u32 s{P_QA}, s{P_QA}, s{T}")
    e(f"s_lshl_b32 s{P_OUT}, s{S_XI}, 14")
    if "cgrot" in xp:
        e(f"s_add_u32 s{T}, s{S_SP}, 2")
        e(f"s_and_b32 s{T}, s{T}, 7")
        e(f"s_lshl_b32 s{T + 1}, s{S_KH}, 3")
        e(f"s_add_u32 s{T}, s{T}, s{T + 1}")
        e(f"s_lshl_b32 s{T}, s{T}, 10")
    else:
        e(f"s_lshl_b32 s{T}, s{S_Y}, 10")
    e(f"s_add_u32 s{P_OUT}, s{P_OUT}, s{T}")
    e(f"s_add_u32 s{P_OUT}, s{P_OUT}, {WS_Q}")
    e(f"s_lshl_b32 s{T}, s{S_L}, 1")
    e(f"s_add_u32 s{T}, s{T}, s{S_KH}")
    e(f"s_lshl_b32 s{T}, s{T}, 10")
    e(f"s_add_u32 s{T}, s{T}, {WS_H}")
    e(f"s_cmp_lt_u32 s{S_Y}, 16")
    e(f"s_cselect_b32 s{P_OUT}, s{P_OUT}, s{T}")
    if qx:
        e(f"s_lshl_b32 s{T}, s{S_XI}, 1")
        e(f"s_add_u32 s{T}, s{T}, s{S_KH}")
        e(f"s_lshl_b32 s{T}, s{T}, 10")
        e(f"s_add_u32 s{T}, s{T}, {WS_QX}")
        e(f"s_cmp_eq_u32 s{S_HALF}, 3")
        e(f"s_cselect_b32 s{P_OUT}, s{T}, s{P_OUT}")
    e("v_and_b32 v3, 3, v2")
    e("v_lshrrev_b32 v10, 2, v2")
    e("v_lshlrev_b32 v4, 10, v3")
    e("v_lshl_add_u32 v4, v10, 8, v4")
    e("v_lshl_add_u32 v4, v1, 4, v4")
    e("s_waitcnt lgkmcnt(0)")
    estamp(2)
    srd(R_B, S_X, S_X + 1, 4096)
    XR = 16
    for tau in range(4):
        e(f"buffer_load_dwordx4 {vr(XR + 4 * tau, 4)}, v4, s[{R_B}:{R_B + 3}], 0 offen offset:{64 * tau}")
    karg2()
    estamp(4)
    if rs8:
        e("v_lshlrev_b32 v14, 10, v10")
        e("v_lshl_add_u32 v14, v1, 7, v14")
    else:
        e("v_lshlrev_b32 v14, 10, v1")
        e("v_lshl_add_u32 v14, v10, 7, v14")
    e("v_lshl_add_u32 v14, v3, 3, v14")
    e(f"v_add_u32 v14, {L_T0}, v14")
    e(f"v_subrev_u32 v11, s{P_QA}, v10")
    e("v_and_b32 v11, 3, v11")
    e("v_lshlrev_b32 v5, 8, v3")
    e("v_lshl_add_u32 v5, v11, 6, v5")
    e("v_lshl_add_u32 v5, v1, 4, v5")
    e("v_cmp_ne_u32 s[64:65], 1, v11")
    e("v_cmp_ne_u32 s[66:67], 2, v11")
    e("v_cmp_ne_u32 s[68:69], 3, v11")
    e("s_waitcnt lgkmcnt(0)")
    epoch_load()
    srd(R_WS, S_WS, S_WS + 1, WS_SIZE)
    e("s_waitcnt vmcnt(0)")
    estamp(6)
    stamp(2)
    XF = 32
    for k in range(16):
        e(f"v_lshlrev_b32 v{XF + 2 * k}, 16, v{XR + k}")
        e(f"v_and_b32 v{XF + 2 * k + 1}, s{S_M16}, v{XR + k}")

    def lane_sum(r, t):
        e("s_nop 1")
        e(f"v_add_f32_dpp v{r}, v{r}, v{r} row_ror:4 row_mask:0xf bank_mask:0xf")
        e("s_nop 1")
        e(f"v_add_f32_dpp v{r}, v{r}, v{r} row_ror:8 row_mask:0xf bank_mask:0xf")
        xrow_reduce("v_add_f32", r, t)

    e(f"v_add_f32 v7, v{XF}, v{XF + 1}")
    e(f"v_add_f32 v8, v{XF + 2}, v{XF + 3}")
    for k in range(4, 32, 2):
        e(f"v_add_f32 v7, v7, v{XF + k}")
        e(f"v_add_f32 v8, v8, v{XF + k + 1}")
    e("v_add_f32 v7, v7, v8")
    lane_sum(7, 9)
    e("v_mul_f32 v7, 0x3b000000, v7")
    e(f"v_sub_f32 v12, v{XF}, v7")
    e(f"v_sub_f32 v6, v{XF + 1}, v7")
    e("v_mul_f32 v8, v12, v12")
    e("v_mul_f32 v13, v6, v6")
    for k in range(2, 32, 2):
        e(f"v_sub_f32 v12, v{XF + k}, v7")
        e(f"v_sub_f32 v6, v{XF + k + 1}, v7")
        e("v_fmac_f32 v8, v12, v12")
        e("v_fmac_f32 v13, v6, v6")
    e("v_add_f32 v8, v8, v13")
    lane_sum(8, 9)
    e("v_mul_f32 v8, 0x3b000000, v8")
    e("v_cvt_pk_bf16_f32 v9, v7, v8")
    e("v_lshlrev_b32 v7, 16, v9")
    e(f"v_and_b32 v8, s{S_M16}, v9")
    e("v_add_f32 v8, 0x3727c5ac, v8")
    e("v_cvt_pk_bf16_f32 v9, v8, v8")
    e(f"v_and_b32 v8, s{S_M16}, v9")
    e("v_sqrt_f32 v8, v8")
    e("s_nop 0")
    e("v_cvt_pk_bf16_f32 v9, v8, v8")
    e(f"v_and_b32 v8, s{S_M16}, v9")
    e("v_rcp_f32 v8, v8")
    BF = 16
    for k in range(16):
        a = XF + 2 * k
        e(f"v_sub_f32 v{a}, v{a}, v7")
        e(f"v_sub_f32 v{a + 1}, v{a + 1}, v7")
        e(f"v_cvt_pk_bf16_f32 v9, v{a}, v{a + 1}")
        e(f"v_lshlrev_b32 v{a}, 16, v9")
        e(f"v_and_b32 v{a + 1}, s{S_M16}, v9")
        e(f"v_mul_f32 v{a}, v{a}, v8")
        e(f"v_mul_f32 v{a + 1}, v{a + 1}, v8")
        e(f"v_cvt_pk_bf16_f32 v{BF + k}, v{a}, v{a + 1}")
    e("s_waitcnt lgkmcnt(0)")
    epoch_tag()
    estamp(7)
    stamp(3)
    e("s_barrier")
    estamp(8)
    stamp(4)
    AF = 64
    DD = 96

    def wread(bi):
        ct, hf = bi >> 1, bi & 1
        for t in range(4):
            r = AF + 16 * (bi & 1) + 4 * t
            tt = 4 * hf + t
            if rs8:
                o0 = (tt >> 1) * 8192 + (tt & 1) * 512 + ct * 32
                o1 = o0 + 4096
            else:
                o0 = tt * 4096 + ct * 32
                o1 = o0 + 512
            e(f"ds_read_b64_tr_b16 {vr(r, 2)}, v14 offset:{o0}")
            e(f"ds_read_b64_tr_b16 {vr(r + 2, 2)}, v14 offset:{o1}")

    wread(0)
    for bi in range(8):
        if bi < 7:
            wread(bi + 1)
            e("s_waitcnt lgkmcnt(8)")
        else:
            e("s_waitcnt lgkmcnt(0)")
        d = DD + 16 * (bi & 1) + 4 * (bi >> 1)
        for t in range(4):
            c = "0" if t == 0 else vr(d, 4)
            e(f"v_mfma_f32_16x16x32_bf16 {vr(d, 4)}, {vr(AF + 16 * (bi & 1) + 4 * t, 4)}, {vr(BF + 4 * t, 4)}, {c}")
    e(f"s_mov_b32 s{T}, 0x07060503")
    e(f"s_mov_b32 s{T + 1}, 0x07060502")
    e(f"s_mov_b32 s{T + 2}, 0x07060501")
    e("s_nop 4")
    for k in range(16):
        e(f"v_add_f32_dpp v{DD + k}, v{DD + 16 + k}, v{DD + k} row_ror:12 row_mask:0xf bank_mask:0xf")
    for ct in range(1, 4):
        e(f"s_mov_b64 vcc, s[{62 + 2 * ct}:{63 + 2 * ct}]")
        for i in range(4):
            e(f"v_cndmask_b32_dpp v{DD + i}, v{DD + 4 * ct + i}, v{DD + i}, vcc row_ror:{4 * ct} row_mask:0xf bank_mask:0xf")
    for i in range(4):
        e(f"v_add_u32 v{DD + i}, 0x80, v{DD + i}")
    for i in range(3):
        e(f"v_perm_b32 v{112 + i}, v{DD + i}, v{DD + 3}, s{T + i}")
    e("v_xor_b32 v115, v112, v113")
    e("v_xor_b32 v115, v115, v114")
    e(f"v_xor_b32 v115, s{S_TAG}, v115")
    if "nohand" not in xp:
        e(f"buffer_store_dwordx4 v[112:115], v5, {WSR}, s{P_OUT} offen sc1")
    stamp(5)
    e("s_waitcnt vmcnt(0)")
    stamp(6)
    e("L_qg:")
    if "nohand" in xp or "pubonly" in xp:
        e("s_branch L_Hb1")
    e(f"s_lshl_b32 s{T}, s{S_XI}, 14")
    e(f"s_lshl_b32 s{T + 1}, s{S_B}, 8")
    e(f"s_add_u32 s{T}, s{T}, s{T + 1}")
    e(f"s_add_u32 s{T}, s{T}, {WS_Q}")
    e(f"s_add_u32 s{T + 1}, s{T}, 4096")
    e(f"s_add_u32 s{T + 2}, s{T}, 8192")
    e(f"s_add_u32 s{T + 3}, s{T}, 12288")
    e("v_lshlrev_b32 v5, 10, v1")
    e("v_lshl_add_u32 v5, v2, 4, v5")
    e("v_lshlrev_b32 v6, 3, v0")
    e(f"v_add_u32 v6, {L_QB}, v6")
    e(f"s_mov_b32 s{T + 4}, 0x04000c0c")
    e(f"s_mov_b32 s{T + 5}, 0x0706000c")
    QG = 16

    def unit_checks(regs, t0, t1):
        for r in regs:
            e(f"v_xor_b32 v{r + 3}, v{r + 3}, v{r}")
        for r in regs:
            e(f"v_xor_b32 v{r + 3}, v{r + 3}, v{r + 1}")
        for r in regs:
            e(f"v_xor_b32 v{r + 3}, v{r + 3}, v{r + 2}")
        tagcheck([r + 3 for r in regs], t0, t1)

    def unit_unpack(r):
        e(f"v_perm_b32 v{r + 3}, v{r}, v{r + 1}, s{T + 4}")
        e(f"v_perm_b32 v{r + 3}, v{r + 3}, v{r + 2}, s{T + 5}")
        for i in range(3):
            e(f"v_and_b32 v{r + i}, 0xffffff00, v{r + i}")

    QE = 32
    if qx:
        e(f"s_lshl_b32 s{T + 6}, s{S_XI}, 11")
        e(f"s_lshl_b32 s{T + 7}, s{S_B}, 8")
        e(f"s_add_u32 s{T + 6}, s{T + 6}, s{T + 7}")
        e(f"s_add_u32 s{T + 6}, s{T + 6}, {WS_QX}")
        e("v_lshlrev_b32 v7, 4, v2")
        e("s_mov_b32 s62, 0")
        e("s_mov_b32 s63, 0xffff0000")
    lab = poll_begin("pq")
    for kh in range(2):
        for m in range(2):
            r = QG + 8 * kh + 4 * m
            e(f"buffer_load_dwordx4 {vr(r, 4)}, v5, {WSR}, s{T + 2 * kh + m} offen sc1")
    if qx:
        lx = e.label("qx")
        e("s_mov_b64 s[66:67], exec")
        e("s_and_b64 exec, exec, s[62:63]")
        e(f"s_cbranch_execz {lx}")
        e(f"buffer_load_dwordx4 {vr(QE, 4)}, v7, {WSR}, s{T + 6} offen sc1")
        e(f"buffer_load_dwordx4 {vr(QE + 4, 4)}, v7, {WSR}, s{T + 6} offen offset:1024 sc1")
        e(f"{lx}:")
        e("s_mov_b64 exec, s[66:67]")
    e("s_waitcnt vmcnt(0)")
    if qx:
        for r in (QE, QE + 4):
            e(f"v_xor_b32 v{r + 3}, v{r + 3}, v{r}")
            e(f"v_xor_b32 v{r + 3}, v{r + 3}, v{r + 1}")
            e(f"v_xor_b32 v{r + 3}, v{r + 3}, v{r + 2}")
        e(f"v_cmp_ne_u32 s[66:67], s{S_TAG}, v{QE + 3}")
        e(f"v_cmp_ne_u32 vcc, s{S_TAG}, v{QE + 7}")
        e("s_or_b64 s[66:67], s[66:67], vcc")
        e("s_and_b64 s[66:67], s[66:67], s[62:63]")
    unit_checks([QG + 4 * k for k in range(4)], 8, 9)
    if qx:
        e("s_or_b64 vcc, vcc, s[66:67]")
    if "once" in xp:
        e("s_mov_b64 vcc, 0")
    poll_end(lab, 6)
    for k in range(4):
        unit_unpack(QG + 4 * k)
    if qx:
        unit_unpack(QE)
        unit_unpack(QE + 4)
        e("s_mov_b64 exec, s[62:63]")
        for i in range(4):
            e(f"v_add_f32 v{QG + i}, v{QG + i}, v{QE + i}")
            e(f"v_add_f32 v{QG + 8 + i}, v{QG + 8 + i}, v{QE + 4 + i}")
        e("s_mov_b64 exec, -1")
    for m in range(2):
        r = QG + 4 * m
        for i in range(4):
            e(f"v_add_f32 v{r + i}, v{r + i}, v{r + 8 + i}")
        e(f"v_cvt_pk_bf16_f32 v{r}, v{r}, v{r + 1}")
        e(f"v_cvt_pk_bf16_f32 v{r + 1}, v{r + 2}, v{r + 3}")
        e(f"ds_write_b64 v6, {vr(r, 2)} offset:{512 * m}")
    e("s_waitcnt lgkmcnt(0)")
    stamp(7)
    e("s_branch L_Hb1")

    e("L_H23:")
    e("s_waitcnt lgkmcnt(0)")
    karg2()
    e("s_waitcnt lgkmcnt(0)")
    epoch_load()
    srd(R_WS, S_WS, S_WS + 1, WS_SIZE)
    e("s_waitcnt lgkmcnt(0)")
    epoch_tag()
    e(f"s_cmp_eq_u32 s{S_WAVE}, 2")
    e("s_cbranch_scc0 L_noid")
    e(f"s_lshl_b32 s{T}, s{S_XI}, 8")
    e(f"s_lshl_b32 s{T + 1}, s{S_Y}, 3")
    e(f"s_add_u32 s{T}, s{T}, s{T + 1}")
    e(f"s_add_u32 s{T}, s{T}, {WS_ID}")
    e(f"s_getreg_b32 s{T + 2}, hwreg(HW_REG_XCC_ID, 0, 4)")
    e(f"v_mov_b32 v6, s{T + 2}")
    e(f"v_mov_b32 v7, s{S_TAG}")
    e("v_mov_b32 v5, 0")
    e("s_mov_b64 exec, 1")
    e(f"buffer_store_dwordx2 v[6:7], v5, {WSR}, s{T} offen sc1")
    e("s_mov_b64 exec, -1")
    e("L_noid:")
    e("s_barrier")
    e(f"s_cmp_eq_u32 s{S_WAVE}, 0")
    e("s_cbranch_scc1 L_qg")

    e("L_Hb1:")
    e("s_barrier")
    HG = 32

    def hloads():
        for lp in range(4):
            for kh in range(2):
                r = HG + 8 * lp + 4 * kh
                e(f"buffer_load_dwordx4 {vr(r, 4)}, v3, {WSR}, s{T + (lp >> 1)} offen offset:{(lp & 1) * 2048 + 1024 * kh} sc1")

    e(f"s_sub_u32 s{T + 4}, s{S_Y}, 23")
    e(f"s_cmp_lt_u32 s{T + 4}, 7")
    e(f"s_cselect_b32 s{T + 6}, s{S_WAVE}, 0")
    if "nohand" in xp or "noh" in xp or "pubonly" in xp or "once" in xp:
        e(f"s_mov_b32 s{T + 6}, 0")
    e(f"s_cmp_eq_u32 s{T + 6}, 3")
    e("s_cbranch_scc0 L_noh1")
    e(f"s_lshl_b32 s{T}, s{T + 4}, 13")
    e(f"s_add_u32 s{T}, s{T}, {WS_H}")
    e(f"s_add_u32 s{T + 1}, s{T}, 4096")
    e("v_lshlrev_b32 v3, 4, v0")
    hloads()
    e("L_noh1:")
    e(f"s_lshl_b32 s{T + 10}, s{S_XI}, 8")
    e(f"s_add_u32 s{T + 10}, s{T + 10}, {WS_ID}")
    e("v_and_b32 v30, 31, v0")
    e("v_lshlrev_b32 v30, 3, v30")
    e(f"s_cmp_eq_u32 s{S_WAVE}, 0")
    e("s_cbranch_scc0 L_noid2")
    e(f"buffer_load_dwordx2 v[30:31], v30, {WSR}, s{T + 10} offen sc1")
    e("L_noid2:")
    e("s_barrier")
    e("s_barrier")
    stamp(8)
    e(f"s_mov_b32 s{S_SAME}, 0")
    e(f"s_cmp_eq_u32 s{S_WAVE}, 0")
    e("s_cbranch_scc0 L_noid3")
    e(f"s_getreg_b32 s{T + 10}, hwreg(HW_REG_XCC_ID, 0, 4)")
    e("s_waitcnt vmcnt(0)")
    e(f"v_cmp_ne_u32 s[64:65], s{S_TAG}, v31")
    e(f"v_cmp_ne_u32 vcc, s{T + 10}, v30")
    e("s_or_b64 vcc, vcc, s[64:65]")
    e("s_cmp_eq_u64 vcc, 0")
    e(f"s_cselect_b32 s{S_SAME}, 1, 0")
    if "noxcc" in xp:
        e(f"s_mov_b32 s{S_SAME}, 0")
    e(f"v_mov_b32 v30, {L_SCALE + 16}")
    e(f"v_mov_b32 v31, s{S_SAME}")
    e("ds_write_b32 v30, v31")
    e("L_noid3:")
    e(f"s_cmp_eq_u32 s{T + 6}, 3")
    e("s_cbranch_scc0 L_noh2")
    e("v_lshlrev_b32 v6, 9, v1")
    e("v_lshl_add_u32 v6, v2, 3, v6")
    e(f"v_add_u32 v6, {L_HB}, v6")
    e(f"s_mov_b32 s{T + 4}, 0x04000c0c")
    e(f"s_mov_b32 s{T + 5}, 0x0706000c")
    lab = e.label("ph")
    e(f"s_mov_b32 s{T + 17}, {POLL_LIMIT}")
    e(f"{lab}:")
    e("s_waitcnt vmcnt(0)")
    unit_checks([HG + 4 * k for k in range(8)], 8, 9)
    e("s_cmp_eq_u64 vcc, 0")
    e(f"s_cbranch_scc1 {lab}_d")
    e(f"s_sub_u32 s{T + 17}, s{T + 17}, 1")
    e(f"s_cbranch_scc1 {lab}_d")
    e("s_sleep 4")
    hloads()
    e(f"s_branch {lab}")
    e(f"{lab}_d:")
    for k in range(8):
        unit_unpack(HG + 4 * k)
    for lp in range(4):
        r = HG + 8 * lp
        for i in range(4):
            e(f"v_add_f32 v{r + i}, v{r + i}, v{r + 4 + i}")
        for i in range(4):
            e(f"v_max_f32 v{r + i}, 0, v{r + i}")
        e(f"v_cvt_pk_bf16_f32 v{r}, v{r}, v{r + 1}")
        e(f"v_cvt_pk_bf16_f32 v{r + 1}, v{r + 2}, v{r + 3}")
        e(f"ds_write_b64 v6, {vr(r, 2)} offset:{128 * lp}")
    e("L_noh2:")
    e(f"s_cmp_eq_u32 s{S_WAVE}, 2")
    e("s_cbranch_scc0 L_nolse")
    e("v_lshlrev_b32 v3, 2, v0")
    e(f"ds_read2st64_b32 v[6:7], v3 offset0:{L_LSUM // 256} offset1:{L_LSUM // 256 + 1}")
    e(f"ds_read2st64_b32 v[8:9], v3 offset0:{L_LSUM // 256 + 2} offset1:{L_LSUM // 256 + 3}")
    e("v_lshlrev_b32 v4, 4, v1")
    e(f"v_add_u32 v4, {L_MAX}, v4")
    e("ds_read2st64_b32 v[10:11], v4 offset0:0 offset1:1")
    e("ds_read2st64_b32 v[12:13], v4 offset0:2 offset1:3")
    e(f"s_mov_b32 s{S_L2E}, 0x3fb8aa3b")
    e(f"s_lshl_b32 s{T}, s{S_XI}, 12")
    e(f"s_lshl_b32 s{T + 1}, s{S_B}, 10")
    e(f"s_add_u32 s{T}, s{T}, s{T + 1}")
    e(f"s_add_u32 s{T}, s{T}, {WS_LSE}")
    e(f"s_lshl_b32 s{T + 1}, s{S_SP}, 7")
    e(f"s_add_u32 s{T + 1}, s{T + 1}, s{T}")
    e("s_waitcnt lgkmcnt(0)")
    e("v_add_f32 v6, v6, v7")
    e("v_add_f32 v8, v8, v9")
    e("v_max3_f32 v10, v10, v11, v12")
    e("v_add_f32 v6, v6, v8")
    e("v_max_f32 v10, v10, v13")
    e("v_rcp_f32 v11, v6")
    e("v_log_f32 v6, v6")
    e(f"v_mul_f32 v10, s{S_L2E}, v10")
    e("v_lshlrev_b32 v5, 3, v1")
    e("v_add_f32 v6, v6, v10")
    e(f"v_mov_b32 v7, s{S_TAG}")
    e("v_cmp_eq_u32 vcc, 0, v2")
    e("s_and_saveexec_b64 s[64:65], vcc")
    e(f"buffer_store_dwordx2 v[6:7], v5, {WSR}, s{T + 1} offen sc1")
    e("s_mov_b64 exec, s[64:65]")
    e("v_lshlrev_b32 v5, 2, v1")
    e(f"v_add_u32 v5, {L_SCALE}, v5")
    e("v_cmp_eq_u32 vcc, 0, v2")
    e("s_and_saveexec_b64 s[64:65], vcc")
    e("ds_write_b32 v5, v11")
    e("s_mov_b64 exec, s[64:65]")
    e("L_nolse:")
    WF = 32
    e("v_lshrrev_b32 v10, 2, v2")
    e("v_and_b32 v11, 3, v2")
    e("v_lshlrev_b32 v4, 10, v1")
    e("v_lshl_add_u32 v4, v10, 7, v4")
    e("v_lshl_add_u32 v4, v11, 3, v4")
    e(f"s_lshl_b32 s{T}, s{S_WAVE}, 5")
    e(f"v_add_u32 v4, s{T}, v4")
    e("v_lshlrev_b32 v6, 9, v11")
    e("v_lshl_add_u32 v6, v1, 4, v6")
    e(f"v_add_u32 v6, {L_HB}, v6")
    e("v_lshlrev_b32 v9, 6, v2")
    e("v_lshl_add_u32 v9, v1, 4, v9")
    e(f"v_mov_b32 v17, s{S_TAG}")
    e(f"v_mov_b32 v19, s{S_TAG}")
    e("s_waitcnt lgkmcnt(0)")
    e("s_barrier")
    e(f"s_cmp_eq_u32 s{S_WAVE}, 1")
    e("s_cbranch_scc0 L_noid4")
    e(f"v_mov_b32 v30, {L_SCALE + 16}")
    e("ds_read_b32 v30, v30")
    e("s_waitcnt lgkmcnt(0)")
    e(f"v_readfirstlane_b32 s{S_SAME}, v30")
    e("L_noid4:")
    e(f"s_sub_u32 s{T + 4}, s{S_Y}, 23")
    e(f"s_cmp_ge_u32 s{T + 4}, 7")
    e("s_cbranch_scc1 L_nog2")
    e(f"v_add_u32 v7, {L_T0}, v4")
    for t in range(8):
        ad, off = ("v7", t * 4096) if t < 6 else ("v4", L_W2B + (t - 6) * 4096)
        e(f"ds_read_b64_tr_b16 {vr(64 + 4 * t, 2)}, {ad} offset:{off}")
        e(f"ds_read_b64_tr_b16 {vr(64 + 4 * t + 2, 2)}, {ad} offset:{off + 512}")
        if t == 3:
            e("s_waitcnt lgkmcnt(4)")
    e("s_waitcnt lgkmcnt(4)")
    for t in range(8):
        e(f"ds_read_b128 {vr(128 + 4 * t, 4)}, v6 offset:{64 * t}")
    e("s_waitcnt lgkmcnt(0)")
    for t in range(8):
        c = "0" if t == 0 else "v[12:15]"
        e(f"v_mfma_f32_16x16x32_bf16 v[12:15], {vr(64 + 4 * t, 4)}, {vr(128 + 4 * t, 4)}, {c}")
    e("s_nop 7")
    e("v_cvt_pk_bf16_f32 v20, v12, v13")
    e("v_cvt_pk_bf16_f32 v22, v14, v15")
    e(f"s_lshl_b32 s{T}, s{S_XI}, 15")
    e(f"s_lshl_b32 s{T + 1}, s{T + 4}, 10")
    e(f"s_add_u32 s{T}, s{T}, s{T + 1}")
    e(f"s_lshl_b32 s{T + 1}, s{S_WAVE}, 8")
    e(f"s_add_u32 s{T}, s{T}, s{T + 1}")
    e(f"s_add_u32 s{T}, s{T}, {WS_GP}")
    e(f"v_mov_b32 v21, s{S_TAG}")
    e(f"v_mov_b32 v23, s{S_TAG}")
    e("v_cmp_gt_u32 vcc, 4, v2")
    e("s_and_saveexec_b64 s[64:65], vcc")
    e(f"buffer_store_dwordx4 v[20:23], v9, {WSR}, s{T} offen sc1")
    e("s_mov_b64 exec, s[64:65]")
    e("L_nog2:")
    e("v_lshrrev_b32 v24, 5, v0")
    e(f"s_lshl_b32 s{T}, s{S_WAVE}, 1")
    e(f"v_add_u32 v24, s{T}, v24")
    e("v_and_b32 v25, 31, v0")
    e("v_lshlrev_b32 v25, 4, v25")
    e("v_lshl_add_u32 v26, v24, 9, v25")
    e("v_lshl_add_u32 v27, v24, 14, v25")
    e("v_lshlrev_b32 v28, 2, v24")
    e(f"v_add_u32 v28, {L_SCALE}, v28")
    e(f"s_lshl_b32 s{T + 11}, s{S_XI}, 16")
    e(f"s_lshl_b32 s{T + 1}, s{S_SP}, 11")
    e(f"s_add_u32 s{T + 11}, s{T + 11}, s{T + 1}")
    e(f"s_lshl_b32 s{T + 1}, s{S_B}, 9")
    e(f"s_add_u32 s{T + 11}, s{T + 11}, s{T + 1}")
    e(f"s_add_u32 s{T + 11}, s{T + 11}, {WS_OP}")
    e(f"v_mov_b32 v81, s{S_TAG}")
    e(f"v_mov_b32 v83, s{S_TAG}")
    e(f"s_lshl_b32 s{T + 14}, s{S_XI}, 2")
    e(f"s_add_u32 s{T + 14}, s{T + 14}, s{S_B}")
    e(f"s_lshl_b32 s{T + 14}, s{T + 14}, 10")
    e(f"s_lshl_b32 s{T + 1}, s{S_SP}, 15")
    e(f"s_add_u32 s{T + 14}, s{T + 14}, s{T + 1}")
    e(f"s_lshl_b32 s{T + 1}, s{S_WAVE}, 8")
    e(f"s_add_u32 s{T + 14}, s{T + 14}, s{T + 1}")
    e(f"s_add_u32 s{T + 14}, s{T + 14}, {WS_SP}")
    e("v_and_b32 v12, 3, v2")
    e("v_lshlrev_b32 v12, 8, v12")
    e("v_lshl_add_u32 v12, v1, 4, v12")
    e(f"v_add_u32 v12, {L_OBF}, v12")
    e(f"v_add_u32 v4, {L_WO}, v4")
    tail_addrs()
    stamp(9)

    tstamp(1)
    e("s_barrier")
    tstamp(2)
    e(f"s_cmp_lt_u32 s{S_WAVE}, 2")
    e("s_cbranch_scc0 L_nopub")
    for sw_ in range(4):
        e(f"ds_read_b128 {vr(64 + 4 * sw_, 4)}, v26 offset:{sw_ * 2048}")
    e("ds_read_b32 v29, v28")
    e("s_waitcnt lgkmcnt(0)")
    for i in range(4):
        e(f"v_add_f32 v{64 + i}, v{64 + i}, v{68 + i}")
        e(f"v_add_f32 v{72 + i}, v{72 + i}, v{76 + i}")
    for i in range(4):
        e(f"v_add_f32 v{64 + i}, v{64 + i}, v{72 + i}")
    for i in range(4):
        e(f"v_mul_f32 v{64 + i}, v{64 + i}, v29")
    e("v_cvt_pk_bf16_f32 v80, v64, v65")
    e("v_cvt_pk_bf16_f32 v82, v66, v67")
    e(f"s_cmp_eq_u32 s{S_SAME}, 1")
    e("s_cbranch_scc1 L_publ")
    e(f"buffer_store_dwordx4 v[80:83], v27, {WSR}, s{T + 11} offen sc1")
    e("s_branch L_pubs")
    e("L_publ:")
    e(f"buffer_store_dwordx4 v[80:83], v27, {WSR}, s{T + 11} offen")
    e("L_pubs:")
    tstamp(3)
    e("L_nopub:")
    e("L_wts2:")
    lse_loads()
    tstamp(5)
    if hint:
        e("v_lshlrev_b32 v6, 11, v0")
        e("v_add_u32 v6, 252, v6")
        e("s_mov_b64 exec, 0xff")
        lab = poll_begin("ph2")
        e(f"buffer_load_dword v8, v6, {WSR}, s{T} offen sc1")
        e("s_waitcnt vmcnt(0)")
        tagcheck([8], 0, 0)
        poll_end(lab, tsleep)
    def oloads():
        e(f"buffer_load_dwordx4 v[{OG}:{OG + 3}], v{VO}, {WSR}, s{S_O0} offen sc1")
        e(f"buffer_load_dwordx4 v[{OG + 4}:{OG + 7}], v{VO}, {WSR}, s{S_O1} offen sc1")

    oloads()
    e("s_waitcnt vmcnt(2)")
    weights(waited=True)
    tstamp(4)
    lab = e.label("po")
    e(f"s_mov_b32 s{T + 17}, {POLL_LIMIT}")
    e(f"s_branch {lab}_c")
    e(f"{lab}:")
    oloads()
    e(f"{lab}_c:")
    e("s_waitcnt vmcnt(0)")
    tagcheck([OG + 1, OG + 3, OG + 5, OG + 7], 8, 7)
    poll_end(lab, tsleep)
    stamp(10)
    tstamp(6)
    e(f"v_lshlrev_b32 v56, 16, v{OG}")
    e(f"v_and_b32 v57, s{S_M16}, v{OG}")
    e(f"v_lshlrev_b32 v58, 16, v{OG + 2}")
    e(f"v_and_b32 v59, s{S_M16}, v{OG + 2}")
    e(f"v_lshlrev_b32 v60, 16, v{OG + 4}")
    e(f"v_and_b32 v61, s{S_M16}, v{OG + 4}")
    e(f"v_lshlrev_b32 v62, 16, v{OG + 6}")
    e(f"v_and_b32 v63, s{S_M16}, v{OG + 6}")
    for i in range(4):
        e(f"v_mul_f32 v{56 + i}, v{56 + i}, v110")
    for i in range(4):
        e(f"v_fmac_f32 v{56 + i}, v{60 + i}, v111")
    e("s_nop 0")
    e("v_permlane32_swap_b32 v56, v58")
    e("v_permlane32_swap_b32 v57, v59")
    e("s_nop 0")
    e("v_add_f32 v56, v56, v58")
    e("v_add_f32 v57, v57, v59")
    e("s_nop 1")
    e("v_permlane16_swap_b32 v56, v57")
    e("s_nop 1")
    e("v_add_f32 v56, v56, v57")
    e("v_cvt_pk_bf16_f32 v56, v56, v56")
    e(f"ds_write_b16 v{VL}, v56")
    e("s_waitcnt vmcnt(0) lgkmcnt(0)")
    e("s_barrier")
    tstamp(7)
    e(f"s_cmp_lt_u32 s{S_WAVE}, 4")
    e("s_cbranch_scc0 L_final")
    BB = 96
    for t in range(4):
        e(f"ds_read_b128 {vr(BB + 4 * t, 4)}, v12 offset:{64 * t}")
        e(f"ds_read_b64_tr_b16 {vr(WF + 4 * t, 2)}, v4 offset:{t * 4096}")
        e(f"ds_read_b64_tr_b16 {vr(WF + 4 * t + 2, 2)}, v4 offset:{t * 4096 + 512}")
    e("v_cmp_gt_u32 vcc, 4, v2")
    for t in range(4):
        e(f"s_waitcnt lgkmcnt({9 - 3 * t})")
        c = "0" if t == 0 else "v[12:15]"
        e(f"v_mfma_f32_16x16x32_bf16 v[12:15], {vr(WF + 4 * t, 4)}, {vr(BB + 4 * t, 4)}, {c}")
    e("s_nop 7")
    e("v_cvt_pk_bf16_f32 v16, v12, v13")
    e("v_cvt_pk_bf16_f32 v18, v14, v15")
    e("s_and_saveexec_b64 s[64:65], vcc")
    e(f"buffer_store_dwordx4 v[16:19], v9, {WSR}, s{T + 14} offen {spst}")
    stamp(11)
    stamp_flush()
    e("s_endpgm")

    e("L_final:")
    e(f"s_cmp_gt_u32 s{S_WAVE}, 5")
    e("s_cbranch_scc0 L_fin0")
    stamp_flush()
    e("s_endpgm")
    e("L_fin0:")
    e("v_lshrrev_b32 v3, 1, v0")
    e("v_lshlrev_b32 v3, 10, v3")
    e("v_and_b32 v4, 1, v0")
    e("v_lshl_add_u32 v3, v4, 4, v3")
    e(f"s_lshl_b32 s{T}, s{S_XI}, 15")
    e(f"s_lshl_b32 s{T + 1}, s{S_B}, 6")
    e(f"s_add_u32 s{T}, s{T}, s{T + 1}")
    e(f"s_lshr_b32 s{T + 1}, s{S_SP}, 1")
    e(f"s_lshl_b32 s{T + 1}, s{T + 1}, 8")
    e(f"s_add_u32 s{T}, s{T}, s{T + 1}")
    e(f"s_and_b32 s{T + 1}, s{S_SP}, 1")
    e(f"s_lshl_b32 s{T + 1}, s{T + 1}, 5")
    e(f"s_add_u32 s{T}, s{T}, s{T + 1}")
    e(f"s_lshl_b32 s{T + 4}, s{S_B}, 10")
    e(f"s_lshl_b32 s{T + 5}, s{S_XI}, 7")
    e(f"s_add_u32 s{T + 4}, s{T + 4}, s{T + 5}")
    e(f"s_lshl_b32 s{T + 5}, s{S_SP}, 4")
    e(f"s_add_u32 s{T + 4}, s{T + 4}, s{T + 5}")
    e("v_lshlrev_b32 v5, 3, v4")
    e("v_lshlrev_b32 v6, 5, v4")
    e(f"v_add_u32 v6, {L_FIN}, v6")

    def unpack4(dst, lo, hi):
        e(f"v_lshlrev_b32 v{dst}, 16, v{lo}")
        e(f"v_and_b32 v{dst + 1}, s{S_M16}, v{lo}")
        e(f"v_lshlrev_b32 v{dst + 2}, 16, v{hi}")
        e(f"v_and_b32 v{dst + 3}, s{S_M16}, v{hi}")

    def red32(base):
        e("s_nop 0")
        for rot in (2, 4, 8):
            for i in range(4):
                e(f"v_add_f32_dpp v{base + i}, v{base + i}, v{base + i} row_ror:{rot} row_mask:0xf bank_mask:0xf")
        for sw_ in ("v_permlane16_swap_b32", "v_permlane32_swap_b32"):
            for i in range(4):
                e(f"v_mov_b32 v{base + 4 + i}, v{base + i}")
            e("s_nop 0")
            for i in range(4):
                e(f"{sw_} v{base + 4 + i}, v{base + i}")
            for i in range(4):
                e(f"v_add_f32 v{base + i}, v{base + i}, v{base + 4 + i}")

    e(f"s_cmp_eq_u32 s{S_WAVE}, 4")
    e("s_cbranch_scc1 L_fins")
    e(f"s_add_u32 s{T + 2}, s{T}, {WS_GP}")
    e("v_cmp_gt_u32 s[66:67], 14, v0")
    e("v_cmp_eq_u32 vcc, 1, v4")
    e(f"v_mov_b32 v20, s{S_RES}")
    e(f"v_mov_b32 v21, s{S_RES + 1}")
    e(f"v_mov_b32 v22, s{S_RES + 2}")
    e(f"v_mov_b32 v23, s{S_RES + 3}")
    e("v_cndmask_b32 v20, v20, v22, vcc")
    e("v_cndmask_b32 v21, v21, v23, vcc")
    lab = poll_begin("pgp")
    e(f"buffer_load_dwordx4 v[32:35], v3, {WSR}, s{T + 2} offen sc1")
    e("s_waitcnt vmcnt(0)")
    tagcheck([33, 35], 0, 0)
    e("s_and_b64 vcc, vcc, s[66:67]")
    poll_end(lab, tsleep)
    e("v_cndmask_b32 v32, 0, v32, s[66:67]")
    e("v_cndmask_b32 v34, 0, v34, s[66:67]")
    unpack4(24, 32, 34)
    red32(24)
    e("v_cvt_pk_bf16_f32 v8, v24, v25")
    e("v_cvt_pk_bf16_f32 v9, v26, v27")
    unpack4(24, 8, 9)
    e(f"s_mov_b32 s{T + 5}, 0xbfb8aa3b")
    for i in range(4):
        e(f"v_mul_f32 v{28 + i}, s{T + 5}, v{24 + i}")
    for i in range(4):
        e(f"v_exp_f32 v{28 + i}, v{28 + i}")
    e("s_nop 0")
    for i in range(4):
        e(f"v_add_f32 v{28 + i}, 1.0, v{28 + i}")
    for i in range(4):
        e(f"v_rcp_f32 v{28 + i}, v{28 + i}")
    e("s_nop 0")
    for i in range(4):
        e(f"v_mul_f32 v{24 + i}, v{24 + i}, v{28 + i}")
    e("v_cvt_pk_bf16_f32 v8, v24, v25")
    e("v_cvt_pk_bf16_f32 v9, v26, v27")
    unpack4(24, 8, 9)
    unpack4(28, 20, 21)
    e("s_mov_b64 exec, 3")
    e("ds_write_b128 v6, v[24:27]")
    e("ds_write_b128 v6, v[28:31] offset:16")
    e("s_waitcnt lgkmcnt(0)")
    tstamp(8)
    e("s_barrier")
    stamp_flush()
    e("s_endpgm")
    e("L_fins:")
    e(f"s_add_u32 s{T + 3}, s{T}, {WS_SP}")
    srd(R_B, S_OUT, S_OUT + 1, 4096)
    lab = poll_begin("psp")
    e(f"buffer_load_dwordx4 v[32:35], v3, {WSR}, s{T + 3} offen {spld}")
    e("s_waitcnt vmcnt(0)")
    tagcheck([33, 35], 0, 0)
    poll_end(lab, tsleep)
    tstamp(9)
    unpack4(40, 32, 34)
    red32(40)
    e("v_cvt_pk_bf16_f32 v8, v40, v41")
    e("v_cvt_pk_bf16_f32 v9, v42, v43")
    unpack4(40, 8, 9)
    e("s_barrier")
    e("ds_read_b128 v[24:27], v6")
    e("ds_read_b128 v[28:31], v6 offset:16")
    e("s_waitcnt lgkmcnt(0)")
    for i in range(4):
        e(f"v_mul_f32 v{40 + i}, v{40 + i}, v{24 + i}")
    e("v_cvt_pk_bf16_f32 v8, v40, v41")
    e("v_cvt_pk_bf16_f32 v9, v42, v43")
    unpack4(40, 8, 9)
    for i in range(4):
        e(f"v_add_f32 v{40 + i}, v{40 + i}, v{28 + i}")
    e("v_cvt_pk_bf16_f32 v8, v40, v41")
    e("v_cvt_pk_bf16_f32 v9, v42, v43")
    e("s_mov_b64 exec, 3")
    e(f"buffer_store_dwordx2 v[8:9], v5, s[{R_B}:{R_B + 3}], s{T + 4} offen")
    e("s_cmp_eq_u32 s2, 0")
    e("s_cbranch_scc0 L_noep")
    e("s_mov_b64 exec, 1")
    e(f"v_mov_b32 v6, {WS_E}")
    e(f"v_mov_b32 v7, s{S_TAG}")
    e(f"buffer_store_dword v7, v6, {WSR}, 0 offen")
    e("L_noep:")
    stamp(11)
    stamp_flush()
    e("L_end:")
    e("s_endpgm")
    e(f".fill ({20480 if diag else 16384} - (. - {KN}_kernel)) / 4, 4, 0xbf800000")
    e('.section .rodata,"a"')
    e(".p2align 6")
    e(f".amdhsa_kernel {KN}_kernel")
    e("  .amdhsa_next_free_vgpr 256")
    e("  .amdhsa_next_free_sgpr 102")
    e("  .amdhsa_accum_offset 256")
    e("  .amdhsa_group_segment_fixed_size 0")
    e("  .amdhsa_kernarg_size 88")
    e("  .amdhsa_user_sgpr_count 2")
    e("  .amdhsa_user_sgpr_kernarg_segment_ptr 1")
    e("  .amdhsa_system_sgpr_workgroup_id_x 1")
    e(".end_amdhsa_kernel")
    return e.text()


if __name__ == "__main__":
    import argparse
    ap = argparse.ArgumentParser()
    ap.add_argument("-o", default="k.s")
    ap.add_argument("--diag", action="store_true")
    ap.add_argument("--early", action="store_true")
    ap.add_argument("--thr", type=int, default=6)
    ap.add_argument("--kpol", default="nt")
    ap.add_argument("--wpol", default="nt")
    ap.add_argument("--hint", action="store_true")
    ap.add_argument("--thr2", type=int, default=10)
    ap.add_argument("--nshallow", type=int, default=4)
    ap.add_argument("--light", action="store_true")
    ap.add_argument("--tail", action="store_true")
    ap.add_argument("--wint", action="store_true")
    ap.add_argument("--noqx", action="store_true")
    ap.add_argument("--rs8", action="store_true")
    ap.add_argument("--late", type=int, default=1)
    ap.add_argument("--pfn", type=int, default=8)
    ap.add_argument("--spld", default="sc1")
    ap.add_argument("--spst", default="sc1")
    ap.add_argument("--xp", default="")
    ap.add_argument("--tsleep", type=int, default=1)
    a = ap.parse_args()
    open(a.o, "w").write(gen(diag=a.diag, thr=a.thr, kpol=a.kpol, wpol=a.wpol, early=a.early, hint=a.hint, thr2=a.thr2, nshallow=a.nshallow, tsleep=a.tsleep, light=a.light, xp=tuple(a.xp.split(',')), tailst=a.tail, spld=a.spld, spst=a.spst, wint=a.wint, pfn=a.pfn, late=a.late, rs8=a.rs8, qx=not a.noqx))
```

```python
import sys

KN = "recurrent_scan__sliding_block_cached__dense_activation_relu__decode"

WS_E = 0x00000
WS_LSE = 0x01000
WS_ID = 0x0A000
WS_Q = 0x10000
WS_QX = 0x30000
WS_H = 0x90000
WS_OP = 0xD0000
WS_SP = 0x150000
WS_GP = 0x190000
WS_SIZE = 0x1D0000
WS_STAMP = 0x200000

L_K = 0
L_RED = 0
L_LSUM = 8192
L_OBF = 10240
L_T0 = 131072
L_QB = L_T0 + 24576
L_MAX = L_T0 + 25600
L_SCALE = L_T0 + 26624
L_HB = L_T0 + 28672
L_FIN = 12288
L_W2B = 16384
L_WO = 32768
LDS_BYTES = 163840

POLL_LIMIT = 200000
EPOCH_STEP = 0x9E3779B9

HEADER = """; Kernarg layout for this problem (88 bytes, ptrs only, base s[0:1]):
;
; Workgroups hand data to each other through d_ws in 8-byte {payload, tag} granules; the tag is derived from an epoch
"""


class Asm:
    def __init__(self):
        self.L = []
        self.nlab = 0

    def __call__(self, s):
        for line in s.split("\n"):
            line = line.strip()
            if line:
                self.L.append(line)

    def label(self, base):
        self.nlab += 1
        return f"L_{base}_{self.nlab}"

    def text(self):
        out = []
        for l in self.L:
            if l.endswith(":") or l.startswith(".") or l.startswith(";"):
                out.append(l)
            else:
                out.append("    " + l)
        return "\n".join(out) + "\n"


def vr(a, n=1):
    return f"v{a}" if n == 1 else f"v[{a}:{a + n - 1}]"


def gen(diag=False, thr=6, kpol="nt", wpol="nt", early=False, hint=False, tsleep=1, thr2=10, light=False, nshallow=4, xp=(), tailst=False, spld='sc1', spst='sc1', wint=False, pfn=8, late=1, rs8=False, qx=True, b0x=True):
    e = Asm()
    PF2 = True
    S_X, S_K, S_V, S_WQ, S_WO, S_BX, S_W1, S_W2 = 4, 6, 8, 10, 12, 14, 16, 18
    S_OUT, S_DBG, S_WS = 20, 22, 24
    S_XI, S_Y, S_WAVE, S_B, S_SP, S_TAG = 26, 27, 28, 29, 30, 31
    R_A, R_B, R_WS, R_C, R_D = 32, 36, 40, 44, 48
    T = 52
    S_STAMP = 72
    S_M16, S_SC, S_L2E, S_PLO, S_PHI = 96, 97, 98, 99, 100
    S_RES = 48
    S_O0, S_O1 = 14, 15
    OG = 48
    VO, VL = 105, 112
    S_SAME = 101
    WSR = f"s[{R_WS}:{R_WS + 3}]"

    def estamp(k):
        if diag and early:
            e(f"s_memrealtime s[{S_STAMP + 2 * k}:{S_STAMP + 2 * k + 1}]")
            e("s_waitcnt lgkmcnt(0)")

    def tstamp(k):
        if diag and tailst:
            e(f"s_memrealtime s[{S_STAMP + 2 * k}:{S_STAMP + 2 * k + 1}]")
            e("s_waitcnt lgkmcnt(0)")

    def stamp(k):
        if diag and tailst:
            if k == 11:
                tstamp(11)
            return
        if diag and not (early and k != 11) and not (light and k not in (8, 10, 11)):
            assert k < 12
            e(f"s_memrealtime s[{S_STAMP + 2 * k}:{S_STAMP + 2 * k + 1}]")
            e("s_waitcnt lgkmcnt(0)")

    def stamp_flush():
        if diag:
            e("s_waitcnt vmcnt(0) lgkmcnt(0)")
            e(f"s_lshl_b32 s{T}, s2, 3")
            e(f"s_add_u32 s{T}, s{T}, s{S_WAVE}")
            e(f"s_lshl_b32 s{T}, s{T}, 7")
            e(f"s_add_u32 s{T}, s{T}, {WS_STAMP}")
            e("s_mov_b64 exec, 1")
            e(f"v_mov_b32 v1, s{T}")
            for k in range(12):
                e(f"v_mov_b32 v2, s{S_STAMP + 2 * k}")
                e(f"v_mov_b32 v3, s{S_STAMP + 2 * k + 1}")
                e(f"global_store_dwordx2 v1, v[2:3], s[{S_WS}:{S_WS + 1}] offset:{8 * k}")
            e("s_waitcnt vmcnt(0)")

    def karg2():
        e("s_load_dwordx4 s[20:23], s[0:1], 64")
        e("s_load_dwordx2 s[24:25], s[0:1], 80")

    def epoch_load():
        if "wsend" in xp:
            e(f"s_add_u32 s{S_WS}, s{S_WS}, {512 * 1024 * 1024 - 4 * 1024 * 1024}")
            e(f"s_addc_u32 s{S_WS + 1}, s{S_WS + 1}, 0")
        e(f"s_load_dword s{S_TAG}, s[{S_WS}:{S_WS + 1}], {WS_E}")

    def epoch_tag():
        e(f"s_add_u32 s{S_TAG}, s{S_TAG}, {EPOCH_STEP:#x}")

    def srd(r, lo, hi, size):
        if lo != r:
            e(f"s_mov_b32 s{r}, s{lo}")
            e(f"s_mov_b32 s{r + 1}, s{hi}")
        e(f"s_mov_b32 s{r + 2}, {size}")
        e(f"s_mov_b32 s{r + 3}, 0x20000")

    def srd_off(r, base, soff, size):
        e(f"s_add_u32 s{r}, s{base}, s{soff}")
        e(f"s_addc_u32 s{r + 1}, s{base + 1}, 0")
        e(f"s_mov_b32 s{r + 2}, {size}")
        e(f"s_mov_b32 s{r + 3}, 0x20000")

    def poll_begin(name):
        lab = e.label(name)
        e(f"s_mov_b32 s{T + 17}, {POLL_LIMIT}")
        e(f"{lab}:")
        return lab

    def poll_end(lab, sleep=1, masked=True):
        done = lab + "_d"
        e("s_cmp_eq_u64 vcc, 0")
        e(f"s_cbranch_scc1 {done}")
        e(f"s_sub_u32 s{T + 17}, s{T + 17}, 1")
        e(f"s_cbranch_scc1 {done}")
        if masked and "nomask" not in xp:
            e("s_mov_b64 exec, vcc")
        if sleep:
            e(f"s_sleep {sleep}")
        e(f"s_branch {lab}")
        e(f"{done}:")
        if masked:
            e("s_mov_b64 exec, -1")

    def tagcheck(tags, t0, t1):
        if len(tags) == 1:
            e(f"v_cmp_ne_u32 vcc, s{S_TAG}, v{tags[0]}")
            return
        if len(tags) == 2:
            e(f"v_cmp_ne_u32 s[{T + 12}:{T + 13}], s{S_TAG}, v{tags[0]}")
            e(f"v_cmp_ne_u32 vcc, s{S_TAG}, v{tags[1]}")
            e(f"s_or_b64 vcc, vcc, s[{T + 12}:{T + 13}]")
            return
        for op, acc in (("max", t0), ("min", t1)):
            rest = list(tags)
            if len(rest) >= 3:
                e(f"v_{op}3_u32 v{acc}, v{rest[0]}, v{rest[1]}, v{rest[2]}")
                rest = rest[3:]
            while len(rest) >= 2:
                e(f"v_{op}3_u32 v{acc}, v{acc}, v{rest[0]}, v{rest[1]}")
                rest = rest[2:]
            if rest:
                e(f"v_{op}_u32 v{acc}, v{acc}, v{rest[0]}")
        e(f"v_cmp_ne_u32 s[{T + 12}:{T + 13}], s{S_TAG}, v{t0}")
        e(f"v_cmp_ne_u32 vcc, s{S_TAG}, v{t1}")
        e(f"s_or_b64 vcc, vcc, s[{T + 12}:{T + 13}]")

    def xrow_reduce(op, r, t):
        e(f"v_mov_b32 v{t}, v{r}")
        e("s_nop 1")
        e(f"v_permlane32_swap_b32 v{t}, v{r}")
        e("s_nop 1")
        e(f"{op} v{r}, v{t}, v{r}")
        e(f"v_mov_b32 v{t}, v{r}")
        e("s_nop 1")
        e(f"v_permlane16_swap_b32 v{t}, v{r}")
        e("s_nop 1")
        e(f"{op} v{r}, v{t}, v{r}")

    LA, LV = 104, 106

    def lse_addr():
        e(f"s_lshl_b32 s{T + 15}, s{S_XI}, 12")
        e(f"s_lshr_b32 s{T + 16}, s{S_WAVE}, 1")
        e(f"s_lshl_b32 s{T + 16}, s{T + 16}, 10")
        e(f"s_add_u32 s{T + 15}, s{T + 15}, s{T + 16}")
        e(f"s_lshl_b32 s{T + 16}, s{S_B}, 3")
        e(f"s_add_u32 s{T + 15}, s{T + 15}, s{T + 16}")
        e(f"s_add_u32 s{T + 15}, s{T + 15}, {WS_LSE}")
        e(f"v_lshlrev_b32 v{LA}, 7, v1")

    def lse_loads():
        e(f"buffer_load_dwordx2 v[{LV}:{LV + 1}], v{LA}, {WSR}, s{T + 15} offen sc1")
        e(f"buffer_load_dwordx2 v[{LV + 2}:{LV + 3}], v{LA}, {WSR}, s{T + 15} offen offset:512 sc1")

    def tail_addrs():
        lse_addr()
        e(f"s_lshl_b32 s{S_O0}, s{S_XI}, 16")
        e(f"s_lshl_b32 s{S_O1}, s{S_B}, 14")
        e(f"s_add_u32 s{S_O0}, s{S_O0}, s{S_O1}")
        e(f"s_lshl_b32 s{S_O1}, s{S_WAVE}, 8")
        e(f"s_add_u32 s{S_O0}, s{S_O0}, s{S_O1}")
        e(f"s_add_u32 s{S_O0}, s{S_O0}, {WS_OP}")
        e(f"s_add_u32 s{S_O1}, s{S_O0}, 8192")
        e(f"v_lshlrev_b32 v{VO}, 11, v1")
        e(f"v_lshl_add_u32 v{VO}, v2, 4, v{VO}")
        e(f"s_lshl_b32 s{T + 9}, s{S_WAVE}, 7")
        e(f"s_add_u32 s{T + 9}, s{T + 9}, {L_OBF}")
        e(f"v_lshlrev_b32 v{VL}, 3, v2")
        e(f"v_lshl_add_u32 v{VL}, v1, 1, v{VL}")
        e(f"v_add_u32 v{VL}, s{T + 9}, v{VL}")


    def weights(waited=False):
        lab = e.label("pw")
        e(f"s_mov_b32 s{T + 17}, {POLL_LIMIT}")
        if waited:
            e(f"s_branch {lab}_c")
        e(f"{lab}:")
        e("s_waitcnt vmcnt(0)")
        if waited:
            e(f"{lab}_c:")
        tagcheck([LV + 1, LV + 3], 0, 0)
        e("s_cmp_eq_u64 vcc, 0")
        e(f"s_cbranch_scc1 {lab}_d")
        e(f"s_sub_u32 s{T + 17}, s{T + 17}, 1")
        e(f"s_cbranch_scc1 {lab}_d")
        e("s_mov_b64 exec, vcc")
        e("s_sleep 2")
        lse_loads()
        e(f"s_branch {lab}")
        e(f"{lab}_d:")
        e("s_mov_b64 exec, -1")
        e(f"v_max_f32 v110, v{LV}, v{LV + 2}")
        xrow_reduce("v_max_f32", 110, 111)
        e(f"v_sub_f32 v{LV}, v{LV}, v110")
        e(f"v_sub_f32 v{LV + 2}, v{LV + 2}, v110")
        e(f"v_exp_f32 v{LV}, v{LV}")
        e(f"v_exp_f32 v{LV + 2}, v{LV + 2}")
        e("s_nop 0")
        e(f"v_add_f32 v110, v{LV}, v{LV + 2}")
        xrow_reduce("v_add_f32", 110, 111)
        e("v_rcp_f32 v110, v110")
        e("s_nop 0")
        e(f"v_mul_f32 v111, v{LV + 2}, v110")
        e(f"v_mul_f32 v110, v{LV}, v110")

    for l in HEADER.strip("\n").split("\n"):
        e.L.append(l)
    e.L.append(f"; @launch grid=(256,1,1) block=(512,1,1) lds={LDS_BYTES}")
    e('.amdgcn_target "amdgcn-amd-amdhsa--gfx950"')
    e(".text")
    e(f".globl {KN}_kernel")
    e(".p2align 8")
    e(f".type {KN}_kernel,@function")
    e(f"{KN}_kernel:")
    if diag:
        e(f"s_memrealtime s[{S_STAMP}:{S_STAMP + 1}]")
    e("s_cmp_ge_u32 s2, 256")
    e("s_cbranch_scc1 L_end")
    e("s_load_dwordx16 s[4:19], s[0:1], 0")
    e("v_lshrrev_b32 v1, 6, v0")
    e(f"s_and_b32 s{S_XI}, s2, 7")
    e(f"s_lshr_b32 s{S_Y}, s2, 3")
    e(f"v_readfirstlane_b32 s{S_WAVE}, v1")
    if pfn < 256:
        e(f"s_cmp_lt_u32 s2, {pfn}")
        e("s_cbranch_scc0 L_nopf")
    e("s_getpc_b64 s[60:61]")
    e("L_pc:")
    e(f"s_sub_u32 s60, s60, L_pc-{KN}_kernel")
    e("s_subb_u32 s61, s61, 0")
    e("v_lshlrev_b32 v1, 4, v0")
    e("global_load_dword v255, v1, s[60:61]")
    e("v_add_u32 v1, 0x2000, v1")
    e("global_load_dword v255, v1, s[60:61]")
    e("L_nopf:")
    e("v_and_b32 v0, 63, v0")
    e(f"s_lshr_b32 s{S_B}, s{S_Y}, 3")
    e(f"s_and_b32 s{S_SP}, s{S_Y}, 7")
    e("v_lshrrev_b32 v1, 4, v0")
    e("v_and_b32 v2, 15, v0")
    e(f"s_cmp_lt_u32 s{S_WAVE}, 4")
    e("s_cbranch_scc1 L_H")

    S_L, S_KH = 70, 71
    S_HALF = 3

    def roles():
        e(f"s_mov_b32 s{S_M16}, 0xffff0000")
        e("v_mov_b32 v9, 0")
        e(f"s_sub_u32 s{S_L}, s{S_Y}, 16")
        e(f"s_lshl_b32 s{S_L}, s{S_L}, 3")
        e(f"s_add_u32 s{S_L}, s{S_L}, s{S_XI}")
        e(f"s_cmp_lt_u32 s{S_Y}, 16")
        e(f"s_cselect_b32 s{S_KH}, s{S_B}, s{S_L}")
        e(f"s_and_b32 s{S_KH}, s{S_KH}, 1")
        e(f"s_lshr_b32 s{S_L}, s{S_L}, 1")
        if qx:
            e(f"s_and_b32 s{T + 16}, s{S_Y}, 1")
            e(f"s_cmp_ge_u32 s{S_Y}, 30")
            e(f"s_cselect_b32 s{S_KH}, s{T + 16}, s{S_KH}")
            e(f"s_cselect_b32 s{T + 16}, 3, 0")
            e(f"s_and_b32 s{S_HALF}, s{S_Y}, 0x17")
            e(f"s_cmp_eq_u32 s{S_HALF}, 3")
            e(f"s_cselect_b32 s{S_HALF}, 1, s{T + 16}")

    SW = T
    ROT = T + 1
    VK = 4
    VV = 8
    e(f"s_sub_u32 s{SW}, s{S_WAVE}, 4")
    e(f"s_lshl_b32 s{T + 2}, s{S_B}, 25")
    e(f"s_lshl_b32 s{T + 3}, s{S_XI}, 22")
    e(f"s_add_u32 s{T + 2}, s{T + 2}, s{T + 3}")
    e(f"s_lshl_b32 s{T + 3}, s{S_SP}, 17")
    e(f"s_add_u32 s{T + 2}, s{T + 2}, s{T + 3}")
    e(f"s_add_u32 s{T + 2}, s{T + 2}, 0x300000")
    e(f"s_add_u32 s{ROT}, s{S_XI}, s{S_Y}")
    e(f"s_add_u32 s{ROT}, s{ROT}, s{SW}")
    e(f"s_and_b32 s{ROT}, s{ROT}, 31")
    e(f"s_lshl_b32 s{ROT}, s{ROT}, 12")
    e("v_lshlrev_b32 v3, 2, v1")
    e("v_xor_b32 v3, v2, v3")
    e("v_lshlrev_b32 v3, 4, v3")
    e(f"v_lshl_add_u32 v{VK}, v1, 8, v3")
    e(f"v_xor_b32 v{VK + 1}, 16, v{VK}")
    e(f"v_xor_b32 v{VK + 2}, 32, v{VK}")
    e(f"v_xor_b32 v{VK + 3}, 48, v{VK}")
    e(f"s_lshl_b32 s{T + 4}, s{SW}, 15")
    e(f"s_mov_b32 m0, s{T + 4}")
    e(f"s_mov_b32 s{R_A + 2}, 0x20000")
    e(f"s_mov_b32 s{R_A + 3}, 0x20000")
    estamp(1)
    e("s_waitcnt lgkmcnt(0)")
    estamp(2)
    e(f"s_add_u32 s{R_A}, s{S_K}, s{T + 2}")
    e(f"s_addc_u32 s{R_A + 1}, s{S_K + 1}, 0")

    def ktile(th, off=None):
        so = f"s{ROT}" if off is None else f"s{off}"
        for q in range(4):
            e(f"buffer_load_dwordx4 v{VK + q}, s[{R_A}:{R_A + 3}], {so} offen offset:{q * 1024} {kpol} lds")
            if th is not None:
                e(f"s_waitcnt vmcnt({th})")

    def knext():
        e(f"s_add_u32 s{T + 4}, s{T + 4}, 4096")
        e(f"s_mov_b32 m0, s{T + 4}")
        e(f"s_add_u32 s{T + 5}, s{T + 5}, 16384")
        e(f"s_and_b32 s{T + 5}, s{T + 5}, 0x1ffff")

    ktile(None)
    karg2()
    roles()
    e(f"s_sub_u32 s{T + 14}, s{S_Y}, 23")
    e(f"s_lshl_b32 s{T + 8}, s{S_KH}, 2")
    e(f"s_add_u32 s{T + 8}, s{T + 8}, s{SW}")
    e(f"s_lshl_b32 s{T + 8}, s{T + 8}, 6")
    e(f"s_mul_i32 s{T + 9}, s{SW}, 48")
    e(f"s_lshl_b32 s{T + 10}, s{T + 14}, 8")
    e(f"s_add_u32 s{T + 9}, s{T + 9}, s{T + 10}")
    e(f"s_cmp_lt_u32 s{T + 14}, 7")
    e(f"s_cselect_b32 s{T + 8}, s{T + 9}, s{T + 8}")
    e(f"s_cselect_b32 s{T + 15}, 1, 0")
    e(f"s_lshl_b32 s{T + 12}, s{SW}, 13")
    e(f"s_cmp_eq_u32 s{T + 15}, 1")
    e(f"s_mul_i32 s{T + 11}, s{SW}, 6144")
    e(f"s_cselect_b32 s{T + 11}, s{T + 11}, s{T + 12}")
    e(f"s_add_u32 s{T + 11}, s{T + 11}, {L_T0}")
    e(f"s_lshl_b32 s{T + 9}, s{S_XI}, 10")
    if "cgrot" in xp:
        e(f"s_add_u32 s{T + 10}, s{S_SP}, 2")
        e(f"s_and_b32 s{T + 10}, s{T + 10}, 7")
        e(f"s_lshl_b32 s{T + 10}, s{T + 10}, 7")
    else:
        e(f"s_lshl_b32 s{T + 10}, s{S_SP}, 7")
    e(f"s_add_u32 s{T + 9}, s{T + 9}, s{T + 10}")
    e(f"s_mov_b32 s{T + 10}, 8192")
    e(f"s_mov_b32 s{T + 12}, {512 * 8192}")
    e(f"s_mov_b32 s{R_C}, s{S_WQ}")
    e(f"s_mov_b32 s{R_C + 1}, s{S_WQ + 1}")
    if qx:
        e(f"s_cmp_eq_u32 s{S_HALF}, 0")
        e("s_cbranch_scc1 L_nohalf")
        e(f"s_lshl_b32 s{T + 8}, s{S_KH}, 1")
        e(f"s_lshr_b32 s{T + 9}, s{S_HALF}, 1")
        e(f"s_add_u32 s{T + 8}, s{T + 8}, s{T + 9}")
        e(f"s_lshl_b32 s{T + 8}, s{T + 8}, 2")
        e(f"s_add_u32 s{T + 8}, s{T + 8}, s{SW}")
        e(f"s_lshl_b32 s{T + 8}, s{T + 8}, 5")
        e(f"s_lshl_b32 s{T + 11}, s{SW}, 12")
        e(f"s_add_u32 s{T + 11}, s{T + 11}, {L_T0}")
        e(f"s_lshl_b32 s{T + 9}, s{S_XI}, 10")
        e(f"s_add_u32 s{T + 9}, s{T + 9}, 384")
        e("s_branch L_et")
        e("L_nohalf:")
    e(f"s_cmp_lt_u32 s{S_Y}, 16")
    e("s_cbranch_scc1 L_et")
    e(f"s_lshl_b32 s{T + 9}, s{S_L}, 7")
    e(f"s_mov_b32 s{T + 10}, 3584")
    e(f"s_mov_b32 s{T + 12}, {512 * 3584}")
    e(f"s_mov_b32 s{R_C}, s{S_W1}")
    e(f"s_mov_b32 s{R_C + 1}, s{S_W1 + 1}")
    e(f"s_cmp_lt_u32 s{S_Y}, 23")
    e("s_cbranch_scc1 L_et")
    e(f"s_lshl_b32 s{T + 9}, s{S_XI}, 7")
    e(f"s_mov_b32 s{T + 10}, 1024")
    e(f"s_mov_b32 s{R_C}, s{S_W2}")
    e(f"s_mov_b32 s{R_C + 1}, s{S_W2 + 1}")
    e(f"s_cmp_eq_u32 s{T + 15}, 1")
    e(f"s_cselect_b32 s{T + 12}, {1792 * 1024}, 0")
    e("L_et:")
    e(f"s_mul_i32 s{T + 8}, s{T + 8}, s{T + 10}")
    e(f"s_add_u32 s{T + 8}, s{T + 8}, s{T + 9}")
    e(f"s_lshl_b32 s{T + 9}, s{T + 10}, 3")
    e(f"s_mov_b32 s{R_C + 2}, s{T + 12}")
    e(f"s_mov_b32 s{R_C + 3}, 0x20000")
    if rs8:
        e(f"s_cmp_lt_u32 s{S_Y}, 23")
        e(f"s_cselect_b32 s{T + 13}, s{T + 9}, s{T + 10}")
        e(f"s_cselect_b32 s{T + 9}, s{T + 10}, s{T + 9}")
    else:
        e(f"s_mov_b32 s{T + 13}, s{T + 10}")
    e("v_lshrrev_b32 v9, 3, v0")
    e(f"v_mul_lo_u32 v9, v9, s{T + 13}")
    e("v_and_b32 v10, 7, v0")
    e("v_lshl_add_u32 v11, v10, 4, v9")
    if "wlin" in xp or "wlinE" in xp:
        e("v_lshlrev_b32 v11, 4, v0")
        e(f"s_lshl_b32 s{T + 8}, s2, 15")
        e(f"s_lshl_b32 s{T + 9}, s{SW}, 13")
        e(f"s_add_u32 s{T + 8}, s{T + 8}, s{T + 9}")
        e(f"s_mov_b32 s{T + 9}, 1024")
        e(f"s_cmp_eq_u32 s{R_C + 2}, 0")
        e(f"s_cselect_b32 s{R_C + 2}, 0, 0x1000000")
        e(f"s_mov_b32 s{R_C}, s{S_K}")
        e(f"s_mov_b32 s{R_C + 1}, s{S_K + 1}")
    def wload():
        e(f"s_mov_b32 m0, s{T + 11}")
        e(f"s_add_u32 s{T + 11}, s{T + 11}, 1024")
        e(f"buffer_load_dwordx4 v11, s[{R_C}:{R_C + 3}], s{T + 8} offen {wpol} lds")
        e(f"s_add_u32 s{T + 8}, s{T + 8}, s{T + 9}")

    if not wint:
        for ii in range(8):
            if ii == 4 and qx:
                e(f"s_cmp_eq_u32 s{S_HALF}, 0")
                e("s_cbranch_scc1 L_nohalf2")
                e(f"s_lshl_b32 s{T + 11}, s{SW}, 12")
                e(f"s_add_u32 s{T + 11}, s{T + 11}, {L_T0 + 16384}")
                e(f"s_mov_b32 s{R_C + 2}, 0")
                e("L_nohalf2:")
            if ii == 6:
                e(f"s_cmp_eq_u32 s{T + 15}, 1")
                e("s_cbranch_scc1 L_et2")
            wload()
        e("L_et2:")
        srd_off(R_B, S_V, T + 2, 0x20000)
        e(f"v_lshlrev_b32 v{VV}, 4, v0")
        e(f"s_mov_b32 s{T + 5}, s{ROT}")
        knext()
        ktile(thr + 2, T + 5)
        knext()
        ktile(thr + 2, T + 5)
        knext()
        e("s_waitcnt vmcnt(8)")
    else:
        srd_off(R_B, S_V, T + 2, 0x20000)
        e(f"v_lshlrev_b32 v{VV}, 4, v0")
        e(f"s_mov_b32 s{T + 5}, s{ROT}")
        for kt in range(2):
            knext()
            for q in range(4):
                if kt == 1 and q >= 2:
                    lb = e.label("w2s")
                    e(f"s_cmp_eq_u32 s{T + 15}, 1")
                    e(f"s_cbranch_scc1 {lb}")
                    wload()
                    e(f"{lb}:")
                else:
                    wload()
                e(f"s_mov_b32 m0, s{T + 4}")
                e("s_nop 0")
                e(f"buffer_load_dwordx4 v{VK + q}, s[{R_A}:{R_A + 3}], s{T + 5} offen offset:{q * 1024} {kpol} lds")
                e(f"s_waitcnt vmcnt({thr + 3})")
        knext()
        ktile(thr + 2, T + 5)
        knext()
        e("s_waitcnt vmcnt(5)")
    e("s_barrier")
    estamp(3)
    e(f"s_mov_b32 s{T + 6}, {nshallow - (3 if wint else 2)}")
    e("L_kloop:")
    ktile(thr, T + 5)
    knext()
    e(f"s_sub_u32 s{T + 6}, s{T + 6}, 1")
    e(f"s_cmp_lg_u32 s{T + 6}, 0")
    e("s_cbranch_scc1 L_kloop")
    estamp(4)
    if b0x:
        e("s_barrier")
    e(f"s_mov_b32 s{T + 6}, {7 - nshallow}")
    e("L_kloop2:")
    ktile(thr2, T + 5)
    knext()
    e(f"s_sub_u32 s{T + 6}, s{T + 6}, 1")
    e(f"s_cmp_lg_u32 s{T + 6}, 0")
    e("s_cbranch_scc1 L_kloop2")
    stamp(1)
    e("s_waitcnt lgkmcnt(0)")
    epoch_load()

    VB = 128

    def vtile_off(t):
        e(f"s_add_u32 s{T + 7}, s{ROT}, {t * 16384}")
        e(f"s_and_b32 s{T + 7}, s{T + 7}, 0x1ffff")

    def vload(u, k0, k1, throttle=None):
        for k in range(k0, k1):
            Tt, i = k >> 2, k & 3
            if i == 0 or k == k0:
                vtile_off(2 * u + Tt)
            r = VB + u * 32 + k * 4
            e(f"buffer_load_dwordx4 {vr(r, 4)}, v{VV}, s[{R_B}:{R_B + 3}], s{T + 7} offen offset:{i * 1024} {kpol}")
            if throttle is not None:
                e(f"s_waitcnt vmcnt({throttle})")

    vload(0, 0, 8, thr2)
    if late:
        vload(1, 0, 8, thr2)
    e(f"s_mov_b32 s{S_SC}, 0x3db504f3")
    e(f"s_mov_b32 s{S_L2E}, 0x3fb8aa3b")
    e(f"s_mov_b32 s{S_PLO}, 0x05040100")
    e(f"s_mov_b32 s{S_PHI}, 0x07060302")
    VKA = 9
    e("v_and_b32 v3, 3, v2")
    e("v_lshlrev_b32 v3, 2, v3")
    e("v_lshrrev_b32 v13, 2, v2")
    e("v_add_u32 v3, v3, v13")
    e("v_lshlrev_b32 v3, 8, v3")
    e("v_xor_b32 v13, v1, v2")
    e("v_lshl_add_u32 v3, v13, 4, v3")
    e(f"s_lshl_b32 s{T + 4}, s{SW}, 15")
    e(f"v_add_u32 v{VKA}, s{T + 4}, v3")
    e(f"v_xor_b32 v{VKA + 1}, 64, v{VKA}")
    e(f"v_xor_b32 v{VKA + 2}, 0x80, v{VKA}")
    e(f"v_xor_b32 v{VKA + 3}, 0xc0, v{VKA}")
    e("v_lshrrev_b32 v13, 2, v2")
    e("v_lshlrev_b32 v13, 8, v13")
    e("v_lshl_add_u32 v13, v1, 4, v13")
    e(f"v_add_u32 v13, {L_QB}, v13")
    e(f"s_lshl_b32 s{T + 4}, s{SW}, 8")
    e(f"s_add_u32 s{T + 4}, s{T + 4}, {L_MAX}")
    e("v_lshlrev_b32 v14, 2, v0")
    e(f"v_add_u32 v15, s{T + 4}, v14")
    e(f"v_add_u32 v14, {L_MAX}, v14")
    e(f"s_waitcnt vmcnt({16 if late else 8}) lgkmcnt(0)")
    epoch_tag()
    stamp(2)
    e("s_barrier")
    stamp(3)
    QF = 16
    KF = 32
    SS = 64
    for s in range(4):
        e(f"ds_read_b128 {vr(QF + 4 * s, 4)}, v13 offset:{64 * s}")

    def kread(t):
        for s in range(4):
            e(f"ds_read_b128 {vr(KF + 16 * (t & 1) + 4 * s, 4)}, v{VKA + s} offset:{t * 4096}")

    kread(0)
    for t in range(8):
        vload(1 + late, t, t + 1)
        if t < 7:
            kread(t + 1)
            e("s_waitcnt lgkmcnt(4)")
        else:
            e("s_waitcnt lgkmcnt(0)")
        for s in range(4):
            c = "0" if s == 0 else vr(SS + 4 * t, 4)
            e(f"v_mfma_f32_16x16x32_bf16 {vr(SS + 4 * t, 4)}, {vr(KF + 16 * (t & 1) + 4 * s, 4)}, {vr(QF + 4 * s, 4)}, {c}")
    stamp(4)
    TMP = 32
    e("s_nop 7")
    for p in range(16):
        a = SS + 2 * p
        t0 = TMP + (p & 1)
        if p % 4 == 1:
            vload(2 + late, p // 4, p // 4 + 1)
        e(f"v_cvt_pk_bf16_f32 v{t0}, v{a}, v{a + 1}")
        e(f"v_lshlrev_b32 v{a}, 16, v{t0}")
        e(f"v_and_b32 v{a + 1}, s{S_M16}, v{t0}")
        e(f"v_mul_f32 v{a}, s{S_SC}, v{a}")
        e(f"v_mul_f32 v{a + 1}, s{S_SC}, v{a + 1}")
        e(f"v_cvt_pk_bf16_f32 v{t0}, v{a}, v{a + 1}")
        e(f"v_lshlrev_b32 v{a}, 16, v{t0}")
        e(f"v_and_b32 v{a + 1}, s{S_M16}, v{t0}")
    MX = 34
    e(f"v_max3_f32 v{MX}, v{SS}, v{SS + 1}, v{SS + 2}")
    for k in range(3, 31, 2):
        e(f"v_max3_f32 v{MX}, v{MX}, v{SS + k}, v{SS + k + 1}")
    e(f"v_max_f32 v{MX}, v{MX}, v{SS + 31}")
    xrow_reduce("v_max_f32", MX, 35)
    e(f"ds_write_b32 v15, v{MX}")
    e("s_waitcnt lgkmcnt(0)")
    stamp(5)
    e("s_barrier")
    e(f"ds_read2st64_b32 v[36:37], v14 offset0:0 offset1:1")
    e(f"ds_read2st64_b32 v[38:39], v14 offset0:2 offset1:3")
    e("s_waitcnt lgkmcnt(0)")
    e(f"v_max3_f32 v{MX}, v36, v37, v38")
    e(f"v_max_f32 v{MX}, v{MX}, v39")
    MC = 35
    e(f"v_mul_f32 v{MC}, s{S_L2E}, v{MX}")
    PP = 40
    e(f"s_sub_u32 s{T + 10}, s{S_Y}, 23")
    e(f"s_lshl_b32 s{T + 8}, s{T + 10}, 18")
    e(f"s_lshl_b32 s{T + 9}, s{S_XI}, 7")
    e(f"s_add_u32 s{T + 8}, s{T + 8}, s{T + 9}")
    e(f"s_lshl_b32 s{T + 9}, s{SW}, 14")
    e(f"s_add_u32 s{T + 8}, s{T + 8}, s{T + 9}")
    e(f"s_add_u32 s{T + 8}, s{T + 8}, {192 * 1024}")
    e(f"s_cmp_lt_u32 s{T + 10}, 7")
    e(f"s_cselect_b32 s{T + 10}, {1792 * 1024}, 0")
    srd(R_D, S_W2, S_W2 + 1, f"s{T + 10}")
    e(f"s_lshl_b32 s{T + 9}, s{SW}, 11")
    e(f"s_add_u32 s{T + 9}, s{T + 9}, {L_W2B}")
    e("v_lshrrev_b32 v3, 3, v0")
    e("v_lshlrev_b32 v3, 10, v3")
    e("v_and_b32 v4, 7, v0")
    e("v_lshl_add_u32 v3, v4, 4, v3")
    if ("wlin" in xp or "wlinO" in xp):
        e("v_lshlrev_b32 v3, 4, v0")
        e(f"s_lshl_b32 s{T + 8}, s2, 14")
        e(f"s_and_b32 s{T + 8}, s{T + 8}, 0xfffff")

    def w2load():
        e(f"s_mov_b32 m0, s{T + 9}")
        e(f"s_add_u32 s{T + 9}, s{T + 9}, 1024")
        e(f"buffer_load_dwordx4 v3, s[{R_D}:{R_D + 3}], s{T + 8} offen {wpol} lds")
        e(f"s_add_u32 s{T + 8}, s{T + 8}, {1024 if ('wlin' in xp or 'wlinO' in xp) else 8192}")

    for p in range(16):
        a = SS + 2 * p
        e(f"v_fma_f32 v{a}, v{a}, s{S_L2E}, -v{MC}")
        e(f"v_fma_f32 v{a + 1}, v{a + 1}, s{S_L2E}, -v{MC}")
        e(f"v_exp_f32 v{a}, v{a}")
        e(f"v_exp_f32 v{a + 1}, v{a + 1}")
        if p > 0:
            e(f"v_cvt_pk_bf16_f32 v{PP + p - 1}, v{a - 2}, v{a - 1}")
        if p in (2, 5):
            w2load()
        if p >= 8 and p % 2 == 1:
            vload(2 + late, 4 + (p - 8) // 2, 5 + (p - 8) // 2)
    ACC = 64
    ACL = 96
    ONE = 100
    PT = 16
    for k in range(4):
        e(f"v_mov_b32 v{ONE + k}, 0x3f803f80")
    e(f"v_cvt_pk_bf16_f32 v{PP + 15}, v{SS + 30}, v{SS + 31}")
    e(f"s_lshl_b32 s{T + 8}, s{SW}, 8")
    e(f"s_add_u32 s{T + 8}, s{T + 8}, {L_LSUM}")
    e("v_lshlrev_b32 v6, 2, v0")
    e(f"v_add_u32 v5, s{T + 8}, v6")
    for u in range(4):
        c = "0" if u == 0 else vr(ACL, 4)
        e(f"v_mfma_f32_16x16x32_bf16 {vr(ACL, 4)}, {vr(PP + 4 * u, 4)}, {vr(ONE, 4)}, {c}")
    e("s_nop 7")
    e(f"ds_write_b32 v5, v{ACL}")
    e("s_waitcnt lgkmcnt(0)")
    stamp(6)
    e("s_barrier")
    e(f"s_lshl_b32 s{T + 12}, s{S_B}, 10")
    e(f"s_lshl_b32 s{T + 13}, s{S_XI}, 7")
    e(f"s_add_u32 s{T + 12}, s{T + 12}, s{T + 13}")
    e(f"s_lshl_b32 s{T + 13}, s{S_SP}, 4")
    e(f"s_add_u32 s{T + 12}, s{T + 12}, s{T + 13}")
    e(f"s_load_dwordx4 s[{S_RES}:{S_RES + 3}], s[{S_X}:{S_X + 1}], s{T + 12}")

    def pv(u, loads=None):
        first = u == 0
        A = vr(PP + 4 * u, 4)

        def perms(w):
            base = PT + 8 * (w & 1)
            for d in range(4):
                a = VB + u * 32 + (2 * d) * 4 + w
                b = VB + u * 32 + (2 * d + 1) * 4 + w
                e(f"v_perm_b32 v{base + d}, v{b}, v{a}, s{S_PLO}")
            for d in range(4):
                a = VB + u * 32 + (2 * d) * 4 + w
                b = VB + u * 32 + (2 * d + 1) * 4 + w
                e(f"v_perm_b32 v{base + 4 + d}, v{b}, v{a}, s{S_PHI}")

        def mf(w):
            base = PT + 8 * (w & 1)
            for hi in range(2):
                j = 2 * w + hi
                c = "0" if first else vr(ACC + 4 * j, 4)
                e(f"v_mfma_f32_16x16x32_bf16 {vr(ACC + 4 * j, 4)}, {A}, {vr(base + 4 * hi, 4)}, {c}")

        if loads:
            loads(0)
        perms(0)
        for w in range(1, 4):
            if loads:
                loads(w)
            perms(w)
            mf(w - 1)
        e("s_nop 1")
        mf(3)

    if not late:
        e("s_waitcnt vmcnt(18)")
        pv(0, lambda w: vload(3, w, w + 1))
        e("s_waitcnt vmcnt(14)")
        pv(1, lambda w: vload(3, 4 + w, 5 + w))
    srd(R_WS, S_WS, S_WS + 1, WS_SIZE)
    e(f"s_lshl_b32 s{T + 8}, s{S_XI}, 2")
    e(f"s_add_u32 s{T + 8}, s{T + 8}, s{S_B}")
    e(f"s_lshl_b32 s{T + 8}, s{T + 8}, 17")
    e(f"s_lshl_b32 s{T + 9}, s{S_SP}, 7")
    e(f"s_add_u32 s{T + 8}, s{T + 8}, s{T + 9}")
    e(f"s_lshl_b32 s{T + 9}, s{SW}, 15")
    e(f"s_add_u32 s{T + 8}, s{T + 8}, s{T + 9}")
    srd(R_C, S_WO, S_WO + 1, 4096 * 1024)
    e(f"s_lshl_b32 s{T + 9}, s{SW}, 12")
    e(f"s_add_u32 s{T + 9}, s{T + 9}, {L_WO}")
    if ("wlin" in xp or "wlinO" in xp):
        e(f"s_lshl_b32 s{T + 8}, s2, 14")
        e(f"s_lshl_b32 s{T + 10}, s{SW}, 12")
        e(f"s_add_u32 s{T + 8}, s{T + 8}, s{T + 10}")

    def woload(w=None):
        e(f"s_mov_b32 m0, s{T + 9}")
        e(f"s_add_u32 s{T + 9}, s{T + 9}, 1024")
        e(f"buffer_load_dwordx4 v3, s[{R_C}:{R_C + 3}], s{T + 8} offen {wpol} lds")
        e(f"s_add_u32 s{T + 8}, s{T + 8}, {1024 if ('wlin' in xp or 'wlinO' in xp) else 8192}")

    if not late:
        for ii in range(4):
            woload()
        e("s_waitcnt vmcnt(12)")
        e("s_barrier")
        pv(2)
    else:
        e("s_waitcnt vmcnt(26)")
        pv(0, woload)
        e("s_waitcnt vmcnt(22)")
        pv(1)
        e("s_waitcnt vmcnt(8)")
        e("s_barrier")
        pv(2)
    e(f"s_lshl_b32 s{T + 8}, s{SW}, 11")
    e("v_lshlrev_b32 v3, 5, v0")
    e(f"v_add_u32 v4, s{T + 8}, v3")
    tail_addrs()
    e("s_waitcnt vmcnt(4)")
    stamp(7)
    pv(3)
    e("s_nop 1")
    for j in range(8):
        e(f"v_mov_b32 v{16 + j}, v{ACC + 4 * j}")
    e("ds_write_b128 v4, v[16:19]")
    e("ds_write_b128 v4, v[20:23] offset:16")
    e("s_waitcnt lgkmcnt(0)")
    stamp(8)
    tstamp(1)
    e("s_barrier")
    tstamp(2)
    e("s_branch L_wts2")

    e("L_H:")
    e("s_setprio 3")
    roles()
    e("v_mov_b32 v3, 0")
    estamp(1)
    e(f"s_cmp_lg_u32 s{S_WAVE}, 0")
    e("s_cbranch_scc1 L_H23")
    e(f"s_sub_u32 s{T}, s{S_Y}, 23")
    e(f"s_cmp_lt_u32 s{T}, {7 if qx else 9}")
    e("s_cbranch_scc1 L_H23")
    P_QA, P_OUT = T + 5, T + 8
    e(f"s_lshl_b32 s{P_QA}, s{S_KH}, 1")
    if qx:
        e(f"s_lshr_b32 s{T}, s{S_HALF}, 1")
        e(f"s_add_u32 s{P_QA}, s{P_QA}, s{T}")
    e(f"s_lshl_b32 s{P_OUT}, s{S_XI}, 14")
    if "cgrot" in xp:
        e(f"s_add_u32 s{T}, s{S_SP}, 2")
        e(f"s_and_b32 s{T}, s{T}, 7")
        e(f"s_lshl_b32 s{T + 1}, s{S_KH}, 3")
        e(f"s_add_u32 s{T}, s{T}, s{T + 1}")
        e(f"s_lshl_b32 s{T}, s{T}, 10")
    else:
        e(f"s_lshl_b32 s{T}, s{S_Y}, 10")
    e(f"s_add_u32 s{P_OUT}, s{P_OUT}, s{T}")
    e(f"s_add_u32 s{P_OUT}, s{P_OUT}, {WS_Q}")
    e(f"s_lshl_b32 s{T}, s{S_L}, 1")
    e(f"s_add_u32 s{T}, s{T}, s{S_KH}")
    e(f"s_lshl_b32 s{T}, s{T}, 10")
    e(f"s_add_u32 s{T}, s{T}, {WS_H}")
    e(f"s_cmp_lt_u32 s{S_Y}, 16")
    e(f"s_cselect_b32 s{P_OUT}, s{P_OUT}, s{T}")
    if qx:
        e(f"s_lshl_b32 s{T}, s{S_XI}, 1")
        e(f"s_add_u32 s{T}, s{T}, s{S_KH}")
        e(f"s_lshl_b32 s{T}, s{T}, 10")
        e(f"s_add_u32 s{T}, s{T}, {WS_QX}")
        e(f"s_cmp_eq_u32 s{S_HALF}, 3")
        e(f"s_cselect_b32 s{P_OUT}, s{T}, s{P_OUT}")
    e("v_and_b32 v3, 3, v2")
    e("v_lshrrev_b32 v10, 2, v2")
    e("v_lshlrev_b32 v4, 10, v3")
    e("v_lshl_add_u32 v4, v10, 8, v4")
    e("v_lshl_add_u32 v4, v1, 4, v4")
    e("s_waitcnt lgkmcnt(0)")
    estamp(2)
    srd(R_B, S_X, S_X + 1, 4096)
    XR = 16
    for tau in range(4):
        e(f"buffer_load_dwordx4 {vr(XR + 4 * tau, 4)}, v4, s[{R_B}:{R_B + 3}], 0 offen offset:{64 * tau}")
    karg2()
    estamp(4)
    if rs8:
        e("v_lshlrev_b32 v14, 10, v10")
        e("v_lshl_add_u32 v14, v1, 7, v14")
    else:
        e("v_lshlrev_b32 v14, 10, v1")
        e("v_lshl_add_u32 v14, v10, 7, v14")
    e("v_lshl_add_u32 v14, v3, 3, v14")
    e(f"v_add_u32 v14, {L_T0}, v14")
    e(f"v_subrev_u32 v11, s{P_QA}, v10")
    e("v_and_b32 v11, 3, v11")
    e("v_lshlrev_b32 v5, 8, v3")
    e("v_lshl_add_u32 v5, v11, 6, v5")
    e("v_lshl_add_u32 v5, v1, 4, v5")
    e("v_cmp_ne_u32 s[64:65], 1, v11")
    e("v_cmp_ne_u32 s[66:67], 2, v11")
    e("v_cmp_ne_u32 s[68:69], 3, v11")
    e("s_waitcnt lgkmcnt(0)")
    epoch_load()
    srd(R_WS, S_WS, S_WS + 1, WS_SIZE)
    e("s_waitcnt vmcnt(0)")
    estamp(6)
    stamp(2)
    XF = 32
    for k in range(16):
        e(f"v_lshlrev_b32 v{XF + 2 * k}, 16, v{XR + k}")
        e(f"v_and_b32 v{XF + 2 * k + 1}, s{S_M16}, v{XR + k}")

    def lane_sum(r, t):
        e("s_nop 1")
        e(f"v_add_f32_dpp v{r}, v{r}, v{r} row_ror:4 row_mask:0xf bank_mask:0xf")
        e("s_nop 1")
        e(f"v_add_f32_dpp v{r}, v{r}, v{r} row_ror:8 row_mask:0xf bank_mask:0xf")
        xrow_reduce("v_add_f32", r, t)

    e(f"v_add_f32 v7, v{XF}, v{XF + 1}")
    e(f"v_add_f32 v8, v{XF + 2}, v{XF + 3}")
    for k in range(4, 32, 2):
        e(f"v_add_f32 v7, v7, v{XF + k}")
        e(f"v_add_f32 v8, v8, v{XF + k + 1}")
    e("v_add_f32 v7, v7, v8")
    lane_sum(7, 9)
    e("v_mul_f32 v7, 0x3b000000, v7")
    e(f"v_sub_f32 v12, v{XF}, v7")
    e(f"v_sub_f32 v6, v{XF + 1}, v7")
    e("v_mul_f32 v8, v12, v12")
    e("v_mul_f32 v13, v6, v6")
    for k in range(2, 32, 2):
        e(f"v_sub_f32 v12, v{XF + k}, v7")
        e(f"v_sub_f32 v6, v{XF + k + 1}, v7")
        e("v_fmac_f32 v8, v12, v12")
        e("v_fmac_f32 v13, v6, v6")
    e("v_add_f32 v8, v8, v13")
    lane_sum(8, 9)
    e("v_mul_f32 v8, 0x3b000000, v8")
    e("v_cvt_pk_bf16_f32 v9, v7, v8")
    e("v_lshlrev_b32 v7, 16, v9")
    e(f"v_and_b32 v8, s{S_M16}, v9")
    e("v_add_f32 v8, 0x3727c5ac, v8")
    e("v_cvt_pk_bf16_f32 v9, v8, v8")
    e(f"v_and_b32 v8, s{S_M16}, v9")
    e("v_sqrt_f32 v8, v8")
    e("s_nop 0")
    e("v_cvt_pk_bf16_f32 v9, v8, v8")
    e(f"v_and_b32 v8, s{S_M16}, v9")
    e("v_rcp_f32 v8, v8")
    BF = 16
    for k in range(16):
        a = XF + 2 * k
        e(f"v_sub_f32 v{a}, v{a}, v7")
        e(f"v_sub_f32 v{a + 1}, v{a + 1}, v7")
        e(f"v_cvt_pk_bf16_f32 v9, v{a}, v{a + 1}")
        e(f"v_lshlrev_b32 v{a}, 16, v9")
        e(f"v_and_b32 v{a + 1}, s{S_M16}, v9")
        e(f"v_mul_f32 v{a}, v{a}, v8")
        e(f"v_mul_f32 v{a + 1}, v{a + 1}, v8")
        e(f"v_cvt_pk_bf16_f32 v{BF + k}, v{a}, v{a + 1}")
    e("s_waitcnt lgkmcnt(0)")
    epoch_tag()
    estamp(7)
    stamp(3)
    e("s_barrier")
    estamp(8)
    stamp(4)
    AF = 64
    DD = 96

    def wread(bi):
        ct, hf = bi >> 1, bi & 1
        for t in range(4):
            r = AF + 16 * (bi & 1) + 4 * t
            tt = 4 * hf + t
            if rs8:
                o0 = (tt >> 1) * 8192 + (tt & 1) * 512 + ct * 32
                o1 = o0 + 4096
            else:
                o0 = tt * 4096 + ct * 32
                o1 = o0 + 512
            e(f"ds_read_b64_tr_b16 {vr(r, 2)}, v14 offset:{o0}")
            e(f"ds_read_b64_tr_b16 {vr(r + 2, 2)}, v14 offset:{o1}")

    wread(0)
    for bi in range(8):
        if bi < 7:
            wread(bi + 1)
            e("s_waitcnt lgkmcnt(8)")
        else:
            e("s_waitcnt lgkmcnt(0)")
        d = DD + 16 * (bi & 1) + 4 * (bi >> 1)
        for t in range(4):
            c = "0" if t == 0 else vr(d, 4)
            e(f"v_mfma_f32_16x16x32_bf16 {vr(d, 4)}, {vr(AF + 16 * (bi & 1) + 4 * t, 4)}, {vr(BF + 4 * t, 4)}, {c}")
    e(f"s_mov_b32 s{T}, 0x07060503")
    e(f"s_mov_b32 s{T + 1}, 0x07060502")
    e(f"s_mov_b32 s{T + 2}, 0x07060501")
    e("s_nop 4")
    for k in range(16):
        e(f"v_add_f32_dpp v{DD + k}, v{DD + 16 + k}, v{DD + k} row_ror:12 row_mask:0xf bank_mask:0xf")
    for ct in range(1, 4):
        e(f"s_mov_b64 vcc, s[{62 + 2 * ct}:{63 + 2 * ct}]")
        for i in range(4):
            e(f"v_cndmask_b32_dpp v{DD + i}, v{DD + 4 * ct + i}, v{DD + i}, vcc row_ror:{4 * ct} row_mask:0xf bank_mask:0xf")
    for i in range(4):
        e(f"v_add_u32 v{DD + i}, 0x80, v{DD + i}")
    for i in range(3):
        e(f"v_perm_b32 v{112 + i}, v{DD + i}, v{DD + 3}, s{T + i}")
    e("v_xor_b32 v115, v112, v113")
    e("v_xor_b32 v115, v115, v114")
    e(f"v_xor_b32 v115, s{S_TAG}, v115")
    if "nohand" not in xp:
        e(f"buffer_store_dwordx4 v[112:115], v5, {WSR}, s{P_OUT} offen sc1")
    stamp(5)
    if not b0x:
        e("s_waitcnt vmcnt(0)")
    e("L_qg:")
    if b0x:
        e("s_barrier")
    stamp(6)
    if "nohand" in xp or "pubonly" in xp:
        e("s_branch L_Hb1")
    e(f"s_lshl_b32 s{T}, s{S_XI}, 14")
    e(f"s_lshl_b32 s{T + 1}, s{S_B}, 8")
    e(f"s_add_u32 s{T}, s{T}, s{T + 1}")
    e(f"s_add_u32 s{T}, s{T}, {WS_Q}")
    e(f"s_add_u32 s{T + 1}, s{T}, 4096")
    e(f"s_add_u32 s{T + 2}, s{T}, 8192")
    e(f"s_add_u32 s{T + 3}, s{T}, 12288")
    e("v_lshlrev_b32 v5, 10, v1")
    e("v_lshl_add_u32 v5, v2, 4, v5")
    e("v_lshlrev_b32 v6, 3, v0")
    e(f"v_add_u32 v6, {L_QB}, v6")
    e(f"s_mov_b32 s{T + 4}, 0x04000c0c")
    e(f"s_mov_b32 s{T + 5}, 0x0706000c")
    QG = 16

    def unit_checks(regs, t0, t1):
        for r in regs:
            e(f"v_xor_b32 v{r + 3}, v{r + 3}, v{r}")
        for r in regs:
            e(f"v_xor_b32 v{r + 3}, v{r + 3}, v{r + 1}")
        for r in regs:
            e(f"v_xor_b32 v{r + 3}, v{r + 3}, v{r + 2}")
        tagcheck([r + 3 for r in regs], t0, t1)

    def unit_unpack(r):
        e(f"v_perm_b32 v{r + 3}, v{r}, v{r + 1}, s{T + 4}")
        e(f"v_perm_b32 v{r + 3}, v{r + 3}, v{r + 2}, s{T + 5}")
        for i in range(3):
            e(f"v_and_b32 v{r + i}, 0xffffff00, v{r + i}")

    QE = 32
    if qx:
        e(f"s_lshl_b32 s{T + 6}, s{S_XI}, 11")
        e(f"s_lshl_b32 s{T + 7}, s{S_B}, 8")
        e(f"s_add_u32 s{T + 6}, s{T + 6}, s{T + 7}")
        e(f"s_add_u32 s{T + 6}, s{T + 6}, {WS_QX}")
        e("v_lshlrev_b32 v7, 4, v2")
        e("s_mov_b32 s62, 0")
        e("s_mov_b32 s63, 0xffff0000")
    lab = poll_begin("pq")
    for kh in range(2):
        for m in range(2):
            r = QG + 8 * kh + 4 * m
            e(f"buffer_load_dwordx4 {vr(r, 4)}, v5, {WSR}, s{T + 2 * kh + m} offen sc1")
    if qx:
        lx = e.label("qx")
        e("s_mov_b64 s[66:67], exec")
        e("s_and_b64 exec, exec, s[62:63]")
        e(f"s_cbranch_execz {lx}")
        e(f"buffer_load_dwordx4 {vr(QE, 4)}, v7, {WSR}, s{T + 6} offen sc1")
        e(f"buffer_load_dwordx4 {vr(QE + 4, 4)}, v7, {WSR}, s{T + 6} offen offset:1024 sc1")
        e(f"{lx}:")
        e("s_mov_b64 exec, s[66:67]")
    e("s_waitcnt vmcnt(0)")
    if qx:
        for r in (QE, QE + 4):
            e(f"v_xor_b32 v{r + 3}, v{r + 3}, v{r}")
            e(f"v_xor_b32 v{r + 3}, v{r + 3}, v{r + 1}")
            e(f"v_xor_b32 v{r + 3}, v{r + 3}, v{r + 2}")
        e(f"v_cmp_ne_u32 s[66:67], s{S_TAG}, v{QE + 3}")
        e(f"v_cmp_ne_u32 vcc, s{S_TAG}, v{QE + 7}")
        e("s_or_b64 s[66:67], s[66:67], vcc")
        e("s_and_b64 s[66:67], s[66:67], s[62:63]")
    unit_checks([QG + 4 * k for k in range(4)], 8, 9)
    if qx:
        e("s_or_b64 vcc, vcc, s[66:67]")
    if "once" in xp:
        e("s_mov_b64 vcc, 0")
    poll_end(lab, 6)
    for k in range(4):
        unit_unpack(QG + 4 * k)
    if qx:
        unit_unpack(QE)
        unit_unpack(QE + 4)
        e("s_mov_b64 exec, s[62:63]")
        for i in range(4):
            e(f"v_add_f32 v{QG + i}, v{QG + i}, v{QE + i}")
            e(f"v_add_f32 v{QG + 8 + i}, v{QG + 8 + i}, v{QE + 4 + i}")
        e("s_mov_b64 exec, -1")
    for m in range(2):
        r = QG + 4 * m
        for i in range(4):
            e(f"v_add_f32 v{r + i}, v{r + i}, v{r + 8 + i}")
        e(f"v_cvt_pk_bf16_f32 v{r}, v{r}, v{r + 1}")
        e(f"v_cvt_pk_bf16_f32 v{r + 1}, v{r + 2}, v{r + 3}")
        e(f"ds_write_b64 v6, {vr(r, 2)} offset:{512 * m}")
    e("s_waitcnt lgkmcnt(0)")
    stamp(7)
    e("s_branch L_Hb1")

    e("L_H23:")
    e("s_waitcnt lgkmcnt(0)")
    karg2()
    e("s_waitcnt lgkmcnt(0)")
    epoch_load()
    srd(R_WS, S_WS, S_WS + 1, WS_SIZE)
    e("s_waitcnt lgkmcnt(0)")
    epoch_tag()
    e(f"s_cmp_eq_u32 s{S_WAVE}, 2")
    e("s_cbranch_scc0 L_noid")
    e(f"s_lshl_b32 s{T}, s{S_XI}, 8")
    e(f"s_lshl_b32 s{T + 1}, s{S_Y}, 3")
    e(f"s_add_u32 s{T}, s{T}, s{T + 1}")
    e(f"s_add_u32 s{T}, s{T}, {WS_ID}")
    e(f"s_getreg_b32 s{T + 2}, hwreg(HW_REG_XCC_ID, 0, 4)")
    e(f"v_mov_b32 v6, s{T + 2}")
    e(f"v_mov_b32 v7, s{S_TAG}")
    e("v_mov_b32 v5, 0")
    e("s_mov_b64 exec, 1")
    e(f"buffer_store_dwordx2 v[6:7], v5, {WSR}, s{T} offen sc1")
    e("s_mov_b64 exec, -1")
    e("L_noid:")
    e("s_barrier")
    e(f"s_cmp_eq_u32 s{S_WAVE}, 0")
    e("s_cbranch_scc1 L_qg")
    if b0x:
        e("s_barrier")

    e("L_Hb1:")
    e("s_barrier")
    HG = 32

    def hloads():
        for lp in range(4):
            for kh in range(2):
                r = HG + 8 * lp + 4 * kh
                e(f"buffer_load_dwordx4 {vr(r, 4)}, v3, {WSR}, s{T + (lp >> 1)} offen offset:{(lp & 1) * 2048 + 1024 * kh} sc1")

    e(f"s_sub_u32 s{T + 4}, s{S_Y}, 23")
    e(f"s_cmp_lt_u32 s{T + 4}, 7")
    e(f"s_cselect_b32 s{T + 6}, s{S_WAVE}, 0")
    if "nohand" in xp or "noh" in xp or "pubonly" in xp or "once" in xp:
        e(f"s_mov_b32 s{T + 6}, 0")
    e(f"s_cmp_eq_u32 s{T + 6}, 3")
    e("s_cbranch_scc0 L_noh1")
    e(f"s_lshl_b32 s{T}, s{T + 4}, 13")
    e(f"s_add_u32 s{T}, s{T}, {WS_H}")
    e(f"s_add_u32 s{T + 1}, s{T}, 4096")
    e("v_lshlrev_b32 v3, 4, v0")
    hloads()
    e("L_noh1:")
    e(f"s_lshl_b32 s{T + 10}, s{S_XI}, 8")
    e(f"s_add_u32 s{T + 10}, s{T + 10}, {WS_ID}")
    e("v_and_b32 v30, 31, v0")
    e("v_lshlrev_b32 v30, 3, v30")
    e(f"s_cmp_eq_u32 s{S_WAVE}, 0")
    e("s_cbranch_scc0 L_noid2")
    e(f"buffer_load_dwordx2 v[30:31], v30, {WSR}, s{T + 10} offen sc1")
    e("L_noid2:")
    e("s_barrier")
    e("s_barrier")
    stamp(8)
    e(f"s_mov_b32 s{S_SAME}, 0")
    e(f"s_cmp_eq_u32 s{S_WAVE}, 0")
    e("s_cbranch_scc0 L_noid3")
    e(f"s_getreg_b32 s{T + 10}, hwreg(HW_REG_XCC_ID, 0, 4)")
    e("s_waitcnt vmcnt(0)")
    e(f"v_cmp_ne_u32 s[64:65], s{S_TAG}, v31")
    e(f"v_cmp_ne_u32 vcc, s{T + 10}, v30")
    e("s_or_b64 vcc, vcc, s[64:65]")
    e("s_cmp_eq_u64 vcc, 0")
    e(f"s_cselect_b32 s{S_SAME}, 1, 0")
    if "noxcc" in xp:
        e(f"s_mov_b32 s{S_SAME}, 0")
    e(f"v_mov_b32 v30, {L_SCALE + 16}")
    e(f"v_mov_b32 v31, s{S_SAME}")
    e("ds_write_b32 v30, v31")
    e("L_noid3:")
    e(f"s_cmp_eq_u32 s{T + 6}, 3")
    e("s_cbranch_scc0 L_noh2")
    e("v_lshlrev_b32 v6, 9, v1")
    e("v_lshl_add_u32 v6, v2, 3, v6")
    e(f"v_add_u32 v6, {L_HB}, v6")
    e(f"s_mov_b32 s{T + 4}, 0x04000c0c")
    e(f"s_mov_b32 s{T + 5}, 0x0706000c")
    lab = e.label("ph")
    e(f"s_mov_b32 s{T + 17}, {POLL_LIMIT}")
    e(f"{lab}:")
    e("s_waitcnt vmcnt(0)")
    unit_checks([HG + 4 * k for k in range(8)], 8, 9)
    e("s_cmp_eq_u64 vcc, 0")
    e(f"s_cbranch_scc1 {lab}_d")
    e(f"s_sub_u32 s{T + 17}, s{T + 17}, 1")
    e(f"s_cbranch_scc1 {lab}_d")
    e("s_sleep 4")
    hloads()
    e(f"s_branch {lab}")
    e(f"{lab}_d:")
    for k in range(8):
        unit_unpack(HG + 4 * k)
    for lp in range(4):
        r = HG + 8 * lp
        for i in range(4):
            e(f"v_add_f32 v{r + i}, v{r + i}, v{r + 4 + i}")
        for i in range(4):
            e(f"v_max_f32 v{r + i}, 0, v{r + i}")
        e(f"v_cvt_pk_bf16_f32 v{r}, v{r}, v{r + 1}")
        e(f"v_cvt_pk_bf16_f32 v{r + 1}, v{r + 2}, v{r + 3}")
        e(f"ds_write_b64 v6, {vr(r, 2)} offset:{128 * lp}")
    e("L_noh2:")
    e(f"s_cmp_eq_u32 s{S_WAVE}, 2")
    e("s_cbranch_scc0 L_nolse")
    e("v_lshlrev_b32 v3, 2, v0")
    e(f"ds_read2st64_b32 v[6:7], v3 offset0:{L_LSUM // 256} offset1:{L_LSUM // 256 + 1}")
    e(f"ds_read2st64_b32 v[8:9], v3 offset0:{L_LSUM // 256 + 2} offset1:{L_LSUM // 256 + 3}")
    e("v_lshlrev_b32 v4, 4, v1")
    e(f"v_add_u32 v4, {L_MAX}, v4")
    e("ds_read2st64_b32 v[10:11], v4 offset0:0 offset1:1")
    e("ds_read2st64_b32 v[12:13], v4 offset0:2 offset1:3")
    e(f"s_mov_b32 s{S_L2E}, 0x3fb8aa3b")
    e(f"s_lshl_b32 s{T}, s{S_XI}, 12")
    e(f"s_lshl_b32 s{T + 1}, s{S_B}, 10")
    e(f"s_add_u32 s{T}, s{T}, s{T + 1}")
    e(f"s_add_u32 s{T}, s{T}, {WS_LSE}")
    e(f"s_lshl_b32 s{T + 1}, s{S_SP}, 7")
    e(f"s_add_u32 s{T + 1}, s{T + 1}, s{T}")
    e("s_waitcnt lgkmcnt(0)")
    e("v_add_f32 v6, v6, v7")
    e("v_add_f32 v8, v8, v9")
    e("v_max3_f32 v10, v10, v11, v12")
    e("v_add_f32 v6, v6, v8")
    e("v_max_f32 v10, v10, v13")
    e("v_rcp_f32 v11, v6")
    e("v_log_f32 v6, v6")
    e(f"v_mul_f32 v10, s{S_L2E}, v10")
    e("v_lshlrev_b32 v5, 3, v1")
    e("v_add_f32 v6, v6, v10")
    e(f"v_mov_b32 v7, s{S_TAG}")
    e("v_cmp_eq_u32 vcc, 0, v2")
    e("s_and_saveexec_b64 s[64:65], vcc")
    e(f"buffer_store_dwordx2 v[6:7], v5, {WSR}, s{T + 1} offen sc1")
    e("s_mov_b64 exec, s[64:65]")
    e("v_lshlrev_b32 v5, 2, v1")
    e(f"v_add_u32 v5, {L_SCALE}, v5")
    e("v_cmp_eq_u32 vcc, 0, v2")
    e("s_and_saveexec_b64 s[64:65], vcc")
    e("ds_write_b32 v5, v11")
    e("s_mov_b64 exec, s[64:65]")
    e("L_nolse:")
    WF = 32
    e("v_lshrrev_b32 v10, 2, v2")
    e("v_and_b32 v11, 3, v2")
    e("v_lshlrev_b32 v4, 10, v1")
    e("v_lshl_add_u32 v4, v10, 7, v4")
    e("v_lshl_add_u32 v4, v11, 3, v4")
    e(f"s_lshl_b32 s{T}, s{S_WAVE}, 5")
    e(f"v_add_u32 v4, s{T}, v4")
    e("v_lshlrev_b32 v6, 9, v11")
    e("v_lshl_add_u32 v6, v1, 4, v6")
    e(f"v_add_u32 v6, {L_HB}, v6")
    e("v_lshlrev_b32 v9, 6, v2")
    e("v_lshl_add_u32 v9, v1, 4, v9")
    e(f"v_mov_b32 v17, s{S_TAG}")
    e(f"v_mov_b32 v19, s{S_TAG}")
    e("s_waitcnt lgkmcnt(0)")
    e("s_barrier")
    e(f"s_cmp_eq_u32 s{S_WAVE}, 1")
    e("s_cbranch_scc0 L_noid4")
    e(f"v_mov_b32 v30, {L_SCALE + 16}")
    e("ds_read_b32 v30, v30")
    e("s_waitcnt lgkmcnt(0)")
    e(f"v_readfirstlane_b32 s{S_SAME}, v30")
    e("L_noid4:")
    e(f"s_sub_u32 s{T + 4}, s{S_Y}, 23")
    e(f"s_cmp_ge_u32 s{T + 4}, 7")
    e("s_cbranch_scc1 L_nog2")
    e(f"v_add_u32 v7, {L_T0}, v4")
    for t in range(8):
        ad, off = ("v7", t * 4096) if t < 6 else ("v4", L_W2B + (t - 6) * 4096)
        e(f"ds_read_b64_tr_b16 {vr(64 + 4 * t, 2)}, {ad} offset:{off}")
        e(f"ds_read_b64_tr_b16 {vr(64 + 4 * t + 2, 2)}, {ad} offset:{off + 512}")
        if t == 3:
            e("s_waitcnt lgkmcnt(4)")
    e("s_waitcnt lgkmcnt(4)")
    for t in range(8):
        e(f"ds_read_b128 {vr(128 + 4 * t, 4)}, v6 offset:{64 * t}")
    e("s_waitcnt lgkmcnt(0)")
    for t in range(8):
        c = "0" if t == 0 else "v[12:15]"
        e(f"v_mfma_f32_16x16x32_bf16 v[12:15], {vr(64 + 4 * t, 4)}, {vr(128 + 4 * t, 4)}, {c}")
    e("s_nop 7")
    e("v_cvt_pk_bf16_f32 v20, v12, v13")
    e("v_cvt_pk_bf16_f32 v22, v14, v15")
    e(f"s_lshl_b32 s{T}, s{S_XI}, 15")
    e(f"s_lshl_b32 s{T + 1}, s{T + 4}, 10")
    e(f"s_add_u32 s{T}, s{T}, s{T + 1}")
    e(f"s_lshl_b32 s{T + 1}, s{S_WAVE}, 8")
    e(f"s_add_u32 s{T}, s{T}, s{T + 1}")
    e(f"s_add_u32 s{T}, s{T}, {WS_GP}")
    e(f"v_mov_b32 v21, s{S_TAG}")
    e(f"v_mov_b32 v23, s{S_TAG}")
    e("v_cmp_gt_u32 vcc, 4, v2")
    e("s_and_saveexec_b64 s[64:65], vcc")
    e(f"buffer_store_dwordx4 v[20:23], v9, {WSR}, s{T} offen sc1")
    e("s_mov_b64 exec, s[64:65]")
    e("L_nog2:")
    e("v_lshrrev_b32 v24, 5, v0")
    e(f"s_lshl_b32 s{T}, s{S_WAVE}, 1")
    e(f"v_add_u32 v24, s{T}, v24")
    e("v_and_b32 v25, 31, v0")
    e("v_lshlrev_b32 v25, 4, v25")
    e("v_lshl_add_u32 v26, v24, 9, v25")
    e("v_lshl_add_u32 v27, v24, 14, v25")
    e("v_lshlrev_b32 v28, 2, v24")
    e(f"v_add_u32 v28, {L_SCALE}, v28")
    e(f"s_lshl_b32 s{T + 11}, s{S_XI}, 16")
    e(f"s_lshl_b32 s{T + 1}, s{S_SP}, 11")
    e(f"s_add_u32 s{T + 11}, s{T + 11}, s{T + 1}")
    e(f"s_lshl_b32 s{T + 1}, s{S_B}, 9")
    e(f"s_add_u32 s{T + 11}, s{T + 11}, s{T + 1}")
    e(f"s_add_u32 s{T + 11}, s{T + 11}, {WS_OP}")
    e(f"v_mov_b32 v81, s{S_TAG}")
    e(f"v_mov_b32 v83, s{S_TAG}")
    e(f"s_lshl_b32 s{T + 14}, s{S_XI}, 2")
    e(f"s_add_u32 s{T + 14}, s{T + 14}, s{S_B}")
    e(f"s_lshl_b32 s{T + 14}, s{T + 14}, 10")
    e(f"s_lshl_b32 s{T + 1}, s{S_SP}, 15")
    e(f"s_add_u32 s{T + 14}, s{T + 14}, s{T + 1}")
    e(f"s_lshl_b32 s{T + 1}, s{S_WAVE}, 8")
    e(f"s_add_u32 s{T + 14}, s{T + 14}, s{T + 1}")
    e(f"s_add_u32 s{T + 14}, s{T + 14}, {WS_SP}")
    e("v_and_b32 v12, 3, v2")
    e("v_lshlrev_b32 v12, 8, v12")
    e("v_lshl_add_u32 v12, v1, 4, v12")
    e(f"v_add_u32 v12, {L_OBF}, v12")
    e(f"v_add_u32 v4, {L_WO}, v4")
    tail_addrs()
    stamp(9)

    tstamp(1)
    e("s_barrier")
    tstamp(2)
    e(f"s_cmp_lt_u32 s{S_WAVE}, 2")
    e("s_cbranch_scc0 L_nopub")
    for sw_ in range(4):
        e(f"ds_read_b128 {vr(64 + 4 * sw_, 4)}, v26 offset:{sw_ * 2048}")
    e("ds_read_b32 v29, v28")
    e("s_waitcnt lgkmcnt(0)")
    for i in range(4):
        e(f"v_add_f32 v{64 + i}, v{64 + i}, v{68 + i}")
        e(f"v_add_f32 v{72 + i}, v{72 + i}, v{76 + i}")
    for i in range(4):
        e(f"v_add_f32 v{64 + i}, v{64 + i}, v{72 + i}")
    for i in range(4):
        e(f"v_mul_f32 v{64 + i}, v{64 + i}, v29")
    e("v_cvt_pk_bf16_f32 v80, v64, v65")
    e("v_cvt_pk_bf16_f32 v82, v66, v67")
    e(f"s_cmp_eq_u32 s{S_SAME}, 1")
    e("s_cbranch_scc1 L_publ")
    e(f"buffer_store_dwordx4 v[80:83], v27, {WSR}, s{T + 11} offen sc1")
    e("s_branch L_pubs")
    e("L_publ:")
    e(f"buffer_store_dwordx4 v[80:83], v27, {WSR}, s{T + 11} offen")
    e("L_pubs:")
    tstamp(3)
    e("L_nopub:")
    e("L_wts2:")
    lse_loads()
    tstamp(5)
    if hint:
        e("v_lshlrev_b32 v6, 11, v0")
        e("v_add_u32 v6, 252, v6")
        e("s_mov_b64 exec, 0xff")
        lab = poll_begin("ph2")
        e(f"buffer_load_dword v8, v6, {WSR}, s{T} offen sc1")
        e("s_waitcnt vmcnt(0)")
        tagcheck([8], 0, 0)
        poll_end(lab, tsleep)
    def oloads():
        e(f"buffer_load_dwordx4 v[{OG}:{OG + 3}], v{VO}, {WSR}, s{S_O0} offen sc1")
        e(f"buffer_load_dwordx4 v[{OG + 4}:{OG + 7}], v{VO}, {WSR}, s{S_O1} offen sc1")

    oloads()
    e("s_waitcnt vmcnt(2)")
    weights(waited=True)
    tstamp(4)
    lab = e.label("po")
    e(f"s_mov_b32 s{T + 17}, {POLL_LIMIT}")
    e(f"s_branch {lab}_c")
    e(f"{lab}:")
    oloads()
    e(f"{lab}_c:")
    e("s_waitcnt vmcnt(0)")
    tagcheck([OG + 1, OG + 3, OG + 5, OG + 7], 8, 7)
    poll_end(lab, tsleep)
    stamp(10)
    tstamp(6)
    e(f"v_lshlrev_b32 v56, 16, v{OG}")
    e(f"v_and_b32 v57, s{S_M16}, v{OG}")
    e(f"v_lshlrev_b32 v58, 16, v{OG + 2}")
    e(f"v_and_b32 v59, s{S_M16}, v{OG + 2}")
    e(f"v_lshlrev_b32 v60, 16, v{OG + 4}")
    e(f"v_and_b32 v61, s{S_M16}, v{OG + 4}")
    e(f"v_lshlrev_b32 v62, 16, v{OG + 6}")
    e(f"v_and_b32 v63, s{S_M16}, v{OG + 6}")
    for i in range(4):
        e(f"v_mul_f32 v{56 + i}, v{56 + i}, v110")
    for i in range(4):
        e(f"v_fmac_f32 v{56 + i}, v{60 + i}, v111")
    e("s_nop 0")
    e("v_permlane32_swap_b32 v56, v58")
    e("v_permlane32_swap_b32 v57, v59")
    e("s_nop 0")
    e("v_add_f32 v56, v56, v58")
    e("v_add_f32 v57, v57, v59")
    e("s_nop 1")
    e("v_permlane16_swap_b32 v56, v57")
    e("s_nop 1")
    e("v_add_f32 v56, v56, v57")
    e("v_cvt_pk_bf16_f32 v56, v56, v56")
    e(f"ds_write_b16 v{VL}, v56")
    e("s_waitcnt vmcnt(0) lgkmcnt(0)")
    e("s_barrier")
    tstamp(7)
    e(f"s_cmp_lt_u32 s{S_WAVE}, 4")
    e("s_cbranch_scc0 L_final")
    BB = 96
    for t in range(4):
        e(f"ds_read_b128 {vr(BB + 4 * t, 4)}, v12 offset:{64 * t}")
        e(f"ds_read_b64_tr_b16 {vr(WF + 4 * t, 2)}, v4 offset:{t * 4096}")
        e(f"ds_read_b64_tr_b16 {vr(WF + 4 * t + 2, 2)}, v4 offset:{t * 4096 + 512}")
    e("v_cmp_gt_u32 vcc, 4, v2")
    for t in range(4):
        e(f"s_waitcnt lgkmcnt({9 - 3 * t})")
        c = "0" if t == 0 else "v[12:15]"
        e(f"v_mfma_f32_16x16x32_bf16 v[12:15], {vr(WF + 4 * t, 4)}, {vr(BB + 4 * t, 4)}, {c}")
    e("s_nop 7")
    e("v_cvt_pk_bf16_f32 v16, v12, v13")
    e("v_cvt_pk_bf16_f32 v18, v14, v15")
    e("s_and_saveexec_b64 s[64:65], vcc")
    e(f"buffer_store_dwordx4 v[16:19], v9, {WSR}, s{T + 14} offen {spst}")
    stamp(11)
    stamp_flush()
    e("s_endpgm")

    e("L_final:")
    e(f"s_cmp_gt_u32 s{S_WAVE}, 5")
    e("s_cbranch_scc0 L_fin0")
    stamp_flush()
    e("s_endpgm")
    e("L_fin0:")
    e("v_lshrrev_b32 v3, 1, v0")
    e("v_lshlrev_b32 v3, 10, v3")
    e("v_and_b32 v4, 1, v0")
    e("v_lshl_add_u32 v3, v4, 4, v3")
    e(f"s_lshl_b32 s{T}, s{S_XI}, 15")
    e(f"s_lshl_b32 s{T + 1}, s{S_B}, 6")
    e(f"s_add_u32 s{T}, s{T}, s{T + 1}")
    e(f"s_lshr_b32 s{T + 1}, s{S_SP}, 1")
    e(f"s_lshl_b32 s{T + 1}, s{T + 1}, 8")
    e(f"s_add_u32 s{T}, s{T}, s{T + 1}")
    e(f"s_and_b32 s{T + 1}, s{S_SP}, 1")
    e(f"s_lshl_b32 s{T + 1}, s{T + 1}, 5")
    e(f"s_add_u32 s{T}, s{T}, s{T + 1}")
    e(f"s_lshl_b32 s{T + 4}, s{S_B}, 10")
    e(f"s_lshl_b32 s{T + 5}, s{S_XI}, 7")
    e(f"s_add_u32 s{T + 4}, s{T + 4}, s{T + 5}")
    e(f"s_lshl_b32 s{T + 5}, s{S_SP}, 4")
    e(f"s_add_u32 s{T + 4}, s{T + 4}, s{T + 5}")
    e("v_lshlrev_b32 v5, 3, v4")
    e("v_lshlrev_b32 v6, 5, v4")
    e(f"v_add_u32 v6, {L_FIN}, v6")

    def unpack4(dst, lo, hi):
        e(f"v_lshlrev_b32 v{dst}, 16, v{lo}")
        e(f"v_and_b32 v{dst + 1}, s{S_M16}, v{lo}")
        e(f"v_lshlrev_b32 v{dst + 2}, 16, v{hi}")
        e(f"v_and_b32 v{dst + 3}, s{S_M16}, v{hi}")

    def red32(base):
        e("s_nop 0")
        for rot in (2, 4, 8):
            for i in range(4):
                e(f"v_add_f32_dpp v{base + i}, v{base + i}, v{base + i} row_ror:{rot} row_mask:0xf bank_mask:0xf")
        for sw_ in ("v_permlane16_swap_b32", "v_permlane32_swap_b32"):
            for i in range(4):
                e(f"v_mov_b32 v{base + 4 + i}, v{base + i}")
            e("s_nop 0")
            for i in range(4):
                e(f"{sw_} v{base + 4 + i}, v{base + i}")
            for i in range(4):
                e(f"v_add_f32 v{base + i}, v{base + i}, v{base + 4 + i}")

    e(f"s_cmp_eq_u32 s{S_WAVE}, 4")
    e("s_cbranch_scc1 L_fins")
    e(f"s_add_u32 s{T + 2}, s{T}, {WS_GP}")
    e("v_cmp_gt_u32 s[66:67], 14, v0")
    e("v_cmp_eq_u32 vcc, 1, v4")
    e(f"v_mov_b32 v20, s{S_RES}")
    e(f"v_mov_b32 v21, s{S_RES + 1}")
    e(f"v_mov_b32 v22, s{S_RES + 2}")
    e(f"v_mov_b32 v23, s{S_RES + 3}")
    e("v_cndmask_b32 v20, v20, v22, vcc")
    e("v_cndmask_b32 v21, v21, v23, vcc")
    lab = poll_begin("pgp")
    e(f"buffer_load_dwordx4 v[32:35], v3, {WSR}, s{T + 2} offen sc1")
    e("s_waitcnt vmcnt(0)")
    tagcheck([33, 35], 0, 0)
    e("s_and_b64 vcc, vcc, s[66:67]")
    poll_end(lab, tsleep)
    e("v_cndmask_b32 v32, 0, v32, s[66:67]")
    e("v_cndmask_b32 v34, 0, v34, s[66:67]")
    unpack4(24, 32, 34)
    red32(24)
    e("v_cvt_pk_bf16_f32 v8, v24, v25")
    e("v_cvt_pk_bf16_f32 v9, v26, v27")
    unpack4(24, 8, 9)
    e(f"s_mov_b32 s{T + 5}, 0xbfb8aa3b")
    for i in range(4):
        e(f"v_mul_f32 v{28 + i}, s{T + 5}, v{24 + i}")
    for i in range(4):
        e(f"v_exp_f32 v{28 + i}, v{28 + i}")
    e("s_nop 0")
    for i in range(4):
        e(f"v_add_f32 v{28 + i}, 1.0, v{28 + i}")
    for i in range(4):
        e(f"v_rcp_f32 v{28 + i}, v{28 + i}")
    e("s_nop 0")
    for i in range(4):
        e(f"v_mul_f32 v{24 + i}, v{24 + i}, v{28 + i}")
    e("v_cvt_pk_bf16_f32 v8, v24, v25")
    e("v_cvt_pk_bf16_f32 v9, v26, v27")
    unpack4(24, 8, 9)
    unpack4(28, 20, 21)
    e("s_mov_b64 exec, 3")
    e("ds_write_b128 v6, v[24:27]")
    e("ds_write_b128 v6, v[28:31] offset:16")
    e("s_waitcnt lgkmcnt(0)")
    tstamp(8)
    e("s_barrier")
    stamp_flush()
    e("s_endpgm")
    e("L_fins:")
    e(f"s_add_u32 s{T + 3}, s{T}, {WS_SP}")
    srd(R_B, S_OUT, S_OUT + 1, 4096)
    lab = poll_begin("psp")
    e(f"buffer_load_dwordx4 v[32:35], v3, {WSR}, s{T + 3} offen {spld}")
    e("s_waitcnt vmcnt(0)")
    tagcheck([33, 35], 0, 0)
    poll_end(lab, tsleep)
    tstamp(9)
    unpack4(40, 32, 34)
    red32(40)
    e("v_cvt_pk_bf16_f32 v8, v40, v41")
    e("v_cvt_pk_bf16_f32 v9, v42, v43")
    unpack4(40, 8, 9)
    e("s_barrier")
    e("ds_read_b128 v[24:27], v6")
    e("ds_read_b128 v[28:31], v6 offset:16")
    e("s_waitcnt lgkmcnt(0)")
    for i in range(4):
        e(f"v_mul_f32 v{40 + i}, v{40 + i}, v{24 + i}")
    e("v_cvt_pk_bf16_f32 v8, v40, v41")
    e("v_cvt_pk_bf16_f32 v9, v42, v43")
    unpack4(40, 8, 9)
    for i in range(4):
        e(f"v_add_f32 v{40 + i}, v{40 + i}, v{28 + i}")
    e("v_cvt_pk_bf16_f32 v8, v40, v41")
    e("v_cvt_pk_bf16_f32 v9, v42, v43")
    e("s_mov_b64 exec, 3")
    e(f"buffer_store_dwordx2 v[8:9], v5, s[{R_B}:{R_B + 3}], s{T + 4} offen")
    e("s_cmp_eq_u32 s2, 0")
    e("s_cbranch_scc0 L_noep")
    e("s_mov_b64 exec, 1")
    e(f"v_mov_b32 v6, {WS_E}")
    e(f"v_mov_b32 v7, s{S_TAG}")
    e(f"buffer_store_dword v7, v6, {WSR}, 0 offen")
    e("L_noep:")
    stamp(11)
    stamp_flush()
    e("L_end:")
    e("s_endpgm")
    e(f".fill ({20480 if diag else 16384} - (. - {KN}_kernel)) / 4, 4, 0xbf800000")
    e('.section .rodata,"a"')
    e(".p2align 6")
    e(f".amdhsa_kernel {KN}_kernel")
    e("  .amdhsa_next_free_vgpr 256")
    e("  .amdhsa_next_free_sgpr 102")
    e("  .amdhsa_accum_offset 256")
    e("  .amdhsa_group_segment_fixed_size 0")
    e("  .amdhsa_kernarg_size 88")
    e("  .amdhsa_user_sgpr_count 2")
    e("  .amdhsa_user_sgpr_kernarg_segment_ptr 1")
    e("  .amdhsa_system_sgpr_workgroup_id_x 1")
    e(".end_amdhsa_kernel")
    return e.text()


if __name__ == "__main__":
    import argparse
    ap = argparse.ArgumentParser()
    ap.add_argument("-o", default="k.s")
    ap.add_argument("--diag", action="store_true")
    ap.add_argument("--early", action="store_true")
    ap.add_argument("--thr", type=int, default=6)
    ap.add_argument("--kpol", default="nt")
    ap.add_argument("--wpol", default="nt")
    ap.add_argument("--hint", action="store_true")
    ap.add_argument("--thr2", type=int, default=10)
    ap.add_argument("--nshallow", type=int, default=4)
    ap.add_argument("--light", action="store_true")
    ap.add_argument("--tail", action="store_true")
    ap.add_argument("--wint", action="store_true")
    ap.add_argument("--nob0x", action="store_true")
    ap.add_argument("--noqx", action="store_true")
    ap.add_argument("--rs8", action="store_true")
    ap.add_argument("--late", type=int, default=1)
    ap.add_argument("--pfn", type=int, default=8)
    ap.add_argument("--spld", default="sc1")
    ap.add_argument("--spst", default="sc1")
    ap.add_argument("--xp", default="")
    ap.add_argument("--tsleep", type=int, default=1)
    a = ap.parse_args()
    open(a.o, "w").write(gen(diag=a.diag, thr=a.thr, kpol=a.kpol, wpol=a.wpol, early=a.early, hint=a.hint, thr2=a.thr2, nshallow=a.nshallow, tsleep=a.tsleep, light=a.light, xp=tuple(a.xp.split(',')), tailst=a.tail, spld=a.spld, spst=a.spst, wint=a.wint, pfn=a.pfn, late=a.late, rs8=a.rs8, qx=not a.noqx, b0x=not a.nob0x))
```

```python
import sys

KN = "recurrent_scan__sliding_block_cached__dense_activation_relu__decode"

WS_E = 0x00000
WS_LSE = 0x01000
WS_ID = 0x0A000
WS_Q = 0x10000
WS_QX = 0x30000
WS_H = 0x90000
WS_OP = 0xD0000
WS_SP = 0x150000
WS_GP = 0x190000
WS_SIZE = 0x1D0000
WS_STAMP = 0x200000

L_K = 0
L_RED = 0
L_LSUM = 8192
L_OBF = 10240
L_T0 = 131072
L_QB = L_T0 + 24576
L_MAX = L_T0 + 25600
L_SCALE = L_T0 + 26624
L_HB = L_T0 + 28672
L_FIN = 12288
L_W2B = 16384
L_WO = 32768
LDS_BYTES = 163840

POLL_LIMIT = 200000
EPOCH_STEP = 0x9E3779B9

HEADER = """; Kernarg layout for this problem (88 bytes, ptrs only, base s[0:1]):
;
; Workgroups hand data to each other through d_ws in 8-byte {payload, tag} granules; the tag is derived from an epoch
"""


class Asm:
    def __init__(self):
        self.L = []
        self.nlab = 0

    def __call__(self, s):
        for line in s.split("\n"):
            line = line.strip()
            if line:
                self.L.append(line)

    def label(self, base):
        self.nlab += 1
        return f"L_{base}_{self.nlab}"

    def text(self):
        out = []
        for l in self.L:
            if l.endswith(":") or l.startswith(".") or l.startswith(";"):
                out.append(l)
            else:
                out.append("    " + l)
        return "\n".join(out) + "\n"


def vr(a, n=1):
    return f"v{a}" if n == 1 else f"v[{a}:{a + n - 1}]"


def gen(diag=False, thr=7, kpol="nt", wpol="nt", early=False, hint=False, tsleep=1, thr2=10, light=False, nshallow=5, xp=(), tailst=False, spld='sc1', spst='sc1', wint=False, pfn=8, late=1, rs8=False, qx=True, b0x=True, k2first=False, prio=False, tlb=False, thr3=None):
    e = Asm()
    PF2 = True
    S_X, S_K, S_V, S_WQ, S_WO, S_BX, S_W1, S_W2 = 4, 6, 8, 10, 12, 14, 16, 18
    S_OUT, S_DBG, S_WS = 20, 22, 24
    S_XI, S_Y, S_WAVE, S_B, S_SP, S_TAG = 26, 27, 28, 29, 30, 31
    R_A, R_B, R_WS, R_C, R_D = 32, 36, 40, 44, 48
    T = 52
    S_STAMP = 72
    S_M16, S_SC, S_L2E, S_PLO, S_PHI = 96, 97, 98, 99, 100
    S_RES = 48
    S_O0, S_O1 = 14, 15
    OG = 48
    VO, VL = 105, 112
    S_SAME = 101
    WSR = f"s[{R_WS}:{R_WS + 3}]"

    def estamp(k):
        if diag and early:
            e(f"s_memrealtime s[{S_STAMP + 2 * k}:{S_STAMP + 2 * k + 1}]")
            e("s_waitcnt lgkmcnt(0)")

    def tstamp(k):
        if diag and tailst:
            e(f"s_memrealtime s[{S_STAMP + 2 * k}:{S_STAMP + 2 * k + 1}]")
            e("s_waitcnt lgkmcnt(0)")

    def stamp(k):
        if diag and tailst:
            if k == 11:
                tstamp(11)
            return
        if diag and not (early and k != 11) and not (light and k not in (8, 10, 11)):
            assert k < 12
            e(f"s_memrealtime s[{S_STAMP + 2 * k}:{S_STAMP + 2 * k + 1}]")
            e("s_waitcnt lgkmcnt(0)")

    def stamp_flush():
        if diag:
            e("s_waitcnt vmcnt(0) lgkmcnt(0)")
            e(f"s_lshl_b32 s{T}, s2, 3")
            e(f"s_add_u32 s{T}, s{T}, s{S_WAVE}")
            e(f"s_lshl_b32 s{T}, s{T}, 7")
            e(f"s_add_u32 s{T}, s{T}, {WS_STAMP}")
            e("s_mov_b64 exec, 1")
            e(f"v_mov_b32 v1, s{T}")
            for k in range(12):
                e(f"v_mov_b32 v2, s{S_STAMP + 2 * k}")
                e(f"v_mov_b32 v3, s{S_STAMP + 2 * k + 1}")
                e(f"global_store_dwordx2 v1, v[2:3], s[{S_WS}:{S_WS + 1}] offset:{8 * k}")
            e("s_waitcnt vmcnt(0)")

    def karg2():
        e("s_load_dwordx4 s[20:23], s[0:1], 64")
        e("s_load_dwordx2 s[24:25], s[0:1], 80")

    def epoch_load():
        if "wsend" in xp:
            e(f"s_add_u32 s{S_WS}, s{S_WS}, {512 * 1024 * 1024 - 4 * 1024 * 1024}")
            e(f"s_addc_u32 s{S_WS + 1}, s{S_WS + 1}, 0")
        e(f"s_load_dword s{S_TAG}, s[{S_WS}:{S_WS + 1}], {WS_E}")

    def epoch_tag():
        e(f"s_add_u32 s{S_TAG}, s{S_TAG}, {EPOCH_STEP:#x}")

    def srd(r, lo, hi, size):
        if lo != r:
            e(f"s_mov_b32 s{r}, s{lo}")
            e(f"s_mov_b32 s{r + 1}, s{hi}")
        e(f"s_mov_b32 s{r + 2}, {size}")
        e(f"s_mov_b32 s{r + 3}, 0x20000")

    def srd_off(r, base, soff, size):
        e(f"s_add_u32 s{r}, s{base}, s{soff}")
        e(f"s_addc_u32 s{r + 1}, s{base + 1}, 0")
        e(f"s_mov_b32 s{r + 2}, {size}")
        e(f"s_mov_b32 s{r + 3}, 0x20000")

    def poll_begin(name):
        lab = e.label(name)
        e(f"s_mov_b32 s{T + 17}, {POLL_LIMIT}")
        e(f"{lab}:")
        return lab

    def poll_end(lab, sleep=1, masked=True):
        done = lab + "_d"
        e("s_cmp_eq_u64 vcc, 0")
        e(f"s_cbranch_scc1 {done}")
        e(f"s_sub_u32 s{T + 17}, s{T + 17}, 1")
        e(f"s_cbranch_scc1 {done}")
        if masked and "nomask" not in xp:
            e("s_mov_b64 exec, vcc")
        if sleep:
            e(f"s_sleep {sleep}")
        e(f"s_branch {lab}")
        e(f"{done}:")
        if masked:
            e("s_mov_b64 exec, -1")

    def tagcheck(tags, t0, t1):
        if len(tags) == 1:
            e(f"v_cmp_ne_u32 vcc, s{S_TAG}, v{tags[0]}")
            return
        if len(tags) == 2:
            e(f"v_cmp_ne_u32 s[{T + 12}:{T + 13}], s{S_TAG}, v{tags[0]}")
            e(f"v_cmp_ne_u32 vcc, s{S_TAG}, v{tags[1]}")
            e(f"s_or_b64 vcc, vcc, s[{T + 12}:{T + 13}]")
            return
        for op, acc in (("max", t0), ("min", t1)):
            rest = list(tags)
            if len(rest) >= 3:
                e(f"v_{op}3_u32 v{acc}, v{rest[0]}, v{rest[1]}, v{rest[2]}")
                rest = rest[3:]
            while len(rest) >= 2:
                e(f"v_{op}3_u32 v{acc}, v{acc}, v{rest[0]}, v{rest[1]}")
                rest = rest[2:]
            if rest:
                e(f"v_{op}_u32 v{acc}, v{acc}, v{rest[0]}")
        e(f"v_cmp_ne_u32 s[{T + 12}:{T + 13}], s{S_TAG}, v{t0}")
        e(f"v_cmp_ne_u32 vcc, s{S_TAG}, v{t1}")
        e(f"s_or_b64 vcc, vcc, s[{T + 12}:{T + 13}]")

    def xrow_reduce(op, r, t):
        e(f"v_mov_b32 v{t}, v{r}")
        e("s_nop 1")
        e(f"v_permlane32_swap_b32 v{t}, v{r}")
        e("s_nop 1")
        e(f"{op} v{r}, v{t}, v{r}")
        e(f"v_mov_b32 v{t}, v{r}")
        e("s_nop 1")
        e(f"v_permlane16_swap_b32 v{t}, v{r}")
        e("s_nop 1")
        e(f"{op} v{r}, v{t}, v{r}")

    LA, LV = 104, 106

    def lse_addr():
        e(f"s_lshl_b32 s{T + 15}, s{S_XI}, 12")
        e(f"s_lshr_b32 s{T + 16}, s{S_WAVE}, 1")
        e(f"s_lshl_b32 s{T + 16}, s{T + 16}, 10")
        e(f"s_add_u32 s{T + 15}, s{T + 15}, s{T + 16}")
        e(f"s_lshl_b32 s{T + 16}, s{S_B}, 3")
        e(f"s_add_u32 s{T + 15}, s{T + 15}, s{T + 16}")
        e(f"s_add_u32 s{T + 15}, s{T + 15}, {WS_LSE}")
        e(f"v_lshlrev_b32 v{LA}, 7, v1")

    def lse_loads():
        e(f"buffer_load_dwordx2 v[{LV}:{LV + 1}], v{LA}, {WSR}, s{T + 15} offen sc1")
        e(f"buffer_load_dwordx2 v[{LV + 2}:{LV + 3}], v{LA}, {WSR}, s{T + 15} offen offset:512 sc1")

    def tail_addrs():
        lse_addr()
        e(f"s_lshl_b32 s{S_O0}, s{S_XI}, 16")
        e(f"s_lshl_b32 s{S_O1}, s{S_B}, 14")
        e(f"s_add_u32 s{S_O0}, s{S_O0}, s{S_O1}")
        e(f"s_lshl_b32 s{S_O1}, s{S_WAVE}, 8")
        e(f"s_add_u32 s{S_O0}, s{S_O0}, s{S_O1}")
        e(f"s_add_u32 s{S_O0}, s{S_O0}, {WS_OP}")
        e(f"s_add_u32 s{S_O1}, s{S_O0}, 8192")
        e(f"v_lshlrev_b32 v{VO}, 11, v1")
        e(f"v_lshl_add_u32 v{VO}, v2, 4, v{VO}")
        e(f"s_lshl_b32 s{T + 9}, s{S_WAVE}, 7")
        e(f"s_add_u32 s{T + 9}, s{T + 9}, {L_OBF}")
        e(f"v_lshlrev_b32 v{VL}, 3, v2")
        e(f"v_lshl_add_u32 v{VL}, v1, 1, v{VL}")
        e(f"v_add_u32 v{VL}, s{T + 9}, v{VL}")


    def weights(waited=False):
        lab = e.label("pw")
        e(f"s_mov_b32 s{T + 17}, {POLL_LIMIT}")
        if waited:
            e(f"s_branch {lab}_c")
        e(f"{lab}:")
        e("s_waitcnt vmcnt(0)")
        if waited:
            e(f"{lab}_c:")
        tagcheck([LV + 1, LV + 3], 0, 0)
        e("s_cmp_eq_u64 vcc, 0")
        e(f"s_cbranch_scc1 {lab}_d")
        e(f"s_sub_u32 s{T + 17}, s{T + 17}, 1")
        e(f"s_cbranch_scc1 {lab}_d")
        e("s_mov_b64 exec, vcc")
        e("s_sleep 2")
        lse_loads()
        e(f"s_branch {lab}")
        e(f"{lab}_d:")
        e("s_mov_b64 exec, -1")
        e(f"v_max_f32 v110, v{LV}, v{LV + 2}")
        xrow_reduce("v_max_f32", 110, 111)
        e(f"v_sub_f32 v{LV}, v{LV}, v110")
        e(f"v_sub_f32 v{LV + 2}, v{LV + 2}, v110")
        e(f"v_exp_f32 v{LV}, v{LV}")
        e(f"v_exp_f32 v{LV + 2}, v{LV + 2}")
        e("s_nop 0")
        e(f"v_add_f32 v110, v{LV}, v{LV + 2}")
        xrow_reduce("v_add_f32", 110, 111)
        e("v_rcp_f32 v110, v110")
        e("s_nop 0")
        e(f"v_mul_f32 v111, v{LV + 2}, v110")
        e(f"v_mul_f32 v110, v{LV}, v110")

    for l in HEADER.strip("\n").split("\n"):
        e.L.append(l)
    e.L.append(f"; @launch grid=(256,1,1) block=(512,1,1) lds={LDS_BYTES}")
    e('.amdgcn_target "amdgcn-amd-amdhsa--gfx950"')
    e(".text")
    e(f".globl {KN}_kernel")
    e(".p2align 8")
    e(f".type {KN}_kernel,@function")
    e(f"{KN}_kernel:")
    if diag:
        e(f"s_memrealtime s[{S_STAMP}:{S_STAMP + 1}]")
    e("s_cmp_ge_u32 s2, 256")
    e("s_cbranch_scc1 L_end")
    e("s_load_dwordx16 s[4:19], s[0:1], 0")
    e("v_lshrrev_b32 v1, 6, v0")
    e(f"s_and_b32 s{S_XI}, s2, 7")
    e(f"s_lshr_b32 s{S_Y}, s2, 3")
    e(f"v_readfirstlane_b32 s{S_WAVE}, v1")
    if pfn < 256:
        e(f"s_cmp_lt_u32 s2, {pfn}")
        e("s_cbranch_scc0 L_nopf")
    e("s_getpc_b64 s[60:61]")
    e("L_pc:")
    e(f"s_sub_u32 s60, s60, L_pc-{KN}_kernel")
    e("s_subb_u32 s61, s61, 0")
    e("v_lshlrev_b32 v1, 4, v0")
    e("global_load_dword v255, v1, s[60:61]")
    e("v_add_u32 v1, 0x2000, v1")
    e("global_load_dword v255, v1, s[60:61]")
    e("L_nopf:")
    e("v_and_b32 v0, 63, v0")
    e(f"s_lshr_b32 s{S_B}, s{S_Y}, 3")
    e(f"s_and_b32 s{S_SP}, s{S_Y}, 7")
    e("v_lshrrev_b32 v1, 4, v0")
    e("v_and_b32 v2, 15, v0")
    e(f"s_cmp_lt_u32 s{S_WAVE}, 4")
    e("s_cbranch_scc1 L_H")

    S_L, S_KH = 70, 71
    S_HALF = 3

    def roles():
        e(f"s_mov_b32 s{S_M16}, 0xffff0000")
        e("v_mov_b32 v9, 0")
        e(f"s_sub_u32 s{S_L}, s{S_Y}, 16")
        e(f"s_lshl_b32 s{S_L}, s{S_L}, 3")
        e(f"s_add_u32 s{S_L}, s{S_L}, s{S_XI}")
        e(f"s_cmp_lt_u32 s{S_Y}, 16")
        e(f"s_cselect_b32 s{S_KH}, s{S_B}, s{S_L}")
        e(f"s_and_b32 s{S_KH}, s{S_KH}, 1")
        e(f"s_lshr_b32 s{S_L}, s{S_L}, 1")
        if qx:
            e(f"s_and_b32 s{T + 16}, s{S_Y}, 1")
            e(f"s_cmp_ge_u32 s{S_Y}, 30")
            e(f"s_cselect_b32 s{S_KH}, s{T + 16}, s{S_KH}")
            e(f"s_cselect_b32 s{T + 16}, 3, 0")
            e(f"s_and_b32 s{S_HALF}, s{S_Y}, 0x17")
            e(f"s_cmp_eq_u32 s{S_HALF}, 3")
            e(f"s_cselect_b32 s{S_HALF}, 1, s{T + 16}")

    SW = T
    ROT = T + 1
    VK = 4
    VV = 8
    e(f"s_sub_u32 s{SW}, s{S_WAVE}, 4")
    e(f"s_lshl_b32 s{T + 2}, s{S_B}, 25")
    e(f"s_lshl_b32 s{T + 3}, s{S_XI}, 22")
    e(f"s_add_u32 s{T + 2}, s{T + 2}, s{T + 3}")
    e(f"s_lshl_b32 s{T + 3}, s{S_SP}, 17")
    e(f"s_add_u32 s{T + 2}, s{T + 2}, s{T + 3}")
    e(f"s_add_u32 s{T + 2}, s{T + 2}, 0x300000")
    e(f"s_add_u32 s{ROT}, s{S_XI}, s{S_Y}")
    e(f"s_add_u32 s{ROT}, s{ROT}, s{SW}")
    e(f"s_and_b32 s{ROT}, s{ROT}, 31")
    e(f"s_lshl_b32 s{ROT}, s{ROT}, 12")
    e("v_lshlrev_b32 v3, 2, v1")
    e("v_xor_b32 v3, v2, v3")
    e("v_lshlrev_b32 v3, 4, v3")
    e(f"v_lshl_add_u32 v{VK}, v1, 8, v3")
    e(f"v_xor_b32 v{VK + 1}, 16, v{VK}")
    e(f"v_xor_b32 v{VK + 2}, 32, v{VK}")
    e(f"v_xor_b32 v{VK + 3}, 48, v{VK}")
    e(f"s_lshl_b32 s{T + 4}, s{SW}, 15")
    e(f"s_mov_b32 m0, s{T + 4}")
    e(f"s_mov_b32 s{R_A + 2}, 0x20000")
    e(f"s_mov_b32 s{R_A + 3}, 0x20000")
    estamp(1)
    e("s_waitcnt lgkmcnt(0)")
    estamp(2)
    e(f"s_add_u32 s{R_A}, s{S_K}, s{T + 2}")
    e(f"s_addc_u32 s{R_A + 1}, s{S_K + 1}, 0")

    def ktile(th, off=None):
        so = f"s{ROT}" if off is None else f"s{off}"
        for q in range(4):
            e(f"buffer_load_dwordx4 v{VK + q}, s[{R_A}:{R_A + 3}], {so} offen offset:{q * 1024} {kpol} lds")
            if th is not None:
                e(f"s_waitcnt vmcnt({th})")

    def knext():
        e(f"s_add_u32 s{T + 4}, s{T + 4}, 4096")
        e(f"s_mov_b32 m0, s{T + 4}")
        e(f"s_add_u32 s{T + 5}, s{T + 5}, 16384")
        e(f"s_and_b32 s{T + 5}, s{T + 5}, 0x1ffff")

    ktile(None)
    if k2first:
        e(f"s_mov_b32 s{T + 5}, s{ROT}")
        knext()
        ktile(None, T + 5)
    karg2()
    roles()
    e(f"s_sub_u32 s{T + 14}, s{S_Y}, 23")
    e(f"s_lshl_b32 s{T + 8}, s{S_KH}, 2")
    e(f"s_add_u32 s{T + 8}, s{T + 8}, s{SW}")
    e(f"s_lshl_b32 s{T + 8}, s{T + 8}, 6")
    e(f"s_mul_i32 s{T + 9}, s{SW}, 48")
    e(f"s_lshl_b32 s{T + 10}, s{T + 14}, 8")
    e(f"s_add_u32 s{T + 9}, s{T + 9}, s{T + 10}")
    e(f"s_cmp_lt_u32 s{T + 14}, 7")
    e(f"s_cselect_b32 s{T + 8}, s{T + 9}, s{T + 8}")
    e(f"s_cselect_b32 s{T + 15}, 1, 0")
    e(f"s_lshl_b32 s{T + 12}, s{SW}, 13")
    e(f"s_cmp_eq_u32 s{T + 15}, 1")
    e(f"s_mul_i32 s{T + 11}, s{SW}, 6144")
    e(f"s_cselect_b32 s{T + 11}, s{T + 11}, s{T + 12}")
    e(f"s_add_u32 s{T + 11}, s{T + 11}, {L_T0}")
    e(f"s_lshl_b32 s{T + 9}, s{S_XI}, 10")
    if "cgrot" in xp:
        e(f"s_add_u32 s{T + 10}, s{S_SP}, 2")
        e(f"s_and_b32 s{T + 10}, s{T + 10}, 7")
        e(f"s_lshl_b32 s{T + 10}, s{T + 10}, 7")
    else:
        e(f"s_lshl_b32 s{T + 10}, s{S_SP}, 7")
    e(f"s_add_u32 s{T + 9}, s{T + 9}, s{T + 10}")
    e(f"s_mov_b32 s{T + 10}, 8192")
    e(f"s_mov_b32 s{T + 12}, {512 * 8192}")
    e(f"s_mov_b32 s{R_C}, s{S_WQ}")
    e(f"s_mov_b32 s{R_C + 1}, s{S_WQ + 1}")
    if qx:
        e(f"s_cmp_eq_u32 s{S_HALF}, 0")
        e("s_cbranch_scc1 L_nohalf")
        e(f"s_lshl_b32 s{T + 8}, s{S_KH}, 1")
        e(f"s_lshr_b32 s{T + 9}, s{S_HALF}, 1")
        e(f"s_add_u32 s{T + 8}, s{T + 8}, s{T + 9}")
        e(f"s_lshl_b32 s{T + 8}, s{T + 8}, 2")
        e(f"s_add_u32 s{T + 8}, s{T + 8}, s{SW}")
        e(f"s_lshl_b32 s{T + 8}, s{T + 8}, 5")
        e(f"s_lshl_b32 s{T + 11}, s{SW}, 12")
        e(f"s_add_u32 s{T + 11}, s{T + 11}, {L_T0}")
        e(f"s_lshl_b32 s{T + 9}, s{S_XI}, 10")
        e(f"s_add_u32 s{T + 9}, s{T + 9}, 384")
        e("s_branch L_et")
        e("L_nohalf:")
    e(f"s_cmp_lt_u32 s{S_Y}, 16")
    e("s_cbranch_scc1 L_et")
    e(f"s_lshl_b32 s{T + 9}, s{S_L}, 7")
    e(f"s_mov_b32 s{T + 10}, 3584")
    e(f"s_mov_b32 s{T + 12}, {512 * 3584}")
    e(f"s_mov_b32 s{R_C}, s{S_W1}")
    e(f"s_mov_b32 s{R_C + 1}, s{S_W1 + 1}")
    e(f"s_cmp_lt_u32 s{S_Y}, 23")
    e("s_cbranch_scc1 L_et")
    e(f"s_lshl_b32 s{T + 9}, s{S_XI}, 7")
    e(f"s_mov_b32 s{T + 10}, 1024")
    e(f"s_mov_b32 s{R_C}, s{S_W2}")
    e(f"s_mov_b32 s{R_C + 1}, s{S_W2 + 1}")
    e(f"s_cmp_eq_u32 s{T + 15}, 1")
    e(f"s_cselect_b32 s{T + 12}, {1792 * 1024}, 0")
    e("L_et:")
    e(f"s_mul_i32 s{T + 8}, s{T + 8}, s{T + 10}")
    e(f"s_add_u32 s{T + 8}, s{T + 8}, s{T + 9}")
    e(f"s_lshl_b32 s{T + 9}, s{T + 10}, 3")
    e(f"s_mov_b32 s{R_C + 2}, s{T + 12}")
    e(f"s_mov_b32 s{R_C + 3}, 0x20000")
    if rs8:
        e(f"s_cmp_lt_u32 s{S_Y}, 23")
        e(f"s_cselect_b32 s{T + 13}, s{T + 9}, s{T + 10}")
        e(f"s_cselect_b32 s{T + 9}, s{T + 10}, s{T + 9}")
    else:
        e(f"s_mov_b32 s{T + 13}, s{T + 10}")
    e("v_lshrrev_b32 v9, 3, v0")
    e(f"v_mul_lo_u32 v9, v9, s{T + 13}")
    e("v_and_b32 v10, 7, v0")
    e("v_lshl_add_u32 v11, v10, 4, v9")
    if "wlin" in xp or "wlinE" in xp:
        e("v_lshlrev_b32 v11, 4, v0")
        e(f"s_lshl_b32 s{T + 8}, s2, 15")
        e(f"s_lshl_b32 s{T + 9}, s{SW}, 13")
        e(f"s_add_u32 s{T + 8}, s{T + 8}, s{T + 9}")
        e(f"s_mov_b32 s{T + 9}, 1024")
        e(f"s_cmp_eq_u32 s{R_C + 2}, 0")
        e(f"s_cselect_b32 s{R_C + 2}, 0, 0x1000000")
        e(f"s_mov_b32 s{R_C}, s{S_K}")
        e(f"s_mov_b32 s{R_C + 1}, s{S_K + 1}")
    def wload():
        e(f"s_mov_b32 m0, s{T + 11}")
        e(f"s_add_u32 s{T + 11}, s{T + 11}, 1024")
        e(f"buffer_load_dwordx4 v11, s[{R_C}:{R_C + 3}], s{T + 8} offen {wpol} lds")
        e(f"s_add_u32 s{T + 8}, s{T + 8}, s{T + 9}")

    if not wint:
        for ii in range(8):
            if ii == 4 and qx:
                e(f"s_cmp_eq_u32 s{S_HALF}, 0")
                e("s_cbranch_scc1 L_nohalf2")
                e(f"s_lshl_b32 s{T + 11}, s{SW}, 12")
                e(f"s_add_u32 s{T + 11}, s{T + 11}, {L_T0 + 16384}")
                e(f"s_mov_b32 s{R_C + 2}, 0")
                e("L_nohalf2:")
            if ii == 6:
                e(f"s_cmp_eq_u32 s{T + 15}, 1")
                e("s_cbranch_scc1 L_et2")
            wload()
        e("L_et2:")
        srd_off(R_B, S_V, T + 2, 0x20000)
        e(f"v_lshlrev_b32 v{VV}, 4, v0")
        if not k2first:
            e(f"s_mov_b32 s{T + 5}, s{ROT}")
        knext()
        ktile(thr + 2, T + 5)
        knext()
        ktile(thr + 2, T + 5)
        knext()
        e("s_waitcnt vmcnt(8)")
    else:
        srd_off(R_B, S_V, T + 2, 0x20000)
        e(f"v_lshlrev_b32 v{VV}, 4, v0")
        e(f"s_mov_b32 s{T + 5}, s{ROT}")
        for kt in range(2):
            knext()
            for q in range(4):
                if kt == 1 and q >= 2:
                    lb = e.label("w2s")
                    e(f"s_cmp_eq_u32 s{T + 15}, 1")
                    e(f"s_cbranch_scc1 {lb}")
                    wload()
                    e(f"{lb}:")
                else:
                    wload()
                e(f"s_mov_b32 m0, s{T + 4}")
                e("s_nop 0")
                e(f"buffer_load_dwordx4 v{VK + q}, s[{R_A}:{R_A + 3}], s{T + 5} offen offset:{q * 1024} {kpol} lds")
                e(f"s_waitcnt vmcnt({thr + 3})")
        knext()
        ktile(thr + 2, T + 5)
        knext()
        e("s_waitcnt vmcnt(5)")
    e("s_barrier")
    estamp(3)
    e(f"s_mov_b32 s{T + 6}, {nshallow - (3 if (wint or k2first) else 2)}")
    e("L_kloop:")
    ktile(thr, T + 5)
    knext()
    e(f"s_sub_u32 s{T + 6}, s{T + 6}, 1")
    e(f"s_cmp_lg_u32 s{T + 6}, 0")
    e("s_cbranch_scc1 L_kloop")
    estamp(4)
    if b0x:
        e("s_barrier")
    e(f"s_mov_b32 s{T + 6}, {7 - nshallow}")
    e("L_kloop2:")
    ktile(thr2, T + 5)
    knext()
    e(f"s_sub_u32 s{T + 6}, s{T + 6}, 1")
    e(f"s_cmp_lg_u32 s{T + 6}, 0")
    e("s_cbranch_scc1 L_kloop2")
    stamp(1)
    e("s_waitcnt lgkmcnt(0)")
    epoch_load()

    VB = 128

    def vtile_off(t):
        e(f"s_add_u32 s{T + 7}, s{ROT}, {t * 16384}")
        e(f"s_and_b32 s{T + 7}, s{T + 7}, 0x1ffff")

    def vload(u, k0, k1, throttle=None):
        for k in range(k0, k1):
            Tt, i = k >> 2, k & 3
            if i == 0 or k == k0:
                vtile_off(2 * u + Tt)
            r = VB + u * 32 + k * 4
            e(f"buffer_load_dwordx4 {vr(r, 4)}, v{VV}, s[{R_B}:{R_B + 3}], s{T + 7} offen offset:{i * 1024} {kpol}")
            if throttle is not None:
                e(f"s_waitcnt vmcnt({throttle})")

    vload(0, 0, 8, thr2)
    if late:
        vload(1, 0, 8, thr2)
    e(f"s_mov_b32 s{S_SC}, 0x3db504f3")
    e(f"s_mov_b32 s{S_L2E}, 0x3fb8aa3b")
    e(f"s_mov_b32 s{S_PLO}, 0x05040100")
    e(f"s_mov_b32 s{S_PHI}, 0x07060302")
    VKA = 9
    e("v_and_b32 v3, 3, v2")
    e("v_lshlrev_b32 v3, 2, v3")
    e("v_lshrrev_b32 v13, 2, v2")
    e("v_add_u32 v3, v3, v13")
    e("v_lshlrev_b32 v3, 8, v3")
    e("v_xor_b32 v13, v1, v2")
    e("v_lshl_add_u32 v3, v13, 4, v3")
    e(f"s_lshl_b32 s{T + 4}, s{SW}, 15")
    e(f"v_add_u32 v{VKA}, s{T + 4}, v3")
    e(f"v_xor_b32 v{VKA + 1}, 64, v{VKA}")
    e(f"v_xor_b32 v{VKA + 2}, 0x80, v{VKA}")
    e(f"v_xor_b32 v{VKA + 3}, 0xc0, v{VKA}")
    e("v_lshrrev_b32 v13, 2, v2")
    e("v_lshlrev_b32 v13, 8, v13")
    e("v_lshl_add_u32 v13, v1, 4, v13")
    e(f"v_add_u32 v13, {L_QB}, v13")
    e(f"s_lshl_b32 s{T + 4}, s{SW}, 8")
    e(f"s_add_u32 s{T + 4}, s{T + 4}, {L_MAX}")
    e("v_lshlrev_b32 v14, 2, v0")
    e(f"v_add_u32 v15, s{T + 4}, v14")
    e(f"v_add_u32 v14, {L_MAX}, v14")
    e(f"s_waitcnt vmcnt({16 if late else 8}) lgkmcnt(0)")
    epoch_tag()
    stamp(2)
    e("s_barrier")
    if prio:
        e("s_setprio 2")
    stamp(3)
    QF = 16
    KF = 32
    SS = 64
    for s in range(4):
        e(f"ds_read_b128 {vr(QF + 4 * s, 4)}, v13 offset:{64 * s}")

    def kread(t):
        for s in range(4):
            e(f"ds_read_b128 {vr(KF + 16 * (t & 1) + 4 * s, 4)}, v{VKA + s} offset:{t * 4096}")

    kread(0)
    for t in range(8):
        vload(1 + late, t, t + 1, thr3)
        if t < 7:
            kread(t + 1)
            e("s_waitcnt lgkmcnt(4)")
        else:
            e("s_waitcnt lgkmcnt(0)")
        for s in range(4):
            c = "0" if s == 0 else vr(SS + 4 * t, 4)
            e(f"v_mfma_f32_16x16x32_bf16 {vr(SS + 4 * t, 4)}, {vr(KF + 16 * (t & 1) + 4 * s, 4)}, {vr(QF + 4 * s, 4)}, {c}")
    stamp(4)
    TMP = 32
    e("s_nop 7")
    for p in range(16):
        a = SS + 2 * p
        t0 = TMP + (p & 1)
        if p % 4 == 1:
            vload(2 + late, p // 4, p // 4 + 1, thr3)
        e(f"v_cvt_pk_bf16_f32 v{t0}, v{a}, v{a + 1}")
        e(f"v_lshlrev_b32 v{a}, 16, v{t0}")
        e(f"v_and_b32 v{a + 1}, s{S_M16}, v{t0}")
        e(f"v_mul_f32 v{a}, s{S_SC}, v{a}")
        e(f"v_mul_f32 v{a + 1}, s{S_SC}, v{a + 1}")
        e(f"v_cvt_pk_bf16_f32 v{t0}, v{a}, v{a + 1}")
        e(f"v_lshlrev_b32 v{a}, 16, v{t0}")
        e(f"v_and_b32 v{a + 1}, s{S_M16}, v{t0}")
    MX = 34
    e(f"v_max3_f32 v{MX}, v{SS}, v{SS + 1}, v{SS + 2}")
    for k in range(3, 31, 2):
        e(f"v_max3_f32 v{MX}, v{MX}, v{SS + k}, v{SS + k + 1}")
    e(f"v_max_f32 v{MX}, v{MX}, v{SS + 31}")
    xrow_reduce("v_max_f32", MX, 35)
    e(f"ds_write_b32 v15, v{MX}")
    e("s_waitcnt lgkmcnt(0)")
    stamp(5)
    e("s_barrier")
    e(f"ds_read2st64_b32 v[36:37], v14 offset0:0 offset1:1")
    e(f"ds_read2st64_b32 v[38:39], v14 offset0:2 offset1:3")
    e("s_waitcnt lgkmcnt(0)")
    e(f"v_max3_f32 v{MX}, v36, v37, v38")
    e(f"v_max_f32 v{MX}, v{MX}, v39")
    MC = 35
    e(f"v_mul_f32 v{MC}, s{S_L2E}, v{MX}")
    PP = 40
    e(f"s_sub_u32 s{T + 10}, s{S_Y}, 23")
    e(f"s_lshl_b32 s{T + 8}, s{T + 10}, 18")
    e(f"s_lshl_b32 s{T + 9}, s{S_XI}, 7")
    e(f"s_add_u32 s{T + 8}, s{T + 8}, s{T + 9}")
    e(f"s_lshl_b32 s{T + 9}, s{SW}, 14")
    e(f"s_add_u32 s{T + 8}, s{T + 8}, s{T + 9}")
    e(f"s_add_u32 s{T + 8}, s{T + 8}, {192 * 1024}")
    e(f"s_cmp_lt_u32 s{T + 10}, 7")
    e(f"s_cselect_b32 s{T + 10}, {1792 * 1024}, 0")
    srd(R_D, S_W2, S_W2 + 1, f"s{T + 10}")
    e(f"s_lshl_b32 s{T + 9}, s{SW}, 11")
    e(f"s_add_u32 s{T + 9}, s{T + 9}, {L_W2B}")
    e("v_lshrrev_b32 v3, 3, v0")
    e("v_lshlrev_b32 v3, 10, v3")
    e("v_and_b32 v4, 7, v0")
    e("v_lshl_add_u32 v3, v4, 4, v3")
    if ("wlin" in xp or "wlinO" in xp):
        e("v_lshlrev_b32 v3, 4, v0")
        e(f"s_lshl_b32 s{T + 8}, s2, 14")
        e(f"s_and_b32 s{T + 8}, s{T + 8}, 0xfffff")

    def w2load():
        e(f"s_mov_b32 m0, s{T + 9}")
        e(f"s_add_u32 s{T + 9}, s{T + 9}, 1024")
        e(f"buffer_load_dwordx4 v3, s[{R_D}:{R_D + 3}], s{T + 8} offen {wpol} lds")
        e(f"s_add_u32 s{T + 8}, s{T + 8}, {1024 if ('wlin' in xp or 'wlinO' in xp) else 8192}")

    for p in range(16):
        a = SS + 2 * p
        e(f"v_fma_f32 v{a}, v{a}, s{S_L2E}, -v{MC}")
        e(f"v_fma_f32 v{a + 1}, v{a + 1}, s{S_L2E}, -v{MC}")
        e(f"v_exp_f32 v{a}, v{a}")
        e(f"v_exp_f32 v{a + 1}, v{a + 1}")
        if p > 0:
            e(f"v_cvt_pk_bf16_f32 v{PP + p - 1}, v{a - 2}, v{a - 1}")
        if p in (2, 5):
            w2load()
        if p >= 8 and p % 2 == 1:
            vload(2 + late, 4 + (p - 8) // 2, 5 + (p - 8) // 2, thr3)
    ACC = 64
    ACL = 96
    ONE = 100
    PT = 16
    for k in range(4):
        e(f"v_mov_b32 v{ONE + k}, 0x3f803f80")
    e(f"v_cvt_pk_bf16_f32 v{PP + 15}, v{SS + 30}, v{SS + 31}")
    e(f"s_lshl_b32 s{T + 8}, s{SW}, 8")
    e(f"s_add_u32 s{T + 8}, s{T + 8}, {L_LSUM}")
    e("v_lshlrev_b32 v6, 2, v0")
    e(f"v_add_u32 v5, s{T + 8}, v6")
    for u in range(4):
        c = "0" if u == 0 else vr(ACL, 4)
        e(f"v_mfma_f32_16x16x32_bf16 {vr(ACL, 4)}, {vr(PP + 4 * u, 4)}, {vr(ONE, 4)}, {c}")
    e("s_nop 7")
    e(f"ds_write_b32 v5, v{ACL}")
    e("s_waitcnt lgkmcnt(0)")
    stamp(6)
    e("s_barrier")
    e(f"s_lshl_b32 s{T + 12}, s{S_B}, 10")
    e(f"s_lshl_b32 s{T + 13}, s{S_XI}, 7")
    e(f"s_add_u32 s{T + 12}, s{T + 12}, s{T + 13}")
    e(f"s_lshl_b32 s{T + 13}, s{S_SP}, 4")
    e(f"s_add_u32 s{T + 12}, s{T + 12}, s{T + 13}")
    e(f"s_load_dwordx4 s[{S_RES}:{S_RES + 3}], s[{S_X}:{S_X + 1}], s{T + 12}")

    def pv(u, loads=None):
        first = u == 0
        A = vr(PP + 4 * u, 4)

        def perms(w):
            base = PT + 8 * (w & 1)
            for d in range(4):
                a = VB + u * 32 + (2 * d) * 4 + w
                b = VB + u * 32 + (2 * d + 1) * 4 + w
                e(f"v_perm_b32 v{base + d}, v{b}, v{a}, s{S_PLO}")
            for d in range(4):
                a = VB + u * 32 + (2 * d) * 4 + w
                b = VB + u * 32 + (2 * d + 1) * 4 + w
                e(f"v_perm_b32 v{base + 4 + d}, v{b}, v{a}, s{S_PHI}")

        def mf(w):
            base = PT + 8 * (w & 1)
            for hi in range(2):
                j = 2 * w + hi
                c = "0" if first else vr(ACC + 4 * j, 4)
                e(f"v_mfma_f32_16x16x32_bf16 {vr(ACC + 4 * j, 4)}, {A}, {vr(base + 4 * hi, 4)}, {c}")

        if loads:
            loads(0)
        perms(0)
        for w in range(1, 4):
            if loads:
                loads(w)
            perms(w)
            mf(w - 1)
        e("s_nop 1")
        mf(3)

    if not late:
        e("s_waitcnt vmcnt(18)")
        pv(0, lambda w: vload(3, w, w + 1))
        e("s_waitcnt vmcnt(14)")
        pv(1, lambda w: vload(3, 4 + w, 5 + w))
    srd(R_WS, S_WS, S_WS + 1, WS_SIZE)
    e(f"s_lshl_b32 s{T + 8}, s{S_XI}, 2")
    e(f"s_add_u32 s{T + 8}, s{T + 8}, s{S_B}")
    e(f"s_lshl_b32 s{T + 8}, s{T + 8}, 17")
    e(f"s_lshl_b32 s{T + 9}, s{S_SP}, 7")
    e(f"s_add_u32 s{T + 8}, s{T + 8}, s{T + 9}")
    e(f"s_lshl_b32 s{T + 9}, s{SW}, 15")
    e(f"s_add_u32 s{T + 8}, s{T + 8}, s{T + 9}")
    srd(R_C, S_WO, S_WO + 1, 4096 * 1024)
    e(f"s_lshl_b32 s{T + 9}, s{SW}, 12")
    e(f"s_add_u32 s{T + 9}, s{T + 9}, {L_WO}")
    if ("wlin" in xp or "wlinO" in xp):
        e(f"s_lshl_b32 s{T + 8}, s2, 14")
        e(f"s_lshl_b32 s{T + 10}, s{SW}, 12")
        e(f"s_add_u32 s{T + 8}, s{T + 8}, s{T + 10}")

    def woload(w=None):
        e(f"s_mov_b32 m0, s{T + 9}")
        e(f"s_add_u32 s{T + 9}, s{T + 9}, 1024")
        e(f"buffer_load_dwordx4 v3, s[{R_C}:{R_C + 3}], s{T + 8} offen {wpol} lds")
        e(f"s_add_u32 s{T + 8}, s{T + 8}, {1024 if ('wlin' in xp or 'wlinO' in xp) else 8192}")

    if not late:
        for ii in range(4):
            woload()
        e("s_waitcnt vmcnt(12)")
        e("s_barrier")
        pv(2)
    else:
        e("s_waitcnt vmcnt(26)")
        pv(0, woload)
        e("s_waitcnt vmcnt(22)")
        pv(1)
        e("s_waitcnt vmcnt(8)")
        e("s_barrier")
        pv(2)
    e(f"s_lshl_b32 s{T + 8}, s{SW}, 11")
    e("v_lshlrev_b32 v3, 5, v0")
    e(f"v_add_u32 v4, s{T + 8}, v3")
    tail_addrs()
    e("s_waitcnt vmcnt(4)")
    stamp(7)
    pv(3)
    e("s_nop 1")
    for j in range(8):
        e(f"v_mov_b32 v{16 + j}, v{ACC + 4 * j}")
    e("ds_write_b128 v4, v[16:19]")
    e("ds_write_b128 v4, v[20:23] offset:16")
    e("s_waitcnt lgkmcnt(0)")
    stamp(8)
    tstamp(1)
    e("s_barrier")
    tstamp(2)
    e("s_branch L_wts2")

    e("L_H:")
    e("s_setprio 3")
    roles()
    e("v_mov_b32 v3, 0")
    estamp(1)
    e(f"s_cmp_lg_u32 s{S_WAVE}, 0")
    e("s_cbranch_scc1 L_H23")
    e(f"s_sub_u32 s{T}, s{S_Y}, 23")
    e(f"s_cmp_lt_u32 s{T}, {7 if qx else 9}")
    e("s_cbranch_scc1 L_H23")
    P_QA, P_OUT = T + 5, T + 8
    e(f"s_lshl_b32 s{P_QA}, s{S_KH}, 1")
    if qx:
        e(f"s_lshr_b32 s{T}, s{S_HALF}, 1")
        e(f"s_add_u32 s{P_QA}, s{P_QA}, s{T}")
    e(f"s_lshl_b32 s{P_OUT}, s{S_XI}, 14")
    if "cgrot" in xp:
        e(f"s_add_u32 s{T}, s{S_SP}, 2")
        e(f"s_and_b32 s{T}, s{T}, 7")
        e(f"s_lshl_b32 s{T + 1}, s{S_KH}, 3")
        e(f"s_add_u32 s{T}, s{T}, s{T + 1}")
        e(f"s_lshl_b32 s{T}, s{T}, 10")
    else:
        e(f"s_lshl_b32 s{T}, s{S_Y}, 10")
    e(f"s_add_u32 s{P_OUT}, s{P_OUT}, s{T}")
    e(f"s_add_u32 s{P_OUT}, s{P_OUT}, {WS_Q}")
    e(f"s_lshl_b32 s{T}, s{S_L}, 1")
    e(f"s_add_u32 s{T}, s{T}, s{S_KH}")
    e(f"s_lshl_b32 s{T}, s{T}, 10")
    e(f"s_add_u32 s{T}, s{T}, {WS_H}")
    e(f"s_cmp_lt_u32 s{S_Y}, 16")
    e(f"s_cselect_b32 s{P_OUT}, s{P_OUT}, s{T}")
    if qx:
        e(f"s_lshl_b32 s{T}, s{S_XI}, 1")
        e(f"s_add_u32 s{T}, s{T}, s{S_KH}")
        e(f"s_lshl_b32 s{T}, s{T}, 10")
        e(f"s_add_u32 s{T}, s{T}, {WS_QX}")
        e(f"s_cmp_eq_u32 s{S_HALF}, 3")
        e(f"s_cselect_b32 s{P_OUT}, s{T}, s{P_OUT}")
    e("v_and_b32 v3, 3, v2")
    e("v_lshrrev_b32 v10, 2, v2")
    e("v_lshlrev_b32 v4, 10, v3")
    e("v_lshl_add_u32 v4, v10, 8, v4")
    e("v_lshl_add_u32 v4, v1, 4, v4")
    e("s_waitcnt lgkmcnt(0)")
    estamp(2)
    srd(R_B, S_X, S_X + 1, 4096)
    XR = 16
    for tau in range(4):
        e(f"buffer_load_dwordx4 {vr(XR + 4 * tau, 4)}, v4, s[{R_B}:{R_B + 3}], 0 offen offset:{64 * tau}")
    karg2()
    estamp(4)
    if rs8:
        e("v_lshlrev_b32 v14, 10, v10")
        e("v_lshl_add_u32 v14, v1, 7, v14")
    else:
        e("v_lshlrev_b32 v14, 10, v1")
        e("v_lshl_add_u32 v14, v10, 7, v14")
    e("v_lshl_add_u32 v14, v3, 3, v14")
    e(f"v_add_u32 v14, {L_T0}, v14")
    e(f"v_subrev_u32 v11, s{P_QA}, v10")
    e("v_and_b32 v11, 3, v11")
    e("v_lshlrev_b32 v5, 8, v3")
    e("v_lshl_add_u32 v5, v11, 6, v5")
    e("v_lshl_add_u32 v5, v1, 4, v5")
    e("v_cmp_ne_u32 s[64:65], 1, v11")
    e("v_cmp_ne_u32 s[66:67], 2, v11")
    e("v_cmp_ne_u32 s[68:69], 3, v11")
    e("s_waitcnt lgkmcnt(0)")
    epoch_load()
    srd(R_WS, S_WS, S_WS + 1, WS_SIZE)
    e("s_waitcnt vmcnt(0)")
    estamp(6)
    stamp(2)
    XF = 32
    for k in range(16):
        e(f"v_lshlrev_b32 v{XF + 2 * k}, 16, v{XR + k}")
        e(f"v_and_b32 v{XF + 2 * k + 1}, s{S_M16}, v{XR + k}")

    def lane_sum(r, t):
        e("s_nop 1")
        e(f"v_add_f32_dpp v{r}, v{r}, v{r} row_ror:4 row_mask:0xf bank_mask:0xf")
        e("s_nop 1")
        e(f"v_add_f32_dpp v{r}, v{r}, v{r} row_ror:8 row_mask:0xf bank_mask:0xf")
        xrow_reduce("v_add_f32", r, t)

    e(f"v_add_f32 v7, v{XF}, v{XF + 1}")
    e(f"v_add_f32 v8, v{XF + 2}, v{XF + 3}")
    for k in range(4, 32, 2):
        e(f"v_add_f32 v7, v7, v{XF + k}")
        e(f"v_add_f32 v8, v8, v{XF + k + 1}")
    e("v_add_f32 v7, v7, v8")
    lane_sum(7, 9)
    e("v_mul_f32 v7, 0x3b000000, v7")
    e(f"v_sub_f32 v12, v{XF}, v7")
    e(f"v_sub_f32 v6, v{XF + 1}, v7")
    e("v_mul_f32 v8, v12, v12")
    e("v_mul_f32 v13, v6, v6")
    for k in range(2, 32, 2):
        e(f"v_sub_f32 v12, v{XF + k}, v7")
        e(f"v_sub_f32 v6, v{XF + k + 1}, v7")
        e("v_fmac_f32 v8, v12, v12")
        e("v_fmac_f32 v13, v6, v6")
    e("v_add_f32 v8, v8, v13")
    lane_sum(8, 9)
    e("v_mul_f32 v8, 0x3b000000, v8")
    e("v_cvt_pk_bf16_f32 v9, v7, v8")
    e("v_lshlrev_b32 v7, 16, v9")
    e(f"v_and_b32 v8, s{S_M16}, v9")
    e("v_add_f32 v8, 0x3727c5ac, v8")
    e("v_cvt_pk_bf16_f32 v9, v8, v8")
    e(f"v_and_b32 v8, s{S_M16}, v9")
    e("v_sqrt_f32 v8, v8")
    e("s_nop 0")
    e("v_cvt_pk_bf16_f32 v9, v8, v8")
    e(f"v_and_b32 v8, s{S_M16}, v9")
    e("v_rcp_f32 v8, v8")
    BF = 16
    for k in range(16):
        a = XF + 2 * k
        e(f"v_sub_f32 v{a}, v{a}, v7")
        e(f"v_sub_f32 v{a + 1}, v{a + 1}, v7")
        e(f"v_cvt_pk_bf16_f32 v9, v{a}, v{a + 1}")
        e(f"v_lshlrev_b32 v{a}, 16, v9")
        e(f"v_and_b32 v{a + 1}, s{S_M16}, v9")
        e(f"v_mul_f32 v{a}, v{a}, v8")
        e(f"v_mul_f32 v{a + 1}, v{a + 1}, v8")
        e(f"v_cvt_pk_bf16_f32 v{BF + k}, v{a}, v{a + 1}")
    e("s_waitcnt lgkmcnt(0)")
    epoch_tag()
    estamp(7)
    stamp(3)
    e("s_barrier")
    estamp(8)
    stamp(4)
    AF = 64
    DD = 96

    def wread(bi):
        ct, hf = bi >> 1, bi & 1
        for t in range(4):
            r = AF + 16 * (bi & 1) + 4 * t
            tt = 4 * hf + t
            if rs8:
                o0 = (tt >> 1) * 8192 + (tt & 1) * 512 + ct * 32
                o1 = o0 + 4096
            else:
                o0 = tt * 4096 + ct * 32
                o1 = o0 + 512
            e(f"ds_read_b64_tr_b16 {vr(r, 2)}, v14 offset:{o0}")
            e(f"ds_read_b64_tr_b16 {vr(r + 2, 2)}, v14 offset:{o1}")

    wread(0)
    for bi in range(8):
        if bi < 7:
            wread(bi + 1)
            e("s_waitcnt lgkmcnt(8)")
        else:
            e("s_waitcnt lgkmcnt(0)")
        d = DD + 16 * (bi & 1) + 4 * (bi >> 1)
        for t in range(4):
            c = "0" if t == 0 else vr(d, 4)
            e(f"v_mfma_f32_16x16x32_bf16 {vr(d, 4)}, {vr(AF + 16 * (bi & 1) + 4 * t, 4)}, {vr(BF + 4 * t, 4)}, {c}")
    e(f"s_mov_b32 s{T}, 0x07060503")
    e(f"s_mov_b32 s{T + 1}, 0x07060502")
    e(f"s_mov_b32 s{T + 2}, 0x07060501")
    e("s_nop 4")
    for k in range(16):
        e(f"v_add_f32_dpp v{DD + k}, v{DD + 16 + k}, v{DD + k} row_ror:12 row_mask:0xf bank_mask:0xf")
    for ct in range(1, 4):
        e(f"s_mov_b64 vcc, s[{62 + 2 * ct}:{63 + 2 * ct}]")
        for i in range(4):
            e(f"v_cndmask_b32_dpp v{DD + i}, v{DD + 4 * ct + i}, v{DD + i}, vcc row_ror:{4 * ct} row_mask:0xf bank_mask:0xf")
    for i in range(4):
        e(f"v_add_u32 v{DD + i}, 0x80, v{DD + i}")
    for i in range(3):
        e(f"v_perm_b32 v{112 + i}, v{DD + i}, v{DD + 3}, s{T + i}")
    e("v_xor_b32 v115, v112, v113")
    e("v_xor_b32 v115, v115, v114")
    e(f"v_xor_b32 v115, s{S_TAG}, v115")
    if "nohand" not in xp:
        e(f"buffer_store_dwordx4 v[112:115], v5, {WSR}, s{P_OUT} offen sc1")
    stamp(5)
    if not b0x:
        e("s_waitcnt vmcnt(0)")
    e("L_qg:")
    if b0x:
        e("s_barrier")
    stamp(6)
    if "nohand" in xp or "pubonly" in xp:
        e("s_branch L_Hb1")
    e(f"s_lshl_b32 s{T}, s{S_XI}, 14")
    e(f"s_lshl_b32 s{T + 1}, s{S_B}, 8")
    e(f"s_add_u32 s{T}, s{T}, s{T + 1}")
    e(f"s_add_u32 s{T}, s{T}, {WS_Q}")
    e(f"s_add_u32 s{T + 1}, s{T}, 4096")
    e(f"s_add_u32 s{T + 2}, s{T}, 8192")
    e(f"s_add_u32 s{T + 3}, s{T}, 12288")
    e("v_lshlrev_b32 v5, 10, v1")
    e("v_lshl_add_u32 v5, v2, 4, v5")
    e("v_lshlrev_b32 v6, 3, v0")
    e(f"v_add_u32 v6, {L_QB}, v6")
    e(f"s_mov_b32 s{T + 4}, 0x04000c0c")
    e(f"s_mov_b32 s{T + 5}, 0x0706000c")
    QG = 16

    def unit_checks(regs, t0, t1):
        for r in regs:
            e(f"v_xor_b32 v{r + 3}, v{r + 3}, v{r}")
        for r in regs:
            e(f"v_xor_b32 v{r + 3}, v{r + 3}, v{r + 1}")
        for r in regs:
            e(f"v_xor_b32 v{r + 3}, v{r + 3}, v{r + 2}")
        tagcheck([r + 3 for r in regs], t0, t1)

    def unit_unpack(r):
        e(f"v_perm_b32 v{r + 3}, v{r}, v{r + 1}, s{T + 4}")
        e(f"v_perm_b32 v{r + 3}, v{r + 3}, v{r + 2}, s{T + 5}")
        for i in range(3):
            e(f"v_and_b32 v{r + i}, 0xffffff00, v{r + i}")

    QE = 32
    if qx:
        e(f"s_lshl_b32 s{T + 6}, s{S_XI}, 11")
        e(f"s_lshl_b32 s{T + 7}, s{S_B}, 8")
        e(f"s_add_u32 s{T + 6}, s{T + 6}, s{T + 7}")
        e(f"s_add_u32 s{T + 6}, s{T + 6}, {WS_QX}")
        e("v_lshlrev_b32 v7, 4, v2")
        e("s_mov_b32 s62, 0")
        e("s_mov_b32 s63, 0xffff0000")
    lab = poll_begin("pq")
    for kh in range(2):
        for m in range(2):
            r = QG + 8 * kh + 4 * m
            e(f"buffer_load_dwordx4 {vr(r, 4)}, v5, {WSR}, s{T + 2 * kh + m} offen sc1")
    if qx:
        lx = e.label("qx")
        e("s_mov_b64 s[66:67], exec")
        e("s_and_b64 exec, exec, s[62:63]")
        e(f"s_cbranch_execz {lx}")
        e(f"buffer_load_dwordx4 {vr(QE, 4)}, v7, {WSR}, s{T + 6} offen sc1")
        e(f"buffer_load_dwordx4 {vr(QE + 4, 4)}, v7, {WSR}, s{T + 6} offen offset:1024 sc1")
        e(f"{lx}:")
        e("s_mov_b64 exec, s[66:67]")
    e("s_waitcnt vmcnt(0)")
    if qx:
        for r in (QE, QE + 4):
            e(f"v_xor_b32 v{r + 3}, v{r + 3}, v{r}")
            e(f"v_xor_b32 v{r + 3}, v{r + 3}, v{r + 1}")
            e(f"v_xor_b32 v{r + 3}, v{r + 3}, v{r + 2}")
        e(f"v_cmp_ne_u32 s[66:67], s{S_TAG}, v{QE + 3}")
        e(f"v_cmp_ne_u32 vcc, s{S_TAG}, v{QE + 7}")
        e("s_or_b64 s[66:67], s[66:67], vcc")
        e("s_and_b64 s[66:67], s[66:67], s[62:63]")
    unit_checks([QG + 4 * k for k in range(4)], 8, 9)
    if qx:
        e("s_or_b64 vcc, vcc, s[66:67]")
    if "once" in xp:
        e("s_mov_b64 vcc, 0")
    poll_end(lab, 6)
    for k in range(4):
        unit_unpack(QG + 4 * k)
    if qx:
        unit_unpack(QE)
        unit_unpack(QE + 4)
        e("s_mov_b64 exec, s[62:63]")
        for i in range(4):
            e(f"v_add_f32 v{QG + i}, v{QG + i}, v{QE + i}")
            e(f"v_add_f32 v{QG + 8 + i}, v{QG + 8 + i}, v{QE + 4 + i}")
        e("s_mov_b64 exec, -1")
    for m in range(2):
        r = QG + 4 * m
        for i in range(4):
            e(f"v_add_f32 v{r + i}, v{r + i}, v{r + 8 + i}")
        e(f"v_cvt_pk_bf16_f32 v{r}, v{r}, v{r + 1}")
        e(f"v_cvt_pk_bf16_f32 v{r + 1}, v{r + 2}, v{r + 3}")
        e(f"ds_write_b64 v6, {vr(r, 2)} offset:{512 * m}")
    e("s_waitcnt lgkmcnt(0)")
    stamp(7)
    e("s_branch L_Hb1")

    e("L_H23:")
    e("s_waitcnt lgkmcnt(0)")
    karg2()
    e("s_waitcnt lgkmcnt(0)")
    epoch_load()
    srd(R_WS, S_WS, S_WS + 1, WS_SIZE)
    e("s_waitcnt lgkmcnt(0)")
    epoch_tag()
    if tlb:
        e(f"s_cmp_eq_u32 s{S_WAVE}, 3")
        e("s_cbranch_scc0 L_notlb")
        e(f"s_lshl_b32 s{T}, s{S_B}, 25")
        e(f"s_lshl_b32 s{T + 1}, s{S_XI}, 22")
        e(f"s_add_u32 s{T}, s{T}, s{T + 1}")
        e(f"s_lshl_b32 s{T + 1}, s{S_SP}, 17")
        e(f"s_add_u32 s{T}, s{T}, s{T + 1}")
        e(f"s_add_u32 s{T}, s{T}, 0x300000")
        e("s_mov_b64 exec, 1")
        e("v_mov_b32 v5, 0")
        srd(R_A, S_V, S_V + 1, 4 * 8 * 16384 * 256)
        e(f"buffer_load_dword v6, v5, s[{R_A}:{R_A + 3}], s{T} offen nt")
        e(f"s_lshl_b32 s{T}, s{S_XI}, 2")
        e(f"s_add_u32 s{T}, s{T}, s{S_B}")
        e(f"s_lshl_b32 s{T}, s{T}, 17")
        srd(R_A, S_WO, S_WO + 1, 4096 * 1024)
        e(f"buffer_load_dword v7, v5, s[{R_A}:{R_A + 3}], s{T} offen nt")
        e(f"s_mov_b32 s{T}, {WS_SP}")
        e(f"buffer_load_dword v8, v5, {WSR}, s{T} offen sc1")
        e("s_mov_b64 exec, -1")
        e("L_notlb:")
    e(f"s_cmp_eq_u32 s{S_WAVE}, 2")
    e("s_cbranch_scc0 L_noid")
    e(f"s_lshl_b32 s{T}, s{S_XI}, 8")
    e(f"s_lshl_b32 s{T + 1}, s{S_Y}, 3")
    e(f"s_add_u32 s{T}, s{T}, s{T + 1}")
    e(f"s_add_u32 s{T}, s{T}, {WS_ID}")
    e(f"s_getreg_b32 s{T + 2}, hwreg(HW_REG_XCC_ID, 0, 4)")
    e(f"v_mov_b32 v6, s{T + 2}")
    e(f"v_mov_b32 v7, s{S_TAG}")
    e("v_mov_b32 v5, 0")
    e("s_mov_b64 exec, 1")
    e(f"buffer_store_dwordx2 v[6:7], v5, {WSR}, s{T} offen sc1")
    e("s_mov_b64 exec, -1")
    e("L_noid:")
    e("s_barrier")
    e(f"s_cmp_eq_u32 s{S_WAVE}, 0")
    e("s_cbranch_scc1 L_qg")
    if b0x:
        e("s_barrier")

    e("L_Hb1:")
    e("s_barrier")
    if prio:
        e("s_setprio 0")
    HG = 32

    def hloads():
        for lp in range(4):
            for kh in range(2):
                r = HG + 8 * lp + 4 * kh
                e(f"buffer_load_dwordx4 {vr(r, 4)}, v3, {WSR}, s{T + (lp >> 1)} offen offset:{(lp & 1) * 2048 + 1024 * kh} sc1")

    e(f"s_sub_u32 s{T + 4}, s{S_Y}, 23")
    e(f"s_cmp_lt_u32 s{T + 4}, 7")
    e(f"s_cselect_b32 s{T + 6}, s{S_WAVE}, 0")
    if "nohand" in xp or "noh" in xp or "pubonly" in xp or "once" in xp:
        e(f"s_mov_b32 s{T + 6}, 0")
    e(f"s_cmp_eq_u32 s{T + 6}, 3")
    e("s_cbranch_scc0 L_noh1")
    e(f"s_lshl_b32 s{T}, s{T + 4}, 13")
    e(f"s_add_u32 s{T}, s{T}, {WS_H}")
    e(f"s_add_u32 s{T + 1}, s{T}, 4096")
    e("v_lshlrev_b32 v3, 4, v0")
    hloads()
    e("L_noh1:")
    e(f"s_lshl_b32 s{T + 10}, s{S_XI}, 8")
    e(f"s_add_u32 s{T + 10}, s{T + 10}, {WS_ID}")
    e("v_and_b32 v30, 31, v0")
    e("v_lshlrev_b32 v30, 3, v30")
    e(f"s_cmp_eq_u32 s{S_WAVE}, 0")
    e("s_cbranch_scc0 L_noid2")
    e(f"buffer_load_dwordx2 v[30:31], v30, {WSR}, s{T + 10} offen sc1")
    e("L_noid2:")
    e("s_barrier")
    e("s_barrier")
    stamp(8)
    e(f"s_mov_b32 s{S_SAME}, 0")
    e(f"s_cmp_eq_u32 s{S_WAVE}, 0")
    e("s_cbranch_scc0 L_noid3")
    e(f"s_getreg_b32 s{T + 10}, hwreg(HW_REG_XCC_ID, 0, 4)")
    e("s_waitcnt vmcnt(0)")
    e(f"v_cmp_ne_u32 s[64:65], s{S_TAG}, v31")
    e(f"v_cmp_ne_u32 vcc, s{T + 10}, v30")
    e("s_or_b64 vcc, vcc, s[64:65]")
    e("s_cmp_eq_u64 vcc, 0")
    e(f"s_cselect_b32 s{S_SAME}, 1, 0")
    if "noxcc" in xp:
        e(f"s_mov_b32 s{S_SAME}, 0")
    e(f"v_mov_b32 v30, {L_SCALE + 16}")
    e(f"v_mov_b32 v31, s{S_SAME}")
    e("ds_write_b32 v30, v31")
    e("L_noid3:")
    e(f"s_cmp_eq_u32 s{T + 6}, 3")
    e("s_cbranch_scc0 L_noh2")
    e("v_lshlrev_b32 v6, 9, v1")
    e("v_lshl_add_u32 v6, v2, 3, v6")
    e(f"v_add_u32 v6, {L_HB}, v6")
    e(f"s_mov_b32 s{T + 4}, 0x04000c0c")
    e(f"s_mov_b32 s{T + 5}, 0x0706000c")
    lab = e.label("ph")
    e(f"s_mov_b32 s{T + 17}, {POLL_LIMIT}")
    e(f"{lab}:")
    e("s_waitcnt vmcnt(0)")
    unit_checks([HG + 4 * k for k in range(8)], 8, 9)
    e("s_cmp_eq_u64 vcc, 0")
    e(f"s_cbranch_scc1 {lab}_d")
    e(f"s_sub_u32 s{T + 17}, s{T + 17}, 1")
    e(f"s_cbranch_scc1 {lab}_d")
    e("s_sleep 4")
    hloads()
    e(f"s_branch {lab}")
    e(f"{lab}_d:")
    for k in range(8):
        unit_unpack(HG + 4 * k)
    for lp in range(4):
        r = HG + 8 * lp
        for i in range(4):
            e(f"v_add_f32 v{r + i}, v{r + i}, v{r + 4 + i}")
        for i in range(4):
            e(f"v_max_f32 v{r + i}, 0, v{r + i}")
        e(f"v_cvt_pk_bf16_f32 v{r}, v{r}, v{r + 1}")
        e(f"v_cvt_pk_bf16_f32 v{r + 1}, v{r + 2}, v{r + 3}")
        e(f"ds_write_b64 v6, {vr(r, 2)} offset:{128 * lp}")
    e("L_noh2:")
    e(f"s_cmp_eq_u32 s{S_WAVE}, 2")
    e("s_cbranch_scc0 L_nolse")
    e("v_lshlrev_b32 v3, 2, v0")
    e(f"ds_read2st64_b32 v[6:7], v3 offset0:{L_LSUM // 256} offset1:{L_LSUM // 256 + 1}")
    e(f"ds_read2st64_b32 v[8:9], v3 offset0:{L_LSUM // 256 + 2} offset1:{L_LSUM // 256 + 3}")
    e("v_lshlrev_b32 v4, 4, v1")
    e(f"v_add_u32 v4, {L_MAX}, v4")
    e("ds_read2st64_b32 v[10:11], v4 offset0:0 offset1:1")
    e("ds_read2st64_b32 v[12:13], v4 offset0:2 offset1:3")
    e(f"s_mov_b32 s{S_L2E}, 0x3fb8aa3b")
    e(f"s_lshl_b32 s{T}, s{S_XI}, 12")
    e(f"s_lshl_b32 s{T + 1}, s{S_B}, 10")
    e(f"s_add_u32 s{T}, s{T}, s{T + 1}")
    e(f"s_add_u32 s{T}, s{T}, {WS_LSE}")
    e(f"s_lshl_b32 s{T + 1}, s{S_SP}, 7")
    e(f"s_add_u32 s{T + 1}, s{T + 1}, s{T}")
    e("s_waitcnt lgkmcnt(0)")
    e("v_add_f32 v6, v6, v7")
    e("v_add_f32 v8, v8, v9")
    e("v_max3_f32 v10, v10, v11, v12")
    e("v_add_f32 v6, v6, v8")
    e("v_max_f32 v10, v10, v13")
    e("v_rcp_f32 v11, v6")
    e("v_log_f32 v6, v6")
    e(f"v_mul_f32 v10, s{S_L2E}, v10")
    e("v_lshlrev_b32 v5, 3, v1")
    e("v_add_f32 v6, v6, v10")
    e(f"v_mov_b32 v7, s{S_TAG}")
    e("v_cmp_eq_u32 vcc, 0, v2")
    e("s_and_saveexec_b64 s[64:65], vcc")
    e(f"buffer_store_dwordx2 v[6:7], v5, {WSR}, s{T + 1} offen sc1")
    e("s_mov_b64 exec, s[64:65]")
    e("v_lshlrev_b32 v5, 2, v1")
    e(f"v_add_u32 v5, {L_SCALE}, v5")
    e("v_cmp_eq_u32 vcc, 0, v2")
    e("s_and_saveexec_b64 s[64:65], vcc")
    e("ds_write_b32 v5, v11")
    e("s_mov_b64 exec, s[64:65]")
    e("L_nolse:")
    WF = 32
    e("v_lshrrev_b32 v10, 2, v2")
    e("v_and_b32 v11, 3, v2")
    e("v_lshlrev_b32 v4, 10, v1")
    e("v_lshl_add_u32 v4, v10, 7, v4")
    e("v_lshl_add_u32 v4, v11, 3, v4")
    e(f"s_lshl_b32 s{T}, s{S_WAVE}, 5")
    e(f"v_add_u32 v4, s{T}, v4")
    e("v_lshlrev_b32 v6, 9, v11")
    e("v_lshl_add_u32 v6, v1, 4, v6")
    e(f"v_add_u32 v6, {L_HB}, v6")
    e("v_lshlrev_b32 v9, 6, v2")
    e("v_lshl_add_u32 v9, v1, 4, v9")
    e(f"v_mov_b32 v17, s{S_TAG}")
    e(f"v_mov_b32 v19, s{S_TAG}")
    e("s_waitcnt lgkmcnt(0)")
    e("s_barrier")
    e(f"s_cmp_eq_u32 s{S_WAVE}, 1")
    e("s_cbranch_scc0 L_noid4")
    e(f"v_mov_b32 v30, {L_SCALE + 16}")
    e("ds_read_b32 v30, v30")
    e("s_waitcnt lgkmcnt(0)")
    e(f"v_readfirstlane_b32 s{S_SAME}, v30")
    e("L_noid4:")
    e(f"s_sub_u32 s{T + 4}, s{S_Y}, 23")
    e(f"s_cmp_ge_u32 s{T + 4}, 7")
    e("s_cbranch_scc1 L_nog2")
    e(f"v_add_u32 v7, {L_T0}, v4")
    for t in range(8):
        ad, off = ("v7", t * 4096) if t < 6 else ("v4", L_W2B + (t - 6) * 4096)
        e(f"ds_read_b64_tr_b16 {vr(64 + 4 * t, 2)}, {ad} offset:{off}")
        e(f"ds_read_b64_tr_b16 {vr(64 + 4 * t + 2, 2)}, {ad} offset:{off + 512}")
        if t == 3:
            e("s_waitcnt lgkmcnt(4)")
    e("s_waitcnt lgkmcnt(4)")
    for t in range(8):
        e(f"ds_read_b128 {vr(128 + 4 * t, 4)}, v6 offset:{64 * t}")
    e("s_waitcnt lgkmcnt(0)")
    for t in range(8):
        c = "0" if t == 0 else "v[12:15]"
        e(f"v_mfma_f32_16x16x32_bf16 v[12:15], {vr(64 + 4 * t, 4)}, {vr(128 + 4 * t, 4)}, {c}")
    e("s_nop 7")
    e("v_cvt_pk_bf16_f32 v20, v12, v13")
    e("v_cvt_pk_bf16_f32 v22, v14, v15")
    e(f"s_lshl_b32 s{T}, s{S_XI}, 15")
    e(f"s_lshl_b32 s{T + 1}, s{T + 4}, 10")
    e(f"s_add_u32 s{T}, s{T}, s{T + 1}")
    e(f"s_lshl_b32 s{T + 1}, s{S_WAVE}, 8")
    e(f"s_add_u32 s{T}, s{T}, s{T + 1}")
    e(f"s_add_u32 s{T}, s{T}, {WS_GP}")
    e(f"v_mov_b32 v21, s{S_TAG}")
    e(f"v_mov_b32 v23, s{S_TAG}")
    e("v_cmp_gt_u32 vcc, 4, v2")
    e("s_and_saveexec_b64 s[64:65], vcc")
    e(f"buffer_store_dwordx4 v[20:23], v9, {WSR}, s{T} offen sc1")
    e("s_mov_b64 exec, s[64:65]")
    e("L_nog2:")
    e("v_lshrrev_b32 v24, 5, v0")
    e(f"s_lshl_b32 s{T}, s{S_WAVE}, 1")
    e(f"v_add_u32 v24, s{T}, v24")
    e("v_and_b32 v25, 31, v0")
    e("v_lshlrev_b32 v25, 4, v25")
    e("v_lshl_add_u32 v26, v24, 9, v25")
    e("v_lshl_add_u32 v27, v24, 14, v25")
    e("v_lshlrev_b32 v28, 2, v24")
    e(f"v_add_u32 v28, {L_SCALE}, v28")
    e(f"s_lshl_b32 s{T + 11}, s{S_XI}, 16")
    e(f"s_lshl_b32 s{T + 1}, s{S_SP}, 11")
    e(f"s_add_u32 s{T + 11}, s{T + 11}, s{T + 1}")
    e(f"s_lshl_b32 s{T + 1}, s{S_B}, 9")
    e(f"s_add_u32 s{T + 11}, s{T + 11}, s{T + 1}")
    e(f"s_add_u32 s{T + 11}, s{T + 11}, {WS_OP}")
    e(f"v_mov_b32 v81, s{S_TAG}")
    e(f"v_mov_b32 v83, s{S_TAG}")
    e(f"s_lshl_b32 s{T + 14}, s{S_XI}, 2")
    e(f"s_add_u32 s{T + 14}, s{T + 14}, s{S_B}")
    e(f"s_lshl_b32 s{T + 14}, s{T + 14}, 10")
    e(f"s_lshl_b32 s{T + 1}, s{S_SP}, 15")
    e(f"s_add_u32 s{T + 14}, s{T + 14}, s{T + 1}")
    e(f"s_lshl_b32 s{T + 1}, s{S_WAVE}, 8")
    e(f"s_add_u32 s{T + 14}, s{T + 14}, s{T + 1}")
    e(f"s_add_u32 s{T + 14}, s{T + 14}, {WS_SP}")
    e("v_and_b32 v12, 3, v2")
    e("v_lshlrev_b32 v12, 8, v12")
    e("v_lshl_add_u32 v12, v1, 4, v12")
    e(f"v_add_u32 v12, {L_OBF}, v12")
    e(f"v_add_u32 v4, {L_WO}, v4")
    tail_addrs()
    stamp(9)

    tstamp(1)
    if prio:
        e("s_setprio 3")
    e("s_barrier")
    tstamp(2)
    e(f"s_cmp_lt_u32 s{S_WAVE}, 2")
    e("s_cbranch_scc0 L_nopub")
    for sw_ in range(4):
        e(f"ds_read_b128 {vr(64 + 4 * sw_, 4)}, v26 offset:{sw_ * 2048}")
    e("ds_read_b32 v29, v28")
    e("s_waitcnt lgkmcnt(0)")
    for i in range(4):
        e(f"v_add_f32 v{64 + i}, v{64 + i}, v{68 + i}")
        e(f"v_add_f32 v{72 + i}, v{72 + i}, v{76 + i}")
    for i in range(4):
        e(f"v_add_f32 v{64 + i}, v{64 + i}, v{72 + i}")
    for i in range(4):
        e(f"v_mul_f32 v{64 + i}, v{64 + i}, v29")
    e("v_cvt_pk_bf16_f32 v80, v64, v65")
    e("v_cvt_pk_bf16_f32 v82, v66, v67")
    e(f"s_cmp_eq_u32 s{S_SAME}, 1")
    e("s_cbranch_scc1 L_publ")
    e(f"buffer_store_dwordx4 v[80:83], v27, {WSR}, s{T + 11} offen sc1")
    e("s_branch L_pubs")
    e("L_publ:")
    e(f"buffer_store_dwordx4 v[80:83], v27, {WSR}, s{T + 11} offen")
    e("L_pubs:")
    tstamp(3)
    e("L_nopub:")
    e("L_wts2:")
    lse_loads()
    tstamp(5)
    if hint:
        e("v_lshlrev_b32 v6, 11, v0")
        e("v_add_u32 v6, 252, v6")
        e("s_mov_b64 exec, 0xff")
        lab = poll_begin("ph2")
        e(f"buffer_load_dword v8, v6, {WSR}, s{T} offen sc1")
        e("s_waitcnt vmcnt(0)")
        tagcheck([8], 0, 0)
        poll_end(lab, tsleep)
    def oloads():
        e(f"buffer_load_dwordx4 v[{OG}:{OG + 3}], v{VO}, {WSR}, s{S_O0} offen sc1")
        e(f"buffer_load_dwordx4 v[{OG + 4}:{OG + 7}], v{VO}, {WSR}, s{S_O1} offen sc1")

    oloads()
    e("s_waitcnt vmcnt(2)")
    weights(waited=True)
    tstamp(4)
    lab = e.label("po")
    e(f"s_mov_b32 s{T + 17}, {POLL_LIMIT}")
    e(f"s_branch {lab}_c")
    e(f"{lab}:")
    oloads()
    e(f"{lab}_c:")
    e("s_waitcnt vmcnt(0)")
    tagcheck([OG + 1, OG + 3, OG + 5, OG + 7], 8, 7)
    poll_end(lab, tsleep)
    stamp(10)
    tstamp(6)
    e(f"v_lshlrev_b32 v56, 16, v{OG}")
    e(f"v_and_b32 v57, s{S_M16}, v{OG}")
    e(f"v_lshlrev_b32 v58, 16, v{OG + 2}")
    e(f"v_and_b32 v59, s{S_M16}, v{OG + 2}")
    e(f"v_lshlrev_b32 v60, 16, v{OG + 4}")
    e(f"v_and_b32 v61, s{S_M16}, v{OG + 4}")
    e(f"v_lshlrev_b32 v62, 16, v{OG + 6}")
    e(f"v_and_b32 v63, s{S_M16}, v{OG + 6}")
    for i in range(4):
        e(f"v_mul_f32 v{56 + i}, v{56 + i}, v110")
    for i in range(4):
        e(f"v_fmac_f32 v{56 + i}, v{60 + i}, v111")
    e("s_nop 0")
    e("v_permlane32_swap_b32 v56, v58")
    e("v_permlane32_swap_b32 v57, v59")
    e("s_nop 0")
    e("v_add_f32 v56, v56, v58")
    e("v_add_f32 v57, v57, v59")
    e("s_nop 1")
    e("v_permlane16_swap_b32 v56, v57")
    e("s_nop 1")
    e("v_add_f32 v56, v56, v57")
    e("v_cvt_pk_bf16_f32 v56, v56, v56")
    e(f"ds_write_b16 v{VL}, v56")
    e("s_waitcnt vmcnt(0) lgkmcnt(0)")
    e("s_barrier")
    tstamp(7)
    e(f"s_cmp_lt_u32 s{S_WAVE}, 4")
    e("s_cbranch_scc0 L_final")
    BB = 96
    for t in range(4):
        e(f"ds_read_b128 {vr(BB + 4 * t, 4)}, v12 offset:{64 * t}")
        e(f"ds_read_b64_tr_b16 {vr(WF + 4 * t, 2)}, v4 offset:{t * 4096}")
        e(f"ds_read_b64_tr_b16 {vr(WF + 4 * t + 2, 2)}, v4 offset:{t * 4096 + 512}")
    e("v_cmp_gt_u32 vcc, 4, v2")
    for t in range(4):
        e(f"s_waitcnt lgkmcnt({9 - 3 * t})")
        c = "0" if t == 0 else "v[12:15]"
        e(f"v_mfma_f32_16x16x32_bf16 v[12:15], {vr(WF + 4 * t, 4)}, {vr(BB + 4 * t, 4)}, {c}")
    e("s_nop 7")
    e("v_cvt_pk_bf16_f32 v16, v12, v13")
    e("v_cvt_pk_bf16_f32 v18, v14, v15")
    e("s_and_saveexec_b64 s[64:65], vcc")
    e(f"buffer_store_dwordx4 v[16:19], v9, {WSR}, s{T + 14} offen {spst}")
    stamp(11)
    stamp_flush()
    e("s_endpgm")

    e("L_final:")
    e(f"s_cmp_gt_u32 s{S_WAVE}, 5")
    e("s_cbranch_scc0 L_fin0")
    stamp_flush()
    e("s_endpgm")
    e("L_fin0:")
    e("v_lshrrev_b32 v3, 1, v0")
    e("v_lshlrev_b32 v3, 10, v3")
    e("v_and_b32 v4, 1, v0")
    e("v_lshl_add_u32 v3, v4, 4, v3")
    e(f"s_lshl_b32 s{T}, s{S_XI}, 15")
    e(f"s_lshl_b32 s{T + 1}, s{S_B}, 6")
    e(f"s_add_u32 s{T}, s{T}, s{T + 1}")
    e(f"s_lshr_b32 s{T + 1}, s{S_SP}, 1")
    e(f"s_lshl_b32 s{T + 1}, s{T + 1}, 8")
    e(f"s_add_u32 s{T}, s{T}, s{T + 1}")
    e(f"s_and_b32 s{T + 1}, s{S_SP}, 1")
    e(f"s_lshl_b32 s{T + 1}, s{T + 1}, 5")
    e(f"s_add_u32 s{T}, s{T}, s{T + 1}")
    e(f"s_lshl_b32 s{T + 4}, s{S_B}, 10")
    e(f"s_lshl_b32 s{T + 5}, s{S_XI}, 7")
    e(f"s_add_u32 s{T + 4}, s{T + 4}, s{T + 5}")
    e(f"s_lshl_b32 s{T + 5}, s{S_SP}, 4")
    e(f"s_add_u32 s{T + 4}, s{T + 4}, s{T + 5}")
    e("v_lshlrev_b32 v5, 3, v4")
    e("v_lshlrev_b32 v6, 5, v4")
    e(f"v_add_u32 v6, {L_FIN}, v6")

    def unpack4(dst, lo, hi):
        e(f"v_lshlrev_b32 v{dst}, 16, v{lo}")
        e(f"v_and_b32 v{dst + 1}, s{S_M16}, v{lo}")
        e(f"v_lshlrev_b32 v{dst + 2}, 16, v{hi}")
        e(f"v_and_b32 v{dst + 3}, s{S_M16}, v{hi}")

    def red32(base):
        e("s_nop 0")
        for rot in (2, 4, 8):
            for i in range(4):
                e(f"v_add_f32_dpp v{base + i}, v{base + i}, v{base + i} row_ror:{rot} row_mask:0xf bank_mask:0xf")
        for sw_ in ("v_permlane16_swap_b32", "v_permlane32_swap_b32"):
            for i in range(4):
                e(f"v_mov_b32 v{base + 4 + i}, v{base + i}")
            e("s_nop 0")
            for i in range(4):
                e(f"{sw_} v{base + 4 + i}, v{base + i}")
            for i in range(4):
                e(f"v_add_f32 v{base + i}, v{base + i}, v{base + 4 + i}")

    e(f"s_cmp_eq_u32 s{S_WAVE}, 4")
    e("s_cbranch_scc1 L_fins")
    e(f"s_add_u32 s{T + 2}, s{T}, {WS_GP}")
    e("v_cmp_gt_u32 s[66:67], 14, v0")
    e("v_cmp_eq_u32 vcc, 1, v4")
    e(f"v_mov_b32 v20, s{S_RES}")
    e(f"v_mov_b32 v21, s{S_RES + 1}")
    e(f"v_mov_b32 v22, s{S_RES + 2}")
    e(f"v_mov_b32 v23, s{S_RES + 3}")
    e("v_cndmask_b32 v20, v20, v22, vcc")
    e("v_cndmask_b32 v21, v21, v23, vcc")
    lab = poll_begin("pgp")
    e(f"buffer_load_dwordx4 v[32:35], v3, {WSR}, s{T + 2} offen sc1")
    e("s_waitcnt vmcnt(0)")
    tagcheck([33, 35], 0, 0)
    e("s_and_b64 vcc, vcc, s[66:67]")
    poll_end(lab, tsleep)
    e("v_cndmask_b32 v32, 0, v32, s[66:67]")
    e("v_cndmask_b32 v34, 0, v34, s[66:67]")
    unpack4(24, 32, 34)
    red32(24)
    e("v_cvt_pk_bf16_f32 v8, v24, v25")
    e("v_cvt_pk_bf16_f32 v9, v26, v27")
    unpack4(24, 8, 9)
    e(f"s_mov_b32 s{T + 5}, 0xbfb8aa3b")
    for i in range(4):
        e(f"v_mul_f32 v{28 + i}, s{T + 5}, v{24 + i}")
    for i in range(4):
        e(f"v_exp_f32 v{28 + i}, v{28 + i}")
    e("s_nop 0")
    for i in range(4):
        e(f"v_add_f32 v{28 + i}, 1.0, v{28 + i}")
    for i in range(4):
        e(f"v_rcp_f32 v{28 + i}, v{28 + i}")
    e("s_nop 0")
    for i in range(4):
        e(f"v_mul_f32 v{24 + i}, v{24 + i}, v{28 + i}")
    e("v_cvt_pk_bf16_f32 v8, v24, v25")
    e("v_cvt_pk_bf16_f32 v9, v26, v27")
    unpack4(24, 8, 9)
    unpack4(28, 20, 21)
    e("s_mov_b64 exec, 3")
    e("ds_write_b128 v6, v[24:27]")
    e("ds_write_b128 v6, v[28:31] offset:16")
    e("s_waitcnt lgkmcnt(0)")
    tstamp(8)
    e("s_barrier")
    stamp_flush()
    e("s_endpgm")
    e("L_fins:")
    e(f"s_add_u32 s{T + 3}, s{T}, {WS_SP}")
    srd(R_B, S_OUT, S_OUT + 1, 4096)
    lab = poll_begin("psp")
    e(f"buffer_load_dwordx4 v[32:35], v3, {WSR}, s{T + 3} offen {spld}")
    e("s_waitcnt vmcnt(0)")
    tagcheck([33, 35], 0, 0)
    poll_end(lab, tsleep)
    tstamp(9)
    unpack4(40, 32, 34)
    red32(40)
    e("v_cvt_pk_bf16_f32 v8, v40, v41")
    e("v_cvt_pk_bf16_f32 v9, v42, v43")
    unpack4(40, 8, 9)
    e("s_barrier")
    e("ds_read_b128 v[24:27], v6")
    e("ds_read_b128 v[28:31], v6 offset:16")
    e("s_waitcnt lgkmcnt(0)")
    for i in range(4):
        e(f"v_mul_f32 v{40 + i}, v{40 + i}, v{24 + i}")
    e("v_cvt_pk_bf16_f32 v8, v40, v41")
    e("v_cvt_pk_bf16_f32 v9, v42, v43")
    unpack4(40, 8, 9)
    for i in range(4):
        e(f"v_add_f32 v{40 + i}, v{40 + i}, v{28 + i}")
    e("v_cvt_pk_bf16_f32 v8, v40, v41")
    e("v_cvt_pk_bf16_f32 v9, v42, v43")
    e("s_mov_b64 exec, 3")
    e(f"buffer_store_dwordx2 v[8:9], v5, s[{R_B}:{R_B + 3}], s{T + 4} offen")
    e("s_cmp_eq_u32 s2, 0")
    e("s_cbranch_scc0 L_noep")
    e("s_mov_b64 exec, 1")
    e(f"v_mov_b32 v6, {WS_E}")
    e(f"v_mov_b32 v7, s{S_TAG}")
    e(f"buffer_store_dword v7, v6, {WSR}, 0 offen")
    e("L_noep:")
    stamp(11)
    stamp_flush()
    e("L_end:")
    e("s_endpgm")
    e(f".fill ({20480 if diag else 16384} - (. - {KN}_kernel)) / 4, 4, 0xbf800000")
    e('.section .rodata,"a"')
    e(".p2align 6")
    e(f".amdhsa_kernel {KN}_kernel")
    e("  .amdhsa_next_free_vgpr 256")
    e("  .amdhsa_next_free_sgpr 102")
    e("  .amdhsa_accum_offset 256")
    e("  .amdhsa_group_segment_fixed_size 0")
    e("  .amdhsa_kernarg_size 88")
    e("  .amdhsa_user_sgpr_count 2")
    e("  .amdhsa_user_sgpr_kernarg_segment_ptr 1")
    e("  .amdhsa_system_sgpr_workgroup_id_x 1")
    e(".end_amdhsa_kernel")
    return e.text()


if __name__ == "__main__":
    import argparse
    ap = argparse.ArgumentParser()
    ap.add_argument("-o", default="k.s")
    ap.add_argument("--diag", action="store_true")
    ap.add_argument("--early", action="store_true")
    ap.add_argument("--thr", type=int, default=7)
    ap.add_argument("--kpol", default="nt")
    ap.add_argument("--wpol", default="nt")
    ap.add_argument("--hint", action="store_true")
    ap.add_argument("--thr2", type=int, default=10)
    ap.add_argument("--nshallow", type=int, default=5)
    ap.add_argument("--light", action="store_true")
    ap.add_argument("--tail", action="store_true")
    ap.add_argument("--wint", action="store_true")
    ap.add_argument("--thr3", type=int, default=None)
    ap.add_argument("--tlb", action="store_true")
    ap.add_argument("--k2", action="store_true")
    ap.add_argument("--prio", action="store_true")
    ap.add_argument("--nob0x", action="store_true")
    ap.add_argument("--noqx", action="store_true")
    ap.add_argument("--rs8", action="store_true")
    ap.add_argument("--late", type=int, default=1)
    ap.add_argument("--pfn", type=int, default=8)
    ap.add_argument("--spld", default="sc1")
    ap.add_argument("--spst", default="sc1")
    ap.add_argument("--xp", default="")
    ap.add_argument("--tsleep", type=int, default=1)
    a = ap.parse_args()
    open(a.o, "w").write(gen(diag=a.diag, thr=a.thr, kpol=a.kpol, wpol=a.wpol, early=a.early, hint=a.hint, thr2=a.thr2, nshallow=a.nshallow, tsleep=a.tsleep, light=a.light, xp=tuple(a.xp.split(',')), tailst=a.tail, spld=a.spld, spst=a.spst, wint=a.wint, pfn=a.pfn, late=a.late, rs8=a.rs8, qx=not a.noqx, b0x=not a.nob0x, k2first=a.k2, prio=a.prio, tlb=a.tlb, thr3=a.thr3))
```

```python
import sys

KN = "recurrent_scan__sliding_block_cached__dense_activation_relu__decode"

WS_E = 0x00000
WS_LSE = 0x01000
WS_ID = 0x0A000
WS_Q = 0x10000
WS_QX = 0x30000
WS_H = 0x90000
WS_OP = 0xD0000
WS_SP = 0x150000
WS_GP = 0x190000
WS_SIZE = 0x1D0000
WS_STAMP = 0x200000

L_K = 0
L_RED = 0
L_LSUM = 8192
L_OBF = 10240
L_T0 = 131072
L_QB = L_T0 + 24576
L_MAX = L_T0 + 25600
L_SCALE = L_T0 + 26624
L_HB = L_T0 + 28672
L_FIN = 12288
L_W2B = 16384
L_WO = 32768
LDS_BYTES = 163840

POLL_LIMIT = 200000
EPOCH_STEP = 0x9E3779B9

HEADER = """; Kernarg layout for this problem (88 bytes, ptrs only, base s[0:1]):
;
"""


class Asm:
    def __init__(self):
        self.L = []
        self.nlab = 0

    def __call__(self, s):
        for line in s.split("\n"):
            line = line.strip()
            if line:
                self.L.append(line)

    def label(self, base):
        self.nlab += 1
        return f"L_{base}_{self.nlab}"

    def text(self):
        out = []
        for l in self.L:
            if l.endswith(":") or l.startswith(".") or l.startswith(";"):
                out.append(l)
            else:
                out.append("    " + l)
        return "\n".join(out) + "\n"


def vr(a, n=1):
    return f"v{a}" if n == 1 else f"v[{a}:{a + n - 1}]"


def gen(diag=False, thr=7, kpol="nt", wpol="nt", early=False, hint=False, tsleep=1, thr2=9, light=False, nshallow=5, xp=(), tailst=False, spld='sc1', spst='sc1', wint=False, pfn=8, late=1, rs8=False, qx=True, b0x=True, k2first=False, prio=False, tlb=False, thr3=9):
    e = Asm()
    PF2 = True
    S_X, S_K, S_V, S_WQ, S_WO, S_BX, S_W1, S_W2 = 4, 6, 8, 10, 12, 14, 16, 18
    S_OUT, S_DBG, S_WS = 20, 22, 24
    S_XI, S_Y, S_WAVE, S_B, S_SP, S_TAG = 26, 27, 28, 29, 30, 31
    R_A, R_B, R_WS, R_C, R_D = 32, 36, 40, 44, 48
    T = 52
    S_STAMP = 72
    S_M16, S_SC, S_L2E, S_PLO, S_PHI = 96, 97, 98, 99, 100
    S_RES = 48
    S_O0, S_O1 = 14, 15
    OG = 48
    VO, VL = 105, 112
    S_SAME = 101
    WSR = f"s[{R_WS}:{R_WS + 3}]"

    def estamp(k):
        if diag and early:
            e(f"s_memrealtime s[{S_STAMP + 2 * k}:{S_STAMP + 2 * k + 1}]")
            e("s_waitcnt lgkmcnt(0)")

    def tstamp(k):
        if diag and tailst:
            e(f"s_memrealtime s[{S_STAMP + 2 * k}:{S_STAMP + 2 * k + 1}]")
            e("s_waitcnt lgkmcnt(0)")

    def stamp(k):
        if diag and tailst:
            if k == 11:
                tstamp(11)
            return
        if diag and not (early and k != 11) and not (light and k not in (8, 10, 11)):
            assert k < 12
            e(f"s_memrealtime s[{S_STAMP + 2 * k}:{S_STAMP + 2 * k + 1}]")
            e("s_waitcnt lgkmcnt(0)")

    def stamp_flush():
        if diag:
            e("s_waitcnt vmcnt(0) lgkmcnt(0)")
            e(f"s_lshl_b32 s{T}, s2, 3")
            e(f"s_add_u32 s{T}, s{T}, s{S_WAVE}")
            e(f"s_lshl_b32 s{T}, s{T}, 7")
            e(f"s_add_u32 s{T}, s{T}, {WS_STAMP}")
            e("s_mov_b64 exec, 1")
            e(f"v_mov_b32 v1, s{T}")
            for k in range(12):
                e(f"v_mov_b32 v2, s{S_STAMP + 2 * k}")
                e(f"v_mov_b32 v3, s{S_STAMP + 2 * k + 1}")
                e(f"global_store_dwordx2 v1, v[2:3], s[{S_WS}:{S_WS + 1}] offset:{8 * k}")
            e("s_waitcnt vmcnt(0)")

    def karg2():
        e("s_load_dwordx4 s[20:23], s[0:1], 64")
        e("s_load_dwordx2 s[24:25], s[0:1], 80")

    def epoch_load():
        if "wsend" in xp:
            e(f"s_add_u32 s{S_WS}, s{S_WS}, {512 * 1024 * 1024 - 4 * 1024 * 1024}")
            e(f"s_addc_u32 s{S_WS + 1}, s{S_WS + 1}, 0")
        e(f"s_load_dword s{S_TAG}, s[{S_WS}:{S_WS + 1}], {WS_E}")

    def epoch_tag():
        e(f"s_add_u32 s{S_TAG}, s{S_TAG}, {EPOCH_STEP:#x}")

    def srd(r, lo, hi, size):
        if lo != r:
            e(f"s_mov_b32 s{r}, s{lo}")
            e(f"s_mov_b32 s{r + 1}, s{hi}")
        e(f"s_mov_b32 s{r + 2}, {size}")
        e(f"s_mov_b32 s{r + 3}, 0x20000")

    def srd_off(r, base, soff, size):
        e(f"s_add_u32 s{r}, s{base}, s{soff}")
        e(f"s_addc_u32 s{r + 1}, s{base + 1}, 0")
        e(f"s_mov_b32 s{r + 2}, {size}")
        e(f"s_mov_b32 s{r + 3}, 0x20000")

    def poll_begin(name):
        lab = e.label(name)
        e(f"s_mov_b32 s{T + 17}, {POLL_LIMIT}")
        e(f"{lab}:")
        return lab

    def poll_end(lab, sleep=1, masked=True):
        done = lab + "_d"
        e("s_cmp_eq_u64 vcc, 0")
        e(f"s_cbranch_scc1 {done}")
        e(f"s_sub_u32 s{T + 17}, s{T + 17}, 1")
        e(f"s_cbranch_scc1 {done}")
        if masked and "nomask" not in xp:
            e("s_mov_b64 exec, vcc")
        if sleep:
            e(f"s_sleep {sleep}")
        e(f"s_branch {lab}")
        e(f"{done}:")
        if masked:
            e("s_mov_b64 exec, -1")

    def tagcheck(tags, t0, t1):
        if len(tags) == 1:
            e(f"v_cmp_ne_u32 vcc, s{S_TAG}, v{tags[0]}")
            return
        if len(tags) == 2:
            e(f"v_cmp_ne_u32 s[{T + 12}:{T + 13}], s{S_TAG}, v{tags[0]}")
            e(f"v_cmp_ne_u32 vcc, s{S_TAG}, v{tags[1]}")
            e(f"s_or_b64 vcc, vcc, s[{T + 12}:{T + 13}]")
            return
        for op, acc in (("max", t0), ("min", t1)):
            rest = list(tags)
            if len(rest) >= 3:
                e(f"v_{op}3_u32 v{acc}, v{rest[0]}, v{rest[1]}, v{rest[2]}")
                rest = rest[3:]
            while len(rest) >= 2:
                e(f"v_{op}3_u32 v{acc}, v{acc}, v{rest[0]}, v{rest[1]}")
                rest = rest[2:]
            if rest:
                e(f"v_{op}_u32 v{acc}, v{acc}, v{rest[0]}")
        e(f"v_cmp_ne_u32 s[{T + 12}:{T + 13}], s{S_TAG}, v{t0}")
        e(f"v_cmp_ne_u32 vcc, s{S_TAG}, v{t1}")
        e(f"s_or_b64 vcc, vcc, s[{T + 12}:{T + 13}]")

    def xrow_reduce(op, r, t):
        e(f"v_mov_b32 v{t}, v{r}")
        e("s_nop 1")
        e(f"v_permlane32_swap_b32 v{t}, v{r}")
        e("s_nop 1")
        e(f"{op} v{r}, v{t}, v{r}")
        e(f"v_mov_b32 v{t}, v{r}")
        e("s_nop 1")
        e(f"v_permlane16_swap_b32 v{t}, v{r}")
        e("s_nop 1")
        e(f"{op} v{r}, v{t}, v{r}")

    LA, LV = 104, 106

    def lse_addr():
        e(f"s_lshl_b32 s{T + 15}, s{S_XI}, 12")
        e(f"s_lshr_b32 s{T + 16}, s{S_WAVE}, 1")
        e(f"s_lshl_b32 s{T + 16}, s{T + 16}, 10")
        e(f"s_add_u32 s{T + 15}, s{T + 15}, s{T + 16}")
        e(f"s_lshl_b32 s{T + 16}, s{S_B}, 3")
        e(f"s_add_u32 s{T + 15}, s{T + 15}, s{T + 16}")
        e(f"s_add_u32 s{T + 15}, s{T + 15}, {WS_LSE}")
        e(f"v_lshlrev_b32 v{LA}, 7, v1")

    def lse_loads():
        e(f"buffer_load_dwordx2 v[{LV}:{LV + 1}], v{LA}, {WSR}, s{T + 15} offen sc1")
        e(f"buffer_load_dwordx2 v[{LV + 2}:{LV + 3}], v{LA}, {WSR}, s{T + 15} offen offset:512 sc1")

    def tail_addrs():
        lse_addr()
        e(f"s_lshl_b32 s{S_O0}, s{S_XI}, 16")
        e(f"s_lshl_b32 s{S_O1}, s{S_B}, 14")
        e(f"s_add_u32 s{S_O0}, s{S_O0}, s{S_O1}")
        e(f"s_lshl_b32 s{S_O1}, s{S_WAVE}, 8")
        e(f"s_add_u32 s{S_O0}, s{S_O0}, s{S_O1}")
        e(f"s_add_u32 s{S_O0}, s{S_O0}, {WS_OP}")
        e(f"s_add_u32 s{S_O1}, s{S_O0}, 8192")
        e(f"v_lshlrev_b32 v{VO}, 11, v1")
        e(f"v_lshl_add_u32 v{VO}, v2, 4, v{VO}")
        e(f"s_lshl_b32 s{T + 9}, s{S_WAVE}, 7")
        e(f"s_add_u32 s{T + 9}, s{T + 9}, {L_OBF}")
        e(f"v_lshlrev_b32 v{VL}, 3, v2")
        e(f"v_lshl_add_u32 v{VL}, v1, 1, v{VL}")
        e(f"v_add_u32 v{VL}, s{T + 9}, v{VL}")


    def weights(waited=False):
        lab = e.label("pw")
        e(f"s_mov_b32 s{T + 17}, {POLL_LIMIT}")
        if waited:
            e(f"s_branch {lab}_c")
        e(f"{lab}:")
        e("s_waitcnt vmcnt(0)")
        if waited:
            e(f"{lab}_c:")
        tagcheck([LV + 1, LV + 3], 0, 0)
        e("s_cmp_eq_u64 vcc, 0")
        e(f"s_cbranch_scc1 {lab}_d")
        e(f"s_sub_u32 s{T + 17}, s{T + 17}, 1")
        e(f"s_cbranch_scc1 {lab}_d")
        e("s_mov_b64 exec, vcc")
        e("s_sleep 2")
        lse_loads()
        e(f"s_branch {lab}")
        e(f"{lab}_d:")
        e("s_mov_b64 exec, -1")
        e(f"v_max_f32 v110, v{LV}, v{LV + 2}")
        xrow_reduce("v_max_f32", 110, 111)
        e(f"v_sub_f32 v{LV}, v{LV}, v110")
        e(f"v_sub_f32 v{LV + 2}, v{LV + 2}, v110")
        e(f"v_exp_f32 v{LV}, v{LV}")
        e(f"v_exp_f32 v{LV + 2}, v{LV + 2}")
        e("s_nop 0")
        e(f"v_add_f32 v110, v{LV}, v{LV + 2}")
        xrow_reduce("v_add_f32", 110, 111)
        e("v_rcp_f32 v110, v110")
        e("s_nop 0")
        e(f"v_mul_f32 v111, v{LV + 2}, v110")
        e(f"v_mul_f32 v110, v{LV}, v110")

    for l in HEADER.strip("\n").split("\n"):
        e.L.append(l)
    e.L.append(f"; @launch grid=(256,1,1) block=(512,1,1) lds={LDS_BYTES}")
    e('.amdgcn_target "amdgcn-amd-amdhsa--gfx950"')
    e(".text")
    e(f".globl {KN}_kernel")
    e(".p2align 8")
    e(f".type {KN}_kernel,@function")
    e(f"{KN}_kernel:")
    if diag:
        e(f"s_memrealtime s[{S_STAMP}:{S_STAMP + 1}]")
    e("s_cmp_ge_u32 s2, 256")
    e("s_cbranch_scc1 L_end")
    e("s_load_dwordx16 s[4:19], s[0:1], 0")
    e("v_lshrrev_b32 v1, 6, v0")
    e(f"s_and_b32 s{S_XI}, s2, 7")
    e(f"s_lshr_b32 s{S_Y}, s2, 3")
    e(f"v_readfirstlane_b32 s{S_WAVE}, v1")
    if pfn < 256:
        e(f"s_cmp_lt_u32 s2, {pfn}")
        e("s_cbranch_scc0 L_nopf")
    e("s_getpc_b64 s[60:61]")
    e("L_pc:")
    e(f"s_sub_u32 s60, s60, L_pc-{KN}_kernel")
    e("s_subb_u32 s61, s61, 0")
    e("v_lshlrev_b32 v1, 4, v0")
    e("global_load_dword v255, v1, s[60:61]")
    e("v_add_u32 v1, 0x2000, v1")
    e("global_load_dword v255, v1, s[60:61]")
    e("L_nopf:")
    e("v_and_b32 v0, 63, v0")
    e(f"s_lshr_b32 s{S_B}, s{S_Y}, 3")
    e(f"s_and_b32 s{S_SP}, s{S_Y}, 7")
    e("v_lshrrev_b32 v1, 4, v0")
    e("v_and_b32 v2, 15, v0")
    e(f"s_cmp_lt_u32 s{S_WAVE}, 4")
    e("s_cbranch_scc1 L_H")

    S_L, S_KH = 70, 71
    S_HALF = 3

    def roles():
        e(f"s_mov_b32 s{S_M16}, 0xffff0000")
        e("v_mov_b32 v9, 0")
        e(f"s_sub_u32 s{S_L}, s{S_Y}, 16")
        e(f"s_lshl_b32 s{S_L}, s{S_L}, 3")
        e(f"s_add_u32 s{S_L}, s{S_L}, s{S_XI}")
        e(f"s_cmp_lt_u32 s{S_Y}, 16")
        e(f"s_cselect_b32 s{S_KH}, s{S_B}, s{S_L}")
        e(f"s_and_b32 s{S_KH}, s{S_KH}, 1")
        e(f"s_lshr_b32 s{S_L}, s{S_L}, 1")
        if qx:
            e(f"s_and_b32 s{T + 16}, s{S_Y}, 1")
            e(f"s_cmp_ge_u32 s{S_Y}, 30")
            e(f"s_cselect_b32 s{S_KH}, s{T + 16}, s{S_KH}")
            e(f"s_cselect_b32 s{T + 16}, 3, 0")
            e(f"s_and_b32 s{S_HALF}, s{S_Y}, 0x17")
            e(f"s_cmp_eq_u32 s{S_HALF}, 3")
            e(f"s_cselect_b32 s{S_HALF}, 1, s{T + 16}")

    SW = T
    ROT = T + 1
    VK = 4
    VV = 8
    e(f"s_sub_u32 s{SW}, s{S_WAVE}, 4")
    e(f"s_lshl_b32 s{T + 2}, s{S_B}, 25")
    e(f"s_lshl_b32 s{T + 3}, s{S_XI}, 22")
    e(f"s_add_u32 s{T + 2}, s{T + 2}, s{T + 3}")
    e(f"s_lshl_b32 s{T + 3}, s{S_SP}, 17")
    e(f"s_add_u32 s{T + 2}, s{T + 2}, s{T + 3}")
    e(f"s_add_u32 s{T + 2}, s{T + 2}, 0x300000")
    e(f"s_add_u32 s{ROT}, s{S_XI}, s{S_Y}")
    e(f"s_add_u32 s{ROT}, s{ROT}, s{SW}")
    e(f"s_and_b32 s{ROT}, s{ROT}, 31")
    e(f"s_lshl_b32 s{ROT}, s{ROT}, 12")
    e("v_lshlrev_b32 v3, 2, v1")
    e("v_xor_b32 v3, v2, v3")
    e("v_lshlrev_b32 v3, 4, v3")
    e(f"v_lshl_add_u32 v{VK}, v1, 8, v3")
    e(f"v_xor_b32 v{VK + 1}, 16, v{VK}")
    e(f"v_xor_b32 v{VK + 2}, 32, v{VK}")
    e(f"v_xor_b32 v{VK + 3}, 48, v{VK}")
    e(f"s_lshl_b32 s{T + 4}, s{SW}, 15")
    e(f"s_mov_b32 m0, s{T + 4}")
    e(f"s_mov_b32 s{R_A + 2}, 0x20000")
    e(f"s_mov_b32 s{R_A + 3}, 0x20000")
    estamp(1)
    e("s_waitcnt lgkmcnt(0)")
    estamp(2)
    e(f"s_add_u32 s{R_A}, s{S_K}, s{T + 2}")
    e(f"s_addc_u32 s{R_A + 1}, s{S_K + 1}, 0")

    def ktile(th, off=None):
        so = f"s{ROT}" if off is None else f"s{off}"
        for q in range(4):
            e(f"buffer_load_dwordx4 v{VK + q}, s[{R_A}:{R_A + 3}], {so} offen offset:{q * 1024} {kpol} lds")
            if th is not None:
                e(f"s_waitcnt vmcnt({th})")

    def knext():
        e(f"s_add_u32 s{T + 4}, s{T + 4}, 4096")
        e(f"s_mov_b32 m0, s{T + 4}")
        e(f"s_add_u32 s{T + 5}, s{T + 5}, 16384")
        e(f"s_and_b32 s{T + 5}, s{T + 5}, 0x1ffff")

    ktile(None)
    if k2first:
        e(f"s_mov_b32 s{T + 5}, s{ROT}")
        knext()
        ktile(None, T + 5)
    karg2()
    roles()
    e(f"s_sub_u32 s{T + 14}, s{S_Y}, 23")
    e(f"s_lshl_b32 s{T + 8}, s{S_KH}, 2")
    e(f"s_add_u32 s{T + 8}, s{T + 8}, s{SW}")
    e(f"s_lshl_b32 s{T + 8}, s{T + 8}, 6")
    e(f"s_mul_i32 s{T + 9}, s{SW}, 48")
    e(f"s_lshl_b32 s{T + 10}, s{T + 14}, 8")
    e(f"s_add_u32 s{T + 9}, s{T + 9}, s{T + 10}")
    e(f"s_cmp_lt_u32 s{T + 14}, 7")
    e(f"s_cselect_b32 s{T + 8}, s{T + 9}, s{T + 8}")
    e(f"s_cselect_b32 s{T + 15}, 1, 0")
    e(f"s_lshl_b32 s{T + 12}, s{SW}, 13")
    e(f"s_cmp_eq_u32 s{T + 15}, 1")
    e(f"s_mul_i32 s{T + 11}, s{SW}, 6144")
    e(f"s_cselect_b32 s{T + 11}, s{T + 11}, s{T + 12}")
    e(f"s_add_u32 s{T + 11}, s{T + 11}, {L_T0}")
    e(f"s_lshl_b32 s{T + 9}, s{S_XI}, 10")
    if "cgrot" in xp:
        e(f"s_add_u32 s{T + 10}, s{S_SP}, 2")
        e(f"s_and_b32 s{T + 10}, s{T + 10}, 7")
        e(f"s_lshl_b32 s{T + 10}, s{T + 10}, 7")
    else:
        e(f"s_lshl_b32 s{T + 10}, s{S_SP}, 7")
    e(f"s_add_u32 s{T + 9}, s{T + 9}, s{T + 10}")
    e(f"s_mov_b32 s{T + 10}, 8192")
    e(f"s_mov_b32 s{T + 12}, {512 * 8192}")
    e(f"s_mov_b32 s{R_C}, s{S_WQ}")
    e(f"s_mov_b32 s{R_C + 1}, s{S_WQ + 1}")
    if qx:
        e(f"s_cmp_eq_u32 s{S_HALF}, 0")
        e("s_cbranch_scc1 L_nohalf")
        e(f"s_lshl_b32 s{T + 8}, s{S_KH}, 1")
        e(f"s_lshr_b32 s{T + 9}, s{S_HALF}, 1")
        e(f"s_add_u32 s{T + 8}, s{T + 8}, s{T + 9}")
        e(f"s_lshl_b32 s{T + 8}, s{T + 8}, 2")
        e(f"s_add_u32 s{T + 8}, s{T + 8}, s{SW}")
        e(f"s_lshl_b32 s{T + 8}, s{T + 8}, 5")
        e(f"s_lshl_b32 s{T + 11}, s{SW}, 12")
        e(f"s_add_u32 s{T + 11}, s{T + 11}, {L_T0}")
        e(f"s_lshl_b32 s{T + 9}, s{S_XI}, 10")
        e(f"s_add_u32 s{T + 9}, s{T + 9}, 384")
        e("s_branch L_et")
        e("L_nohalf:")
    e(f"s_cmp_lt_u32 s{S_Y}, 16")
    e("s_cbranch_scc1 L_et")
    e(f"s_lshl_b32 s{T + 9}, s{S_L}, 7")
    e(f"s_mov_b32 s{T + 10}, 3584")
    e(f"s_mov_b32 s{T + 12}, {512 * 3584}")
    e(f"s_mov_b32 s{R_C}, s{S_W1}")
    e(f"s_mov_b32 s{R_C + 1}, s{S_W1 + 1}")
    e(f"s_cmp_lt_u32 s{S_Y}, 23")
    e("s_cbranch_scc1 L_et")
    e(f"s_lshl_b32 s{T + 9}, s{S_XI}, 7")
    e(f"s_mov_b32 s{T + 10}, 1024")
    e(f"s_mov_b32 s{R_C}, s{S_W2}")
    e(f"s_mov_b32 s{R_C + 1}, s{S_W2 + 1}")
    e(f"s_cmp_eq_u32 s{T + 15}, 1")
    e(f"s_cselect_b32 s{T + 12}, {1792 * 1024}, 0")
    e("L_et:")
    e(f"s_mul_i32 s{T + 8}, s{T + 8}, s{T + 10}")
    e(f"s_add_u32 s{T + 8}, s{T + 8}, s{T + 9}")
    e(f"s_lshl_b32 s{T + 9}, s{T + 10}, 3")
    e(f"s_mov_b32 s{R_C + 2}, s{T + 12}")
    e(f"s_mov_b32 s{R_C + 3}, 0x20000")
    if rs8:
        e(f"s_cmp_lt_u32 s{S_Y}, 23")
        e(f"s_cselect_b32 s{T + 13}, s{T + 9}, s{T + 10}")
        e(f"s_cselect_b32 s{T + 9}, s{T + 10}, s{T + 9}")
    else:
        e(f"s_mov_b32 s{T + 13}, s{T + 10}")
    e("v_lshrrev_b32 v9, 3, v0")
    e(f"v_mul_lo_u32 v9, v9, s{T + 13}")
    e("v_and_b32 v10, 7, v0")
    e("v_lshl_add_u32 v11, v10, 4, v9")
    if "wlin" in xp or "wlinE" in xp:
        e("v_lshlrev_b32 v11, 4, v0")
        e(f"s_lshl_b32 s{T + 8}, s2, 15")
        e(f"s_lshl_b32 s{T + 9}, s{SW}, 13")
        e(f"s_add_u32 s{T + 8}, s{T + 8}, s{T + 9}")
        e(f"s_mov_b32 s{T + 9}, 1024")
        e(f"s_cmp_eq_u32 s{R_C + 2}, 0")
        e(f"s_cselect_b32 s{R_C + 2}, 0, 0x1000000")
        e(f"s_mov_b32 s{R_C}, s{S_K}")
        e(f"s_mov_b32 s{R_C + 1}, s{S_K + 1}")
    def wload():
        e(f"s_mov_b32 m0, s{T + 11}")
        e(f"s_add_u32 s{T + 11}, s{T + 11}, 1024")
        e(f"buffer_load_dwordx4 v11, s[{R_C}:{R_C + 3}], s{T + 8} offen {wpol} lds")
        e(f"s_add_u32 s{T + 8}, s{T + 8}, s{T + 9}")

    if not wint:
        for ii in range(8):
            if ii == 4 and qx:
                e(f"s_cmp_eq_u32 s{S_HALF}, 0")
                e("s_cbranch_scc1 L_nohalf2")
                e(f"s_lshl_b32 s{T + 11}, s{SW}, 12")
                e(f"s_add_u32 s{T + 11}, s{T + 11}, {L_T0 + 16384}")
                e(f"s_mov_b32 s{R_C + 2}, 0")
                e("L_nohalf2:")
            if ii == 6:
                e(f"s_cmp_eq_u32 s{T + 15}, 1")
                e("s_cbranch_scc1 L_et2")
            wload()
        e("L_et2:")
        srd_off(R_B, S_V, T + 2, 0x20000)
        e(f"v_lshlrev_b32 v{VV}, 4, v0")
        if not k2first:
            e(f"s_mov_b32 s{T + 5}, s{ROT}")
        knext()
        ktile(thr + 2, T + 5)
        knext()
        ktile(thr + 2, T + 5)
        knext()
        e("s_waitcnt vmcnt(8)")
    else:
        srd_off(R_B, S_V, T + 2, 0x20000)
        e(f"v_lshlrev_b32 v{VV}, 4, v0")
        e(f"s_mov_b32 s{T + 5}, s{ROT}")
        for kt in range(2):
            knext()
            for q in range(4):
                if kt == 1 and q >= 2:
                    lb = e.label("w2s")
                    e(f"s_cmp_eq_u32 s{T + 15}, 1")
                    e(f"s_cbranch_scc1 {lb}")
                    wload()
                    e(f"{lb}:")
                else:
                    wload()
                e(f"s_mov_b32 m0, s{T + 4}")
                e("s_nop 0")
                e(f"buffer_load_dwordx4 v{VK + q}, s[{R_A}:{R_A + 3}], s{T + 5} offen offset:{q * 1024} {kpol} lds")
                e(f"s_waitcnt vmcnt({thr + 3})")
        knext()
        ktile(thr + 2, T + 5)
        knext()
        e("s_waitcnt vmcnt(5)")
    e("s_barrier")
    estamp(3)
    e(f"s_mov_b32 s{T + 6}, {nshallow - (3 if (wint or k2first) else 2)}")
    e("L_kloop:")
    ktile(thr, T + 5)
    knext()
    e(f"s_sub_u32 s{T + 6}, s{T + 6}, 1")
    e(f"s_cmp_lg_u32 s{T + 6}, 0")
    e("s_cbranch_scc1 L_kloop")
    estamp(4)
    if b0x:
        e("s_barrier")
    e(f"s_mov_b32 s{T + 6}, {7 - nshallow}")
    e("L_kloop2:")
    ktile(thr2, T + 5)
    knext()
    e(f"s_sub_u32 s{T + 6}, s{T + 6}, 1")
    e(f"s_cmp_lg_u32 s{T + 6}, 0")
    e("s_cbranch_scc1 L_kloop2")
    stamp(1)
    e("s_waitcnt lgkmcnt(0)")
    epoch_load()

    VB = 128

    def vtile_off(t):
        e(f"s_add_u32 s{T + 7}, s{ROT}, {t * 16384}")
        e(f"s_and_b32 s{T + 7}, s{T + 7}, 0x1ffff")

    def vload(u, k0, k1, throttle=None):
        for k in range(k0, k1):
            Tt, i = k >> 2, k & 3
            if i == 0 or k == k0:
                vtile_off(2 * u + Tt)
            r = VB + u * 32 + k * 4
            e(f"buffer_load_dwordx4 {vr(r, 4)}, v{VV}, s[{R_B}:{R_B + 3}], s{T + 7} offen offset:{i * 1024} {kpol}")
            if throttle is not None:
                e(f"s_waitcnt vmcnt({throttle})")

    vload(0, 0, 8, thr2)
    if late:
        vload(1, 0, 8, thr2)
    e(f"s_mov_b32 s{S_SC}, 0x3db504f3")
    e(f"s_mov_b32 s{S_L2E}, 0x3fb8aa3b")
    e(f"s_mov_b32 s{S_PLO}, 0x05040100")
    e(f"s_mov_b32 s{S_PHI}, 0x07060302")
    VKA = 9
    e("v_and_b32 v3, 3, v2")
    e("v_lshlrev_b32 v3, 2, v3")
    e("v_lshrrev_b32 v13, 2, v2")
    e("v_add_u32 v3, v3, v13")
    e("v_lshlrev_b32 v3, 8, v3")
    e("v_xor_b32 v13, v1, v2")
    e("v_lshl_add_u32 v3, v13, 4, v3")
    e(f"s_lshl_b32 s{T + 4}, s{SW}, 15")
    e(f"v_add_u32 v{VKA}, s{T + 4}, v3")
    e(f"v_xor_b32 v{VKA + 1}, 64, v{VKA}")
    e(f"v_xor_b32 v{VKA + 2}, 0x80, v{VKA}")
    e(f"v_xor_b32 v{VKA + 3}, 0xc0, v{VKA}")
    e("v_lshrrev_b32 v13, 2, v2")
    e("v_lshlrev_b32 v13, 8, v13")
    e("v_lshl_add_u32 v13, v1, 4, v13")
    e(f"v_add_u32 v13, {L_QB}, v13")
    e(f"s_lshl_b32 s{T + 4}, s{SW}, 8")
    e(f"s_add_u32 s{T + 4}, s{T + 4}, {L_MAX}")
    e("v_lshlrev_b32 v14, 2, v0")
    e(f"v_add_u32 v15, s{T + 4}, v14")
    e(f"v_add_u32 v14, {L_MAX}, v14")
    e(f"s_waitcnt vmcnt({16 if late else 8}) lgkmcnt(0)")
    epoch_tag()
    stamp(2)
    e("s_barrier")
    if prio:
        e("s_setprio 2")
    stamp(3)
    QF = 16
    KF = 32
    SS = 64
    for s in range(4):
        e(f"ds_read_b128 {vr(QF + 4 * s, 4)}, v13 offset:{64 * s}")

    def kread(t):
        for s in range(4):
            e(f"ds_read_b128 {vr(KF + 16 * (t & 1) + 4 * s, 4)}, v{VKA + s} offset:{t * 4096}")

    kread(0)
    for t in range(8):
        vload(1 + late, t, t + 1, thr3)
        if t < 7:
            kread(t + 1)
            e("s_waitcnt lgkmcnt(4)")
        else:
            e("s_waitcnt lgkmcnt(0)")
        for s in range(4):
            c = "0" if s == 0 else vr(SS + 4 * t, 4)
            e(f"v_mfma_f32_16x16x32_bf16 {vr(SS + 4 * t, 4)}, {vr(KF + 16 * (t & 1) + 4 * s, 4)}, {vr(QF + 4 * s, 4)}, {c}")
    stamp(4)
    TMP = 32
    e("s_nop 7")
    for p in range(16):
        a = SS + 2 * p
        t0 = TMP + (p & 1)
        if p % 4 == 1:
            vload(2 + late, p // 4, p // 4 + 1, thr3)
        e(f"v_cvt_pk_bf16_f32 v{t0}, v{a}, v{a + 1}")
        e(f"v_lshlrev_b32 v{a}, 16, v{t0}")
        e(f"v_and_b32 v{a + 1}, s{S_M16}, v{t0}")
        e(f"v_mul_f32 v{a}, s{S_SC}, v{a}")
        e(f"v_mul_f32 v{a + 1}, s{S_SC}, v{a + 1}")
        e(f"v_cvt_pk_bf16_f32 v{t0}, v{a}, v{a + 1}")
        e(f"v_lshlrev_b32 v{a}, 16, v{t0}")
        e(f"v_and_b32 v{a + 1}, s{S_M16}, v{t0}")
    MX = 34
    e(f"v_max3_f32 v{MX}, v{SS}, v{SS + 1}, v{SS + 2}")
    for k in range(3, 31, 2):
        e(f"v_max3_f32 v{MX}, v{MX}, v{SS + k}, v{SS + k + 1}")
    e(f"v_max_f32 v{MX}, v{MX}, v{SS + 31}")
    xrow_reduce("v_max_f32", MX, 35)
    e(f"ds_write_b32 v15, v{MX}")
    e("s_waitcnt lgkmcnt(0)")
    stamp(5)
    e("s_barrier")
    e(f"ds_read2st64_b32 v[36:37], v14 offset0:0 offset1:1")
    e(f"ds_read2st64_b32 v[38:39], v14 offset0:2 offset1:3")
    e("s_waitcnt lgkmcnt(0)")
    e(f"v_max3_f32 v{MX}, v36, v37, v38")
    e(f"v_max_f32 v{MX}, v{MX}, v39")
    MC = 35
    e(f"v_mul_f32 v{MC}, s{S_L2E}, v{MX}")
    PP = 40
    e(f"s_sub_u32 s{T + 10}, s{S_Y}, 23")
    e(f"s_lshl_b32 s{T + 8}, s{T + 10}, 18")
    e(f"s_lshl_b32 s{T + 9}, s{S_XI}, 7")
    e(f"s_add_u32 s{T + 8}, s{T + 8}, s{T + 9}")
    e(f"s_lshl_b32 s{T + 9}, s{SW}, 14")
    e(f"s_add_u32 s{T + 8}, s{T + 8}, s{T + 9}")
    e(f"s_add_u32 s{T + 8}, s{T + 8}, {192 * 1024}")
    e(f"s_cmp_lt_u32 s{T + 10}, 7")
    e(f"s_cselect_b32 s{T + 10}, {1792 * 1024}, 0")
    srd(R_D, S_W2, S_W2 + 1, f"s{T + 10}")
    e(f"s_lshl_b32 s{T + 9}, s{SW}, 11")
    e(f"s_add_u32 s{T + 9}, s{T + 9}, {L_W2B}")
    e("v_lshrrev_b32 v3, 3, v0")
    e("v_lshlrev_b32 v3, 10, v3")
    e("v_and_b32 v4, 7, v0")
    e("v_lshl_add_u32 v3, v4, 4, v3")
    if ("wlin" in xp or "wlinO" in xp):
        e("v_lshlrev_b32 v3, 4, v0")
        e(f"s_lshl_b32 s{T + 8}, s2, 14")
        e(f"s_and_b32 s{T + 8}, s{T + 8}, 0xfffff")

    def w2load():
        e(f"s_mov_b32 m0, s{T + 9}")
        e(f"s_add_u32 s{T + 9}, s{T + 9}, 1024")
        e(f"buffer_load_dwordx4 v3, s[{R_D}:{R_D + 3}], s{T + 8} offen {wpol} lds")
        e(f"s_add_u32 s{T + 8}, s{T + 8}, {1024 if ('wlin' in xp or 'wlinO' in xp) else 8192}")

    for p in range(16):
        a = SS + 2 * p
        e(f"v_fma_f32 v{a}, v{a}, s{S_L2E}, -v{MC}")
        e(f"v_fma_f32 v{a + 1}, v{a + 1}, s{S_L2E}, -v{MC}")
        e(f"v_exp_f32 v{a}, v{a}")
        e(f"v_exp_f32 v{a + 1}, v{a + 1}")
        if p > 0:
            e(f"v_cvt_pk_bf16_f32 v{PP + p - 1}, v{a - 2}, v{a - 1}")
        if p in (2, 5):
            w2load()
        if p >= 8 and p % 2 == 1:
            vload(2 + late, 4 + (p - 8) // 2, 5 + (p - 8) // 2, thr3)
    ACC = 64
    ACL = 96
    ONE = 100
    PT = 16
    for k in range(4):
        e(f"v_mov_b32 v{ONE + k}, 0x3f803f80")
    e(f"v_cvt_pk_bf16_f32 v{PP + 15}, v{SS + 30}, v{SS + 31}")
    e(f"s_lshl_b32 s{T + 8}, s{SW}, 8")
    e(f"s_add_u32 s{T + 8}, s{T + 8}, {L_LSUM}")
    e("v_lshlrev_b32 v6, 2, v0")
    e(f"v_add_u32 v5, s{T + 8}, v6")
    for u in range(4):
        c = "0" if u == 0 else vr(ACL, 4)
        e(f"v_mfma_f32_16x16x32_bf16 {vr(ACL, 4)}, {vr(PP + 4 * u, 4)}, {vr(ONE, 4)}, {c}")
    e("s_nop 7")
    e(f"ds_write_b32 v5, v{ACL}")
    e("s_waitcnt lgkmcnt(0)")
    stamp(6)
    e("s_barrier")
    e(f"s_lshl_b32 s{T + 12}, s{S_B}, 10")
    e(f"s_lshl_b32 s{T + 13}, s{S_XI}, 7")
    e(f"s_add_u32 s{T + 12}, s{T + 12}, s{T + 13}")
    e(f"s_lshl_b32 s{T + 13}, s{S_SP}, 4")
    e(f"s_add_u32 s{T + 12}, s{T + 12}, s{T + 13}")
    e(f"s_load_dwordx4 s[{S_RES}:{S_RES + 3}], s[{S_X}:{S_X + 1}], s{T + 12}")

    def pv(u, loads=None):
        first = u == 0
        A = vr(PP + 4 * u, 4)

        def perms(w):
            base = PT + 8 * (w & 1)
            for d in range(4):
                a = VB + u * 32 + (2 * d) * 4 + w
                b = VB + u * 32 + (2 * d + 1) * 4 + w
                e(f"v_perm_b32 v{base + d}, v{b}, v{a}, s{S_PLO}")
            for d in range(4):
                a = VB + u * 32 + (2 * d) * 4 + w
                b = VB + u * 32 + (2 * d + 1) * 4 + w
                e(f"v_perm_b32 v{base + 4 + d}, v{b}, v{a}, s{S_PHI}")

        def mf(w):
            base = PT + 8 * (w & 1)
            for hi in range(2):
                j = 2 * w + hi
                c = "0" if first else vr(ACC + 4 * j, 4)
                e(f"v_mfma_f32_16x16x32_bf16 {vr(ACC + 4 * j, 4)}, {A}, {vr(base + 4 * hi, 4)}, {c}")

        if loads:
            loads(0)
        perms(0)
        for w in range(1, 4):
            if loads:
                loads(w)
            perms(w)
            mf(w - 1)
        e("s_nop 1")
        mf(3)

    if not late:
        e("s_waitcnt vmcnt(18)")
        pv(0, lambda w: vload(3, w, w + 1))
        e("s_waitcnt vmcnt(14)")
        pv(1, lambda w: vload(3, 4 + w, 5 + w))
    srd(R_WS, S_WS, S_WS + 1, WS_SIZE)
    e(f"s_lshl_b32 s{T + 8}, s{S_XI}, 2")
    e(f"s_add_u32 s{T + 8}, s{T + 8}, s{S_B}")
    e(f"s_lshl_b32 s{T + 8}, s{T + 8}, 17")
    e(f"s_lshl_b32 s{T + 9}, s{S_SP}, 7")
    e(f"s_add_u32 s{T + 8}, s{T + 8}, s{T + 9}")
    e(f"s_lshl_b32 s{T + 9}, s{SW}, 15")
    e(f"s_add_u32 s{T + 8}, s{T + 8}, s{T + 9}")
    srd(R_C, S_WO, S_WO + 1, 4096 * 1024)
    e(f"s_lshl_b32 s{T + 9}, s{SW}, 12")
    e(f"s_add_u32 s{T + 9}, s{T + 9}, {L_WO}")
    if ("wlin" in xp or "wlinO" in xp):
        e(f"s_lshl_b32 s{T + 8}, s2, 14")
        e(f"s_lshl_b32 s{T + 10}, s{SW}, 12")
        e(f"s_add_u32 s{T + 8}, s{T + 8}, s{T + 10}")

    def woload(w=None):
        e(f"s_mov_b32 m0, s{T + 9}")
        e(f"s_add_u32 s{T + 9}, s{T + 9}, 1024")
        e(f"buffer_load_dwordx4 v3, s[{R_C}:{R_C + 3}], s{T + 8} offen {wpol} lds")
        e(f"s_add_u32 s{T + 8}, s{T + 8}, {1024 if ('wlin' in xp or 'wlinO' in xp) else 8192}")

    if not late:
        for ii in range(4):
            woload()
        e("s_waitcnt vmcnt(12)")
        e("s_barrier")
        pv(2)
    else:
        e("s_waitcnt vmcnt(26)")
        pv(0, woload)
        e("s_waitcnt vmcnt(22)")
        pv(1)
        e("s_waitcnt vmcnt(8)")
        e("s_barrier")
        pv(2)
    e(f"s_lshl_b32 s{T + 8}, s{SW}, 11")
    e("v_lshlrev_b32 v3, 5, v0")
    e(f"v_add_u32 v4, s{T + 8}, v3")
    tail_addrs()
    e("s_waitcnt vmcnt(4)")
    stamp(7)
    pv(3)
    e("s_nop 1")
    for j in range(8):
        e(f"v_mov_b32 v{16 + j}, v{ACC + 4 * j}")
    e("ds_write_b128 v4, v[16:19]")
    e("ds_write_b128 v4, v[20:23] offset:16")
    e("s_waitcnt lgkmcnt(0)")
    stamp(8)
    tstamp(1)
    e("s_barrier")
    tstamp(2)
    e("s_branch L_wts2")

    e("L_H:")
    e("s_setprio 3")
    roles()
    e("v_mov_b32 v3, 0")
    estamp(1)
    e(f"s_cmp_lg_u32 s{S_WAVE}, 0")
    e("s_cbranch_scc1 L_H23")
    e(f"s_sub_u32 s{T}, s{S_Y}, 23")
    e(f"s_cmp_lt_u32 s{T}, {7 if qx else 9}")
    e("s_cbranch_scc1 L_H23")
    P_QA, P_OUT = T + 5, T + 8
    e(f"s_lshl_b32 s{P_QA}, s{S_KH}, 1")
    if qx:
        e(f"s_lshr_b32 s{T}, s{S_HALF}, 1")
        e(f"s_add_u32 s{P_QA}, s{P_QA}, s{T}")
    e(f"s_lshl_b32 s{P_OUT}, s{S_XI}, 14")
    if "cgrot" in xp:
        e(f"s_add_u32 s{T}, s{S_SP}, 2")
        e(f"s_and_b32 s{T}, s{T}, 7")
        e(f"s_lshl_b32 s{T + 1}, s{S_KH}, 3")
        e(f"s_add_u32 s{T}, s{T}, s{T + 1}")
        e(f"s_lshl_b32 s{T}, s{T}, 10")
    else:
        e(f"s_lshl_b32 s{T}, s{S_Y}, 10")
    e(f"s_add_u32 s{P_OUT}, s{P_OUT}, s{T}")
    e(f"s_add_u32 s{P_OUT}, s{P_OUT}, {WS_Q}")
    e(f"s_lshl_b32 s{T}, s{S_L}, 1")
    e(f"s_add_u32 s{T}, s{T}, s{S_KH}")
    e(f"s_lshl_b32 s{T}, s{T}, 10")
    e(f"s_add_u32 s{T}, s{T}, {WS_H}")
    e(f"s_cmp_lt_u32 s{S_Y}, 16")
    e(f"s_cselect_b32 s{P_OUT}, s{P_OUT}, s{T}")
    if qx:
        e(f"s_lshl_b32 s{T}, s{S_XI}, 1")
        e(f"s_add_u32 s{T}, s{T}, s{S_KH}")
        e(f"s_lshl_b32 s{T}, s{T}, 10")
        e(f"s_add_u32 s{T}, s{T}, {WS_QX}")
        e(f"s_cmp_eq_u32 s{S_HALF}, 3")
        e(f"s_cselect_b32 s{P_OUT}, s{T}, s{P_OUT}")
    e("v_and_b32 v3, 3, v2")
    e("v_lshrrev_b32 v10, 2, v2")
    e("v_lshlrev_b32 v4, 10, v3")
    e("v_lshl_add_u32 v4, v10, 8, v4")
    e("v_lshl_add_u32 v4, v1, 4, v4")
    e("s_waitcnt lgkmcnt(0)")
    estamp(2)
    srd(R_B, S_X, S_X + 1, 4096)
    XR = 16
    for tau in range(4):
        e(f"buffer_load_dwordx4 {vr(XR + 4 * tau, 4)}, v4, s[{R_B}:{R_B + 3}], 0 offen offset:{64 * tau}")
    karg2()
    estamp(4)
    if rs8:
        e("v_lshlrev_b32 v14, 10, v10")
        e("v_lshl_add_u32 v14, v1, 7, v14")
    else:
        e("v_lshlrev_b32 v14, 10, v1")
        e("v_lshl_add_u32 v14, v10, 7, v14")
    e("v_lshl_add_u32 v14, v3, 3, v14")
    e(f"v_add_u32 v14, {L_T0}, v14")
    e(f"v_subrev_u32 v11, s{P_QA}, v10")
    e("v_and_b32 v11, 3, v11")
    e("v_lshlrev_b32 v5, 8, v3")
    e("v_lshl_add_u32 v5, v11, 6, v5")
    e("v_lshl_add_u32 v5, v1, 4, v5")
    e("v_cmp_ne_u32 s[64:65], 1, v11")
    e("v_cmp_ne_u32 s[66:67], 2, v11")
    e("v_cmp_ne_u32 s[68:69], 3, v11")
    e("s_waitcnt lgkmcnt(0)")
    epoch_load()
    srd(R_WS, S_WS, S_WS + 1, WS_SIZE)
    e("s_waitcnt vmcnt(0)")
    estamp(6)
    stamp(2)
    XF = 32
    for k in range(16):
        e(f"v_lshlrev_b32 v{XF + 2 * k}, 16, v{XR + k}")
        e(f"v_and_b32 v{XF + 2 * k + 1}, s{S_M16}, v{XR + k}")

    def lane_sum(r, t):
        e("s_nop 1")
        e(f"v_add_f32_dpp v{r}, v{r}, v{r} row_ror:4 row_mask:0xf bank_mask:0xf")
        e("s_nop 1")
        e(f"v_add_f32_dpp v{r}, v{r}, v{r} row_ror:8 row_mask:0xf bank_mask:0xf")
        xrow_reduce("v_add_f32", r, t)

    e(f"v_add_f32 v7, v{XF}, v{XF + 1}")
    e(f"v_add_f32 v8, v{XF + 2}, v{XF + 3}")
    for k in range(4, 32, 2):
        e(f"v_add_f32 v7, v7, v{XF + k}")
        e(f"v_add_f32 v8, v8, v{XF + k + 1}")
    e("v_add_f32 v7, v7, v8")
    lane_sum(7, 9)
    e("v_mul_f32 v7, 0x3b000000, v7")
    e(f"v_sub_f32 v12, v{XF}, v7")
    e(f"v_sub_f32 v6, v{XF + 1}, v7")
    e("v_mul_f32 v8, v12, v12")
    e("v_mul_f32 v13, v6, v6")
    for k in range(2, 32, 2):
        e(f"v_sub_f32 v12, v{XF + k}, v7")
        e(f"v_sub_f32 v6, v{XF + k + 1}, v7")
        e("v_fmac_f32 v8, v12, v12")
        e("v_fmac_f32 v13, v6, v6")
    e("v_add_f32 v8, v8, v13")
    lane_sum(8, 9)
    e("v_mul_f32 v8, 0x3b000000, v8")
    e("v_cvt_pk_bf16_f32 v9, v7, v8")
    e("v_lshlrev_b32 v7, 16, v9")
    e(f"v_and_b32 v8, s{S_M16}, v9")
    e("v_add_f32 v8, 0x3727c5ac, v8")
    e("v_cvt_pk_bf16_f32 v9, v8, v8")
    e(f"v_and_b32 v8, s{S_M16}, v9")
    e("v_sqrt_f32 v8, v8")
    e("s_nop 0")
    e("v_cvt_pk_bf16_f32 v9, v8, v8")
    e(f"v_and_b32 v8, s{S_M16}, v9")
    e("v_rcp_f32 v8, v8")
    BF = 16
    for k in range(16):
        a = XF + 2 * k
        e(f"v_sub_f32 v{a}, v{a}, v7")
        e(f"v_sub_f32 v{a + 1}, v{a + 1}, v7")
        e(f"v_cvt_pk_bf16_f32 v9, v{a}, v{a + 1}")
        e(f"v_lshlrev_b32 v{a}, 16, v9")
        e(f"v_and_b32 v{a + 1}, s{S_M16}, v9")
        e(f"v_mul_f32 v{a}, v{a}, v8")
        e(f"v_mul_f32 v{a + 1}, v{a + 1}, v8")
        e(f"v_cvt_pk_bf16_f32 v{BF + k}, v{a}, v{a + 1}")
    e("s_waitcnt lgkmcnt(0)")
    epoch_tag()
    estamp(7)
    stamp(3)
    e("s_barrier")
    estamp(8)
    stamp(4)
    AF = 64
    DD = 96

    def wread(bi):
        ct, hf = bi >> 1, bi & 1
        for t in range(4):
            r = AF + 16 * (bi & 1) + 4 * t
            tt = 4 * hf + t
            if rs8:
                o0 = (tt >> 1) * 8192 + (tt & 1) * 512 + ct * 32
                o1 = o0 + 4096
            else:
                o0 = tt * 4096 + ct * 32
                o1 = o0 + 512
            e(f"ds_read_b64_tr_b16 {vr(r, 2)}, v14 offset:{o0}")
            e(f"ds_read_b64_tr_b16 {vr(r + 2, 2)}, v14 offset:{o1}")

    wread(0)
    for bi in range(8):
        if bi < 7:
            wread(bi + 1)
            e("s_waitcnt lgkmcnt(8)")
        else:
            e("s_waitcnt lgkmcnt(0)")
        d = DD + 16 * (bi & 1) + 4 * (bi >> 1)
        for t in range(4):
            c = "0" if t == 0 else vr(d, 4)
            e(f"v_mfma_f32_16x16x32_bf16 {vr(d, 4)}, {vr(AF + 16 * (bi & 1) + 4 * t, 4)}, {vr(BF + 4 * t, 4)}, {c}")
    e(f"s_mov_b32 s{T}, 0x07060503")
    e(f"s_mov_b32 s{T + 1}, 0x07060502")
    e(f"s_mov_b32 s{T + 2}, 0x07060501")
    e("s_nop 4")
    for k in range(16):
        e(f"v_add_f32_dpp v{DD + k}, v{DD + 16 + k}, v{DD + k} row_ror:12 row_mask:0xf bank_mask:0xf")
    for ct in range(1, 4):
        e(f"s_mov_b64 vcc, s[{62 + 2 * ct}:{63 + 2 * ct}]")
        for i in range(4):
            e(f"v_cndmask_b32_dpp v{DD + i}, v{DD + 4 * ct + i}, v{DD + i}, vcc row_ror:{4 * ct} row_mask:0xf bank_mask:0xf")
    for i in range(4):
        e(f"v_add_u32 v{DD + i}, 0x80, v{DD + i}")
    for i in range(3):
        e(f"v_perm_b32 v{112 + i}, v{DD + i}, v{DD + 3}, s{T + i}")
    e("v_xor_b32 v115, v112, v113")
    e("v_xor_b32 v115, v115, v114")
    e(f"v_xor_b32 v115, s{S_TAG}, v115")
    if "nohand" not in xp:
        e(f"buffer_store_dwordx4 v[112:115], v5, {WSR}, s{P_OUT} offen sc1")
    stamp(5)
    if not b0x:
        e("s_waitcnt vmcnt(0)")
    e("L_qg:")
    if b0x:
        e("s_barrier")
    stamp(6)
    if "nohand" in xp or "pubonly" in xp:
        e("s_branch L_Hb1")
    e(f"s_lshl_b32 s{T}, s{S_XI}, 14")
    e(f"s_lshl_b32 s{T + 1}, s{S_B}, 8")
    e(f"s_add_u32 s{T}, s{T}, s{T + 1}")
    e(f"s_add_u32 s{T}, s{T}, {WS_Q}")
    e(f"s_add_u32 s{T + 1}, s{T}, 4096")
    e(f"s_add_u32 s{T + 2}, s{T}, 8192")
    e(f"s_add_u32 s{T + 3}, s{T}, 12288")
    e("v_lshlrev_b32 v5, 10, v1")
    e("v_lshl_add_u32 v5, v2, 4, v5")
    e("v_lshlrev_b32 v6, 3, v0")
    e(f"v_add_u32 v6, {L_QB}, v6")
    e(f"s_mov_b32 s{T + 4}, 0x04000c0c")
    e(f"s_mov_b32 s{T + 5}, 0x0706000c")
    QG = 16

    def unit_checks(regs, t0, t1):
        for r in regs:
            e(f"v_xor_b32 v{r + 3}, v{r + 3}, v{r}")
        for r in regs:
            e(f"v_xor_b32 v{r + 3}, v{r + 3}, v{r + 1}")
        for r in regs:
            e(f"v_xor_b32 v{r + 3}, v{r + 3}, v{r + 2}")
        tagcheck([r + 3 for r in regs], t0, t1)

    def unit_unpack(r):
        e(f"v_perm_b32 v{r + 3}, v{r}, v{r + 1}, s{T + 4}")
        e(f"v_perm_b32 v{r + 3}, v{r + 3}, v{r + 2}, s{T + 5}")
        for i in range(3):
            e(f"v_and_b32 v{r + i}, 0xffffff00, v{r + i}")

    QE = 32
    if qx:
        e(f"s_lshl_b32 s{T + 6}, s{S_XI}, 11")
        e(f"s_lshl_b32 s{T + 7}, s{S_B}, 8")
        e(f"s_add_u32 s{T + 6}, s{T + 6}, s{T + 7}")
        e(f"s_add_u32 s{T + 6}, s{T + 6}, {WS_QX}")
        e("v_lshlrev_b32 v7, 4, v2")
        e("s_mov_b32 s62, 0")
        e("s_mov_b32 s63, 0xffff0000")
    lab = poll_begin("pq")
    for kh in range(2):
        for m in range(2):
            r = QG + 8 * kh + 4 * m
            e(f"buffer_load_dwordx4 {vr(r, 4)}, v5, {WSR}, s{T + 2 * kh + m} offen sc1")
    if qx:
        lx = e.label("qx")
        e("s_mov_b64 s[66:67], exec")
        e("s_and_b64 exec, exec, s[62:63]")
        e(f"s_cbranch_execz {lx}")
        e(f"buffer_load_dwordx4 {vr(QE, 4)}, v7, {WSR}, s{T + 6} offen sc1")
        e(f"buffer_load_dwordx4 {vr(QE + 4, 4)}, v7, {WSR}, s{T + 6} offen offset:1024 sc1")
        e(f"{lx}:")
        e("s_mov_b64 exec, s[66:67]")
    e("s_waitcnt vmcnt(0)")
    if qx:
        for r in (QE, QE + 4):
            e(f"v_xor_b32 v{r + 3}, v{r + 3}, v{r}")
            e(f"v_xor_b32 v{r + 3}, v{r + 3}, v{r + 1}")
            e(f"v_xor_b32 v{r + 3}, v{r + 3}, v{r + 2}")
        e(f"v_cmp_ne_u32 s[66:67], s{S_TAG}, v{QE + 3}")
        e(f"v_cmp_ne_u32 vcc, s{S_TAG}, v{QE + 7}")
        e("s_or_b64 s[66:67], s[66:67], vcc")
        e("s_and_b64 s[66:67], s[66:67], s[62:63]")
    unit_checks([QG + 4 * k for k in range(4)], 8, 9)
    if qx:
        e("s_or_b64 vcc, vcc, s[66:67]")
    if "once" in xp:
        e("s_mov_b64 vcc, 0")
    poll_end(lab, 6)
    for k in range(4):
        unit_unpack(QG + 4 * k)
    if qx:
        unit_unpack(QE)
        unit_unpack(QE + 4)
        e("s_mov_b64 exec, s[62:63]")
        for i in range(4):
            e(f"v_add_f32 v{QG + i}, v{QG + i}, v{QE + i}")
            e(f"v_add_f32 v{QG + 8 + i}, v{QG + 8 + i}, v{QE + 4 + i}")
        e("s_mov_b64 exec, -1")
    for m in range(2):
        r = QG + 4 * m
        for i in range(4):
            e(f"v_add_f32 v{r + i}, v{r + i}, v{r + 8 + i}")
        e(f"v_cvt_pk_bf16_f32 v{r}, v{r}, v{r + 1}")
        e(f"v_cvt_pk_bf16_f32 v{r + 1}, v{r + 2}, v{r + 3}")
        e(f"ds_write_b64 v6, {vr(r, 2)} offset:{512 * m}")
    e("s_waitcnt lgkmcnt(0)")
    stamp(7)
    e("s_branch L_Hb1")

    e("L_H23:")
    e("s_waitcnt lgkmcnt(0)")
    karg2()
    e("s_waitcnt lgkmcnt(0)")
    epoch_load()
    srd(R_WS, S_WS, S_WS + 1, WS_SIZE)
    e("s_waitcnt lgkmcnt(0)")
    epoch_tag()
    if tlb:
        e(f"s_cmp_eq_u32 s{S_WAVE}, 3")
        e("s_cbranch_scc0 L_notlb")
        e(f"s_lshl_b32 s{T}, s{S_B}, 25")
        e(f"s_lshl_b32 s{T + 1}, s{S_XI}, 22")
        e(f"s_add_u32 s{T}, s{T}, s{T + 1}")
        e(f"s_lshl_b32 s{T + 1}, s{S_SP}, 17")
        e(f"s_add_u32 s{T}, s{T}, s{T + 1}")
        e(f"s_add_u32 s{T}, s{T}, 0x300000")
        e("s_mov_b64 exec, 1")
        e("v_mov_b32 v5, 0")
        srd(R_A, S_V, S_V + 1, 4 * 8 * 16384 * 256)
        e(f"buffer_load_dword v6, v5, s[{R_A}:{R_A + 3}], s{T} offen nt")
        e(f"s_lshl_b32 s{T}, s{S_XI}, 2")
        e(f"s_add_u32 s{T}, s{T}, s{S_B}")
        e(f"s_lshl_b32 s{T}, s{T}, 17")
        srd(R_A, S_WO, S_WO + 1, 4096 * 1024)
        e(f"buffer_load_dword v7, v5, s[{R_A}:{R_A + 3}], s{T} offen nt")
        e(f"s_mov_b32 s{T}, {WS_SP}")
        e(f"buffer_load_dword v8, v5, {WSR}, s{T} offen sc1")
        e("s_mov_b64 exec, -1")
        e("L_notlb:")
    e(f"s_cmp_eq_u32 s{S_WAVE}, 2")
    e("s_cbranch_scc0 L_noid")
    e(f"s_lshl_b32 s{T}, s{S_XI}, 8")
    e(f"s_lshl_b32 s{T + 1}, s{S_Y}, 3")
    e(f"s_add_u32 s{T}, s{T}, s{T + 1}")
    e(f"s_add_u32 s{T}, s{T}, {WS_ID}")
    e(f"s_getreg_b32 s{T + 2}, hwreg(HW_REG_XCC_ID, 0, 4)")
    e(f"v_mov_b32 v6, s{T + 2}")
    e(f"v_mov_b32 v7, s{S_TAG}")
    e("v_mov_b32 v5, 0")
    e("s_mov_b64 exec, 1")
    e(f"buffer_store_dwordx2 v[6:7], v5, {WSR}, s{T} offen sc1")
    e("s_mov_b64 exec, -1")
    e("L_noid:")
    e("s_barrier")
    e(f"s_cmp_eq_u32 s{S_WAVE}, 0")
    e("s_cbranch_scc1 L_qg")
    if b0x:
        e("s_barrier")

    e("L_Hb1:")
    e("s_barrier")
    if prio:
        e("s_setprio 0")
    HG = 32

    def hloads():
        for lp in range(4):
            for kh in range(2):
                r = HG + 8 * lp + 4 * kh
                e(f"buffer_load_dwordx4 {vr(r, 4)}, v3, {WSR}, s{T + (lp >> 1)} offen offset:{(lp & 1) * 2048 + 1024 * kh} sc1")

    e(f"s_sub_u32 s{T + 4}, s{S_Y}, 23")
    e(f"s_cmp_lt_u32 s{T + 4}, 7")
    e(f"s_cselect_b32 s{T + 6}, s{S_WAVE}, 0")
    if "nohand" in xp or "noh" in xp or "pubonly" in xp or "once" in xp:
        e(f"s_mov_b32 s{T + 6}, 0")
    e(f"s_cmp_eq_u32 s{T + 6}, 3")
    e("s_cbranch_scc0 L_noh1")
    e(f"s_lshl_b32 s{T}, s{T + 4}, 13")
    e(f"s_add_u32 s{T}, s{T}, {WS_H}")
    e(f"s_add_u32 s{T + 1}, s{T}, 4096")
    e("v_lshlrev_b32 v3, 4, v0")
    hloads()
    e("L_noh1:")
    e(f"s_lshl_b32 s{T + 10}, s{S_XI}, 8")
    e(f"s_add_u32 s{T + 10}, s{T + 10}, {WS_ID}")
    e("v_and_b32 v30, 31, v0")
    e("v_lshlrev_b32 v30, 3, v30")
    e(f"s_cmp_eq_u32 s{S_WAVE}, 0")
    e("s_cbranch_scc0 L_noid2")
    e(f"buffer_load_dwordx2 v[30:31], v30, {WSR}, s{T + 10} offen sc1")
    e("L_noid2:")
    e("s_barrier")
    e("s_barrier")
    stamp(8)
    e(f"s_mov_b32 s{S_SAME}, 0")
    e(f"s_cmp_eq_u32 s{S_WAVE}, 0")
    e("s_cbranch_scc0 L_noid3")
    e(f"s_getreg_b32 s{T + 10}, hwreg(HW_REG_XCC_ID, 0, 4)")
    e("s_waitcnt vmcnt(0)")
    e(f"v_cmp_ne_u32 s[64:65], s{S_TAG}, v31")
    e(f"v_cmp_ne_u32 vcc, s{T + 10}, v30")
    e("s_or_b64 vcc, vcc, s[64:65]")
    e("s_cmp_eq_u64 vcc, 0")
    e(f"s_cselect_b32 s{S_SAME}, 1, 0")
    if "noxcc" in xp:
        e(f"s_mov_b32 s{S_SAME}, 0")
    e(f"v_mov_b32 v30, {L_SCALE + 16}")
    e(f"v_mov_b32 v31, s{S_SAME}")
    e("ds_write_b32 v30, v31")
    e("L_noid3:")
    e(f"s_cmp_eq_u32 s{T + 6}, 3")
    e("s_cbranch_scc0 L_noh2")
    e("v_lshlrev_b32 v6, 9, v1")
    e("v_lshl_add_u32 v6, v2, 3, v6")
    e(f"v_add_u32 v6, {L_HB}, v6")
    e(f"s_mov_b32 s{T + 4}, 0x04000c0c")
    e(f"s_mov_b32 s{T + 5}, 0x0706000c")
    lab = e.label("ph")
    e(f"s_mov_b32 s{T + 17}, {POLL_LIMIT}")
    e(f"{lab}:")
    e("s_waitcnt vmcnt(0)")
    unit_checks([HG + 4 * k for k in range(8)], 8, 9)
    e("s_cmp_eq_u64 vcc, 0")
    e(f"s_cbranch_scc1 {lab}_d")
    e(f"s_sub_u32 s{T + 17}, s{T + 17}, 1")
    e(f"s_cbranch_scc1 {lab}_d")
    e("s_sleep 4")
    hloads()
    e(f"s_branch {lab}")
    e(f"{lab}_d:")
    for k in range(8):
        unit_unpack(HG + 4 * k)
    for lp in range(4):
        r = HG + 8 * lp
        for i in range(4):
            e(f"v_add_f32 v{r + i}, v{r + i}, v{r + 4 + i}")
        for i in range(4):
            e(f"v_max_f32 v{r + i}, 0, v{r + i}")
        e(f"v_cvt_pk_bf16_f32 v{r}, v{r}, v{r + 1}")
        e(f"v_cvt_pk_bf16_f32 v{r + 1}, v{r + 2}, v{r + 3}")
        e(f"ds_write_b64 v6, {vr(r, 2)} offset:{128 * lp}")
    e("L_noh2:")
    e(f"s_cmp_eq_u32 s{S_WAVE}, 2")
    e("s_cbranch_scc0 L_nolse")
    e("v_lshlrev_b32 v3, 2, v0")
    e(f"ds_read2st64_b32 v[6:7], v3 offset0:{L_LSUM // 256} offset1:{L_LSUM // 256 + 1}")
    e(f"ds_read2st64_b32 v[8:9], v3 offset0:{L_LSUM // 256 + 2} offset1:{L_LSUM // 256 + 3}")
    e("v_lshlrev_b32 v4, 4, v1")
    e(f"v_add_u32 v4, {L_MAX}, v4")
    e("ds_read2st64_b32 v[10:11], v4 offset0:0 offset1:1")
    e("ds_read2st64_b32 v[12:13], v4 offset0:2 offset1:3")
    e(f"s_mov_b32 s{S_L2E}, 0x3fb8aa3b")
    e(f"s_lshl_b32 s{T}, s{S_XI}, 12")
    e(f"s_lshl_b32 s{T + 1}, s{S_B}, 10")
    e(f"s_add_u32 s{T}, s{T}, s{T + 1}")
    e(f"s_add_u32 s{T}, s{T}, {WS_LSE}")
    e(f"s_lshl_b32 s{T + 1}, s{S_SP}, 7")
    e(f"s_add_u32 s{T + 1}, s{T + 1}, s{T}")
    e("s_waitcnt lgkmcnt(0)")
    e("v_add_f32 v6, v6, v7")
    e("v_add_f32 v8, v8, v9")
    e("v_max3_f32 v10, v10, v11, v12")
    e("v_add_f32 v6, v6, v8")
    e("v_max_f32 v10, v10, v13")
    e("v_rcp_f32 v11, v6")
    e("v_log_f32 v6, v6")
    e(f"v_mul_f32 v10, s{S_L2E}, v10")
    e("v_lshlrev_b32 v5, 3, v1")
    e("v_add_f32 v6, v6, v10")
    e(f"v_mov_b32 v7, s{S_TAG}")
    e("v_cmp_eq_u32 vcc, 0, v2")
    e("s_and_saveexec_b64 s[64:65], vcc")
    e(f"buffer_store_dwordx2 v[6:7], v5, {WSR}, s{T + 1} offen sc1")
    e("s_mov_b64 exec, s[64:65]")
    e("v_lshlrev_b32 v5, 2, v1")
    e(f"v_add_u32 v5, {L_SCALE}, v5")
    e("v_cmp_eq_u32 vcc, 0, v2")
    e("s_and_saveexec_b64 s[64:65], vcc")
    e("ds_write_b32 v5, v11")
    e("s_mov_b64 exec, s[64:65]")
    e("L_nolse:")
    WF = 32
    e("v_lshrrev_b32 v10, 2, v2")
    e("v_and_b32 v11, 3, v2")
    e("v_lshlrev_b32 v4, 10, v1")
    e("v_lshl_add_u32 v4, v10, 7, v4")
    e("v_lshl_add_u32 v4, v11, 3, v4")
    e(f"s_lshl_b32 s{T}, s{S_WAVE}, 5")
    e(f"v_add_u32 v4, s{T}, v4")
    e("v_lshlrev_b32 v6, 9, v11")
    e("v_lshl_add_u32 v6, v1, 4, v6")
    e(f"v_add_u32 v6, {L_HB}, v6")
    e("v_lshlrev_b32 v9, 6, v2")
    e("v_lshl_add_u32 v9, v1, 4, v9")
    e(f"v_mov_b32 v17, s{S_TAG}")
    e(f"v_mov_b32 v19, s{S_TAG}")
    e("s_waitcnt lgkmcnt(0)")
    e("s_barrier")
    e(f"s_cmp_eq_u32 s{S_WAVE}, 1")
    e("s_cbranch_scc0 L_noid4")
    e(f"v_mov_b32 v30, {L_SCALE + 16}")
    e("ds_read_b32 v30, v30")
    e("s_waitcnt lgkmcnt(0)")
    e(f"v_readfirstlane_b32 s{S_SAME}, v30")
    e("L_noid4:")
    e(f"s_sub_u32 s{T + 4}, s{S_Y}, 23")
    e(f"s_cmp_ge_u32 s{T + 4}, 7")
    e("s_cbranch_scc1 L_nog2")
    e(f"v_add_u32 v7, {L_T0}, v4")
    for t in range(8):
        ad, off = ("v7", t * 4096) if t < 6 else ("v4", L_W2B + (t - 6) * 4096)
        e(f"ds_read_b64_tr_b16 {vr(64 + 4 * t, 2)}, {ad} offset:{off}")
        e(f"ds_read_b64_tr_b16 {vr(64 + 4 * t + 2, 2)}, {ad} offset:{off + 512}")
        if t == 3:
            e("s_waitcnt lgkmcnt(4)")
    e("s_waitcnt lgkmcnt(4)")
    for t in range(8):
        e(f"ds_read_b128 {vr(128 + 4 * t, 4)}, v6 offset:{64 * t}")
    e("s_waitcnt lgkmcnt(0)")
    for t in range(8):
        c = "0" if t == 0 else "v[12:15]"
        e(f"v_mfma_f32_16x16x32_bf16 v[12:15], {vr(64 + 4 * t, 4)}, {vr(128 + 4 * t, 4)}, {c}")
    e("s_nop 7")
    e("v_cvt_pk_bf16_f32 v20, v12, v13")
    e("v_cvt_pk_bf16_f32 v22, v14, v15")
    e(f"s_lshl_b32 s{T}, s{S_XI}, 15")
    e(f"s_lshl_b32 s{T + 1}, s{T + 4}, 10")
    e(f"s_add_u32 s{T}, s{T}, s{T + 1}")
    e(f"s_lshl_b32 s{T + 1}, s{S_WAVE}, 8")
    e(f"s_add_u32 s{T}, s{T}, s{T + 1}")
    e(f"s_add_u32 s{T}, s{T}, {WS_GP}")
    e(f"v_mov_b32 v21, s{S_TAG}")
    e(f"v_mov_b32 v23, s{S_TAG}")
    e("v_cmp_gt_u32 vcc, 4, v2")
    e("s_and_saveexec_b64 s[64:65], vcc")
    e(f"buffer_store_dwordx4 v[20:23], v9, {WSR}, s{T} offen sc1")
    e("s_mov_b64 exec, s[64:65]")
    e("L_nog2:")
    e("v_lshrrev_b32 v24, 5, v0")
    e(f"s_lshl_b32 s{T}, s{S_WAVE}, 1")
    e(f"v_add_u32 v24, s{T}, v24")
    e("v_and_b32 v25, 31, v0")
    e("v_lshlrev_b32 v25, 4, v25")
    e("v_lshl_add_u32 v26, v24, 9, v25")
    e("v_lshl_add_u32 v27, v24, 14, v25")
    e("v_lshlrev_b32 v28, 2, v24")
    e(f"v_add_u32 v28, {L_SCALE}, v28")
    e(f"s_lshl_b32 s{T + 11}, s{S_XI}, 16")
    e(f"s_lshl_b32 s{T + 1}, s{S_SP}, 11")
    e(f"s_add_u32 s{T + 11}, s{T + 11}, s{T + 1}")
    e(f"s_lshl_b32 s{T + 1}, s{S_B}, 9")
    e(f"s_add_u32 s{T + 11}, s{T + 11}, s{T + 1}")
    e(f"s_add_u32 s{T + 11}, s{T + 11}, {WS_OP}")
    e(f"v_mov_b32 v81, s{S_TAG}")
    e(f"v_mov_b32 v83, s{S_TAG}")
    e(f"s_lshl_b32 s{T + 14}, s{S_XI}, 2")
    e(f"s_add_u32 s{T + 14}, s{T + 14}, s{S_B}")
    e(f"s_lshl_b32 s{T + 14}, s{T + 14}, 10")
    e(f"s_lshl_b32 s{T + 1}, s{S_SP}, 15")
    e(f"s_add_u32 s{T + 14}, s{T + 14}, s{T + 1}")
    e(f"s_lshl_b32 s{T + 1}, s{S_WAVE}, 8")
    e(f"s_add_u32 s{T + 14}, s{T + 14}, s{T + 1}")
    e(f"s_add_u32 s{T + 14}, s{T + 14}, {WS_SP}")
    e("v_and_b32 v12, 3, v2")
    e("v_lshlrev_b32 v12, 8, v12")
    e("v_lshl_add_u32 v12, v1, 4, v12")
    e(f"v_add_u32 v12, {L_OBF}, v12")
    e(f"v_add_u32 v4, {L_WO}, v4")
    tail_addrs()
    stamp(9)

    tstamp(1)
    if prio:
        e("s_setprio 3")
    e("s_barrier")
    tstamp(2)
    e(f"s_cmp_lt_u32 s{S_WAVE}, 2")
    e("s_cbranch_scc0 L_nopub")
    for sw_ in range(4):
        e(f"ds_read_b128 {vr(64 + 4 * sw_, 4)}, v26 offset:{sw_ * 2048}")
    e("ds_read_b32 v29, v28")
    e("s_waitcnt lgkmcnt(0)")
    for i in range(4):
        e(f"v_add_f32 v{64 + i}, v{64 + i}, v{68 + i}")
        e(f"v_add_f32 v{72 + i}, v{72 + i}, v{76 + i}")
    for i in range(4):
        e(f"v_add_f32 v{64 + i}, v{64 + i}, v{72 + i}")
    for i in range(4):
        e(f"v_mul_f32 v{64 + i}, v{64 + i}, v29")
    e("v_cvt_pk_bf16_f32 v80, v64, v65")
    e("v_cvt_pk_bf16_f32 v82, v66, v67")
    e(f"s_cmp_eq_u32 s{S_SAME}, 1")
    e("s_cbranch_scc1 L_publ")
    e(f"buffer_store_dwordx4 v[80:83], v27, {WSR}, s{T + 11} offen sc1")
    e("s_branch L_pubs")
    e("L_publ:")
    e(f"buffer_store_dwordx4 v[80:83], v27, {WSR}, s{T + 11} offen")
    e("L_pubs:")
    tstamp(3)
    e("L_nopub:")
    e("L_wts2:")
    lse_loads()
    tstamp(5)
    if hint:
        e("v_lshlrev_b32 v6, 11, v0")
        e("v_add_u32 v6, 252, v6")
        e("s_mov_b64 exec, 0xff")
        lab = poll_begin("ph2")
        e(f"buffer_load_dword v8, v6, {WSR}, s{T} offen sc1")
        e("s_waitcnt vmcnt(0)")
        tagcheck([8], 0, 0)
        poll_end(lab, tsleep)
    def oloads():
        e(f"buffer_load_dwordx4 v[{OG}:{OG + 3}], v{VO}, {WSR}, s{S_O0} offen sc1")
        e(f"buffer_load_dwordx4 v[{OG + 4}:{OG + 7}], v{VO}, {WSR}, s{S_O1} offen sc1")

    oloads()
    e("s_waitcnt vmcnt(2)")
    weights(waited=True)
    tstamp(4)
    lab = e.label("po")
    e(f"s_mov_b32 s{T + 17}, {POLL_LIMIT}")
    e(f"s_branch {lab}_c")
    e(f"{lab}:")
    oloads()
    e(f"{lab}_c:")
    e("s_waitcnt vmcnt(0)")
    tagcheck([OG + 1, OG + 3, OG + 5, OG + 7], 8, 7)
    poll_end(lab, tsleep)
    stamp(10)
    tstamp(6)
    e(f"v_lshlrev_b32 v56, 16, v{OG}")
    e(f"v_and_b32 v57, s{S_M16}, v{OG}")
    e(f"v_lshlrev_b32 v58, 16, v{OG + 2}")
    e(f"v_and_b32 v59, s{S_M16}, v{OG + 2}")
    e(f"v_lshlrev_b32 v60, 16, v{OG + 4}")
    e(f"v_and_b32 v61, s{S_M16}, v{OG + 4}")
    e(f"v_lshlrev_b32 v62, 16, v{OG + 6}")
    e(f"v_and_b32 v63, s{S_M16}, v{OG + 6}")
    for i in range(4):
        e(f"v_mul_f32 v{56 + i}, v{56 + i}, v110")
    for i in range(4):
        e(f"v_fmac_f32 v{56 + i}, v{60 + i}, v111")
    e("s_nop 0")
    e("v_permlane32_swap_b32 v56, v58")
    e("v_permlane32_swap_b32 v57, v59")
    e("s_nop 0")
    e("v_add_f32 v56, v56, v58")
    e("v_add_f32 v57, v57, v59")
    e("s_nop 1")
    e("v_permlane16_swap_b32 v56, v57")
    e("s_nop 1")
    e("v_add_f32 v56, v56, v57")
    e("v_cvt_pk_bf16_f32 v56, v56, v56")
    e(f"ds_write_b16 v{VL}, v56")
    e("s_waitcnt vmcnt(0) lgkmcnt(0)")
    e("s_barrier")
    tstamp(7)
    e(f"s_cmp_lt_u32 s{S_WAVE}, 4")
    e("s_cbranch_scc0 L_final")
    BB = 96
    for t in range(4):
        e(f"ds_read_b128 {vr(BB + 4 * t, 4)}, v12 offset:{64 * t}")
        e(f"ds_read_b64_tr_b16 {vr(WF + 4 * t, 2)}, v4 offset:{t * 4096}")
        e(f"ds_read_b64_tr_b16 {vr(WF + 4 * t + 2, 2)}, v4 offset:{t * 4096 + 512}")
    e("v_cmp_gt_u32 vcc, 4, v2")
    for t in range(4):
        e(f"s_waitcnt lgkmcnt({9 - 3 * t})")
        c = "0" if t == 0 else "v[12:15]"
        e(f"v_mfma_f32_16x16x32_bf16 v[12:15], {vr(WF + 4 * t, 4)}, {vr(BB + 4 * t, 4)}, {c}")
    e("s_nop 7")
    e("v_cvt_pk_bf16_f32 v16, v12, v13")
    e("v_cvt_pk_bf16_f32 v18, v14, v15")
    e("s_and_saveexec_b64 s[64:65], vcc")
    e(f"buffer_store_dwordx4 v[16:19], v9, {WSR}, s{T + 14} offen {spst}")
    stamp(11)
    stamp_flush()
    e("s_endpgm")

    e("L_final:")
    e(f"s_cmp_gt_u32 s{S_WAVE}, 5")
    e("s_cbranch_scc0 L_fin0")
    stamp_flush()
    e("s_endpgm")
    e("L_fin0:")
    e("v_lshrrev_b32 v3, 1, v0")
    e("v_lshlrev_b32 v3, 10, v3")
    e("v_and_b32 v4, 1, v0")
    e("v_lshl_add_u32 v3, v4, 4, v3")
    e(f"s_lshl_b32 s{T}, s{S_XI}, 15")
    e(f"s_lshl_b32 s{T + 1}, s{S_B}, 6")
    e(f"s_add_u32 s{T}, s{T}, s{T + 1}")
    e(f"s_lshr_b32 s{T + 1}, s{S_SP}, 1")
    e(f"s_lshl_b32 s{T + 1}, s{T + 1}, 8")
    e(f"s_add_u32 s{T}, s{T}, s{T + 1}")
    e(f"s_and_b32 s{T + 1}, s{S_SP}, 1")
    e(f"s_lshl_b32 s{T + 1}, s{T + 1}, 5")
    e(f"s_add_u32 s{T}, s{T}, s{T + 1}")
    e(f"s_lshl_b32 s{T + 4}, s{S_B}, 10")
    e(f"s_lshl_b32 s{T + 5}, s{S_XI}, 7")
    e(f"s_add_u32 s{T + 4}, s{T + 4}, s{T + 5}")
    e(f"s_lshl_b32 s{T + 5}, s{S_SP}, 4")
    e(f"s_add_u32 s{T + 4}, s{T + 4}, s{T + 5}")
    e("v_lshlrev_b32 v5, 3, v4")
    e("v_lshlrev_b32 v6, 5, v4")
    e(f"v_add_u32 v6, {L_FIN}, v6")

    def unpack4(dst, lo, hi):
        e(f"v_lshlrev_b32 v{dst}, 16, v{lo}")
        e(f"v_and_b32 v{dst + 1}, s{S_M16}, v{lo}")
        e(f"v_lshlrev_b32 v{dst + 2}, 16, v{hi}")
        e(f"v_and_b32 v{dst + 3}, s{S_M16}, v{hi}")

    def red32(base):
        e("s_nop 0")
        for rot in (2, 4, 8):
            for i in range(4):
                e(f"v_add_f32_dpp v{base + i}, v{base + i}, v{base + i} row_ror:{rot} row_mask:0xf bank_mask:0xf")
        for sw_ in ("v_permlane16_swap_b32", "v_permlane32_swap_b32"):
            for i in range(4):
                e(f"v_mov_b32 v{base + 4 + i}, v{base + i}")
            e("s_nop 0")
            for i in range(4):
                e(f"{sw_} v{base + 4 + i}, v{base + i}")
            for i in range(4):
                e(f"v_add_f32 v{base + i}, v{base + i}, v{base + 4 + i}")

    e(f"s_cmp_eq_u32 s{S_WAVE}, 4")
    e("s_cbranch_scc1 L_fins")
    e(f"s_add_u32 s{T + 2}, s{T}, {WS_GP}")
    e("v_cmp_gt_u32 s[66:67], 14, v0")
    e("v_cmp_eq_u32 vcc, 1, v4")
    e(f"v_mov_b32 v20, s{S_RES}")
    e(f"v_mov_b32 v21, s{S_RES + 1}")
    e(f"v_mov_b32 v22, s{S_RES + 2}")
    e(f"v_mov_b32 v23, s{S_RES + 3}")
    e("v_cndmask_b32 v20, v20, v22, vcc")
    e("v_cndmask_b32 v21, v21, v23, vcc")
    lab = poll_begin("pgp")
    e(f"buffer_load_dwordx4 v[32:35], v3, {WSR}, s{T + 2} offen sc1")
    e("s_waitcnt vmcnt(0)")
    tagcheck([33, 35], 0, 0)
    e("s_and_b64 vcc, vcc, s[66:67]")
    poll_end(lab, tsleep)
    e("v_cndmask_b32 v32, 0, v32, s[66:67]")
    e("v_cndmask_b32 v34, 0, v34, s[66:67]")
    unpack4(24, 32, 34)
    red32(24)
    e("v_cvt_pk_bf16_f32 v8, v24, v25")
    e("v_cvt_pk_bf16_f32 v9, v26, v27")
    unpack4(24, 8, 9)
    e(f"s_mov_b32 s{T + 5}, 0xbfb8aa3b")
    for i in range(4):
        e(f"v_mul_f32 v{28 + i}, s{T + 5}, v{24 + i}")
    for i in range(4):
        e(f"v_exp_f32 v{28 + i}, v{28 + i}")
    e("s_nop 0")
    for i in range(4):
        e(f"v_add_f32 v{28 + i}, 1.0, v{28 + i}")
    for i in range(4):
        e(f"v_rcp_f32 v{28 + i}, v{28 + i}")
    e("s_nop 0")
    for i in range(4):
        e(f"v_mul_f32 v{24 + i}, v{24 + i}, v{28 + i}")
    e("v_cvt_pk_bf16_f32 v8, v24, v25")
    e("v_cvt_pk_bf16_f32 v9, v26, v27")
    unpack4(24, 8, 9)
    unpack4(28, 20, 21)
    e("s_mov_b64 exec, 3")
    e("ds_write_b128 v6, v[24:27]")
    e("ds_write_b128 v6, v[28:31] offset:16")
    e("s_waitcnt lgkmcnt(0)")
    tstamp(8)
    e("s_barrier")
    stamp_flush()
    e("s_endpgm")
    e("L_fins:")
    e(f"s_add_u32 s{T + 3}, s{T}, {WS_SP}")
    srd(R_B, S_OUT, S_OUT + 1, 4096)
    e("v_lshlrev_b32 v7, 2, v1")
    e("v_add_u32 v6, v6, v7")
    e("v_lshl_add_u32 v5, v1, 1, v5")
    e("s_mov_b32 s62, 0x00030003")
    e("s_mov_b32 s63, 0x00030003")
    lab = poll_begin("psp")
    e(f"buffer_load_dwordx4 v[32:35], v3, {WSR}, s{T + 3} offen {spld}")
    e("s_waitcnt vmcnt(0)")
    tagcheck([33, 35], 0, 0)
    poll_end(lab, tsleep)
    tstamp(9)
    unpack4(40, 32, 34)
    e("s_nop 0")
    e("v_permlane32_swap_b32 v40, v42")
    e("v_permlane32_swap_b32 v41, v43")
    e("s_nop 0")
    e("v_add_f32 v40, v40, v42")
    e("v_add_f32 v41, v41, v43")
    e("s_nop 1")
    e("v_permlane16_swap_b32 v40, v41")
    e("s_nop 1")
    e("v_add_f32 v40, v40, v41")
    for rot in (2, 4, 8):
        e("s_nop 1")
        e(f"v_add_f32_dpp v40, v40, v40 row_ror:{rot} row_mask:0xf bank_mask:0xf")
    e("s_barrier")
    e("ds_read2_b32 v[24:25], v6 offset0:0 offset1:4")
    e("v_cvt_pk_bf16_f32 v8, v40, v40")
    e("v_lshlrev_b32 v40, 16, v8")
    e("s_waitcnt lgkmcnt(0)")
    e("v_mul_f32 v40, v40, v24")
    e("v_cvt_pk_bf16_f32 v8, v40, v40")
    e("v_lshlrev_b32 v40, 16, v8")
    e("v_add_f32 v40, v40, v25")
    e("v_cvt_pk_bf16_f32 v8, v40, v40")
    e("s_mov_b64 exec, s[62:63]")
    e(f"buffer_store_short v8, v5, s[{R_B}:{R_B + 3}], s{T + 4} offen")
    e("s_cmp_eq_u32 s2, 0")
    e("s_cbranch_scc0 L_noep")
    e("s_mov_b64 exec, 1")
    e(f"v_mov_b32 v6, {WS_E}")
    e(f"v_mov_b32 v7, s{S_TAG}")
    e(f"buffer_store_dword v7, v6, {WSR}, 0 offen")
    e("L_noep:")
    stamp(11)
    stamp_flush()
    e("L_end:")
    e("s_endpgm")
    e(f".fill ({20480 if diag else 16384} - (. - {KN}_kernel)) / 4, 4, 0xbf800000")
    e('.section .rodata,"a"')
    e(".p2align 6")
    e(f".amdhsa_kernel {KN}_kernel")
    e("  .amdhsa_next_free_vgpr 256")
    e("  .amdhsa_next_free_sgpr 102")
    e("  .amdhsa_accum_offset 256")
    e("  .amdhsa_group_segment_fixed_size 0")
    e("  .amdhsa_kernarg_size 88")
    e("  .amdhsa_user_sgpr_count 2")
    e("  .amdhsa_user_sgpr_kernarg_segment_ptr 1")
    e("  .amdhsa_system_sgpr_workgroup_id_x 1")
    e(".end_amdhsa_kernel")
    return e.text()


if __name__ == "__main__":
    import argparse
    ap = argparse.ArgumentParser()
    ap.add_argument("-o", default="k.s")
    ap.add_argument("--diag", action="store_true")
    ap.add_argument("--early", action="store_true")
    ap.add_argument("--thr", type=int, default=7)
    ap.add_argument("--kpol", default="nt")
    ap.add_argument("--wpol", default="nt")
    ap.add_argument("--hint", action="store_true")
    ap.add_argument("--thr2", type=int, default=9)
    ap.add_argument("--nshallow", type=int, default=5)
    ap.add_argument("--light", action="store_true")
    ap.add_argument("--tail", action="store_true")
    ap.add_argument("--wint", action="store_true")
    ap.add_argument("--thr3", type=int, default=9)
    ap.add_argument("--tlb", action="store_true")
    ap.add_argument("--k2", action="store_true")
    ap.add_argument("--prio", action="store_true")
    ap.add_argument("--nob0x", action="store_true")
    ap.add_argument("--noqx", action="store_true")
    ap.add_argument("--rs8", action="store_true")
    ap.add_argument("--late", type=int, default=1)
    ap.add_argument("--pfn", type=int, default=8)
    ap.add_argument("--spld", default="sc1")
    ap.add_argument("--spst", default="sc1")
    ap.add_argument("--xp", default="")
    ap.add_argument("--tsleep", type=int, default=1)
    a = ap.parse_args()
    open(a.o, "w").write(gen(diag=a.diag, thr=a.thr, kpol=a.kpol, wpol=a.wpol, early=a.early, hint=a.hint, thr2=a.thr2, nshallow=a.nshallow, tsleep=a.tsleep, light=a.light, xp=tuple(a.xp.split(',')), tailst=a.tail, spld=a.spld, spst=a.spst, wint=a.wint, pfn=a.pfn, late=a.late, rs8=a.rs8, qx=not a.noqx, b0x=not a.nob0x, k2first=a.k2, prio=a.prio, tlb=a.tlb, thr3=a.thr3))
```

```python
import sys

KN = "recurrent_scan__sliding_block_cached__dense_activation_relu__decode"

WS_E = 0x00000
WS_LSE = 0x01000
WS_ID = 0x0A000
WS_Q = 0x10000
WS_QX = 0x30000
WS_H = 0x90000
WS_OP = 0xD0000
WS_SP = 0x150000
WS_GP = 0x190000
WS_SIZE = 0x1D0000
WS_STAMP = 0x200000

L_K = 0
L_RED = 0
L_LSUM = 8192
L_OBF = 10240
L_T0 = 131072
L_QB = L_T0 + 24576
L_MAX = L_T0 + 25600
L_SCALE = L_T0 + 26624
L_HB = L_T0 + 28672
L_FIN = 12288
L_W2B = 16384
L_WO = 32768
LDS_BYTES = 163840

POLL_LIMIT = 200000
EPOCH_STEP = 0x9E3779B9

HEADER = """; Kernarg layout for this problem (88 bytes, ptrs only, base s[0:1]):
;
"""


class Asm:
    def __init__(self):
        self.L = []
        self.nlab = 0

    def __call__(self, s):
        for line in s.split("\n"):
            line = line.strip()
            if line:
                self.L.append(line)

    def label(self, base):
        self.nlab += 1
        return f"L_{base}_{self.nlab}"

    def text(self):
        out = []
        for l in self.L:
            if l.endswith(":") or l.startswith(".") or l.startswith(";"):
                out.append(l)
            else:
                out.append("    " + l)
        return "\n".join(out) + "\n"


def vr(a, n=1):
    return f"v{a}" if n == 1 else f"v[{a}:{a + n - 1}]"


def gen(diag=False, thr=7, kpol="nt", wpol="nt", early=False, hint=False, tsleep=1, thr2=9, light=False, nshallow=5, xp=(), tailst=False, spld='sc1', spst='sc1', wint=False, pfn=8, late=1, rs8=False, qx=True, b0x=True, k2first=False, prio=False, tlb=False, thr3=9, thr0=None, par=True):
    e = Asm()
    PF2 = True
    S_X, S_K, S_V, S_WQ, S_WO, S_BX, S_W1, S_W2 = 4, 6, 8, 10, 12, 14, 16, 18
    S_OUT, S_DBG, S_WS = 20, 22, 24
    S_XI, S_Y, S_WAVE, S_B, S_SP, S_TAG = 26, 27, 28, 29, 30, 31
    R_A, R_B, R_WS, R_C, R_D = 32, 36, 40, 44, 48
    T = 52
    S_STAMP = 72
    S_M16, S_SC, S_L2E, S_PLO, S_PHI = 96, 97, 98, 99, 100
    S_RES = 48
    S_O0, S_O1 = 14, 15
    OG = 48
    VO, VL = 105, 112
    S_SAME = 101
    WSR = f"s[{R_WS}:{R_WS + 3}]"

    def estamp(k):
        if diag and early:
            e(f"s_memrealtime s[{S_STAMP + 2 * k}:{S_STAMP + 2 * k + 1}]")
            e("s_waitcnt lgkmcnt(0)")

    def tstamp(k):
        if diag and tailst:
            e(f"s_memrealtime s[{S_STAMP + 2 * k}:{S_STAMP + 2 * k + 1}]")
            e("s_waitcnt lgkmcnt(0)")

    def stamp(k):
        if diag and tailst:
            if k == 11:
                tstamp(11)
            return
        if diag and not (early and k != 11) and not (light and k not in (8, 10, 11)):
            assert k < 12
            e(f"s_memrealtime s[{S_STAMP + 2 * k}:{S_STAMP + 2 * k + 1}]")
            e("s_waitcnt lgkmcnt(0)")

    def stamp_flush():
        if diag:
            e("s_waitcnt vmcnt(0) lgkmcnt(0)")
            e(f"s_lshl_b32 s{T}, s2, 3")
            e(f"s_add_u32 s{T}, s{T}, s{S_WAVE}")
            e(f"s_lshl_b32 s{T}, s{T}, 7")
            e(f"s_add_u32 s{T}, s{T}, {WS_STAMP}")
            e("s_mov_b64 exec, 1")
            e(f"v_mov_b32 v1, s{T}")
            for k in range(12):
                e(f"v_mov_b32 v2, s{S_STAMP + 2 * k}")
                e(f"v_mov_b32 v3, s{S_STAMP + 2 * k + 1}")
                e(f"global_store_dwordx2 v1, v[2:3], s[{S_WS}:{S_WS + 1}] offset:{8 * k}")
            e("s_waitcnt vmcnt(0)")

    def karg2():
        e("s_load_dwordx2 s[20:21], s[0:1], 64")
        e("s_load_dwordx2 s[24:25], s[0:1], 80")

    def epoch_load():
        if "wsend" in xp:
            e(f"s_add_u32 s{S_WS}, s{S_WS}, {512 * 1024 * 1024 - 4 * 1024 * 1024}")
            e(f"s_addc_u32 s{S_WS + 1}, s{S_WS + 1}, 0")
        e(f"s_load_dword s{S_TAG}, s[{S_WS}:{S_WS + 1}], {WS_E}")

    def epoch_tag():
        e(f"s_add_u32 s{S_TAG}, s{S_TAG}, {EPOCH_STEP:#x}")

    def srd(r, lo, hi, size):
        if lo != r:
            e(f"s_mov_b32 s{r}, s{lo}")
            e(f"s_mov_b32 s{r + 1}, s{hi}")
        e(f"s_mov_b32 s{r + 2}, {size}")
        e(f"s_mov_b32 s{r + 3}, 0x20000")

    def srd_off(r, base, soff, size):
        e(f"s_add_u32 s{r}, s{base}, s{soff}")
        e(f"s_addc_u32 s{r + 1}, s{base + 1}, 0")
        e(f"s_mov_b32 s{r + 2}, {size}")
        e(f"s_mov_b32 s{r + 3}, 0x20000")

    def poll_begin(name):
        lab = e.label(name)
        e(f"s_mov_b32 s{T + 17}, {POLL_LIMIT}")
        e(f"{lab}:")
        return lab

    def poll_end(lab, sleep=1, masked=True):
        done = lab + "_d"
        e("s_cmp_eq_u64 vcc, 0")
        e(f"s_cbranch_scc1 {done}")
        e(f"s_sub_u32 s{T + 17}, s{T + 17}, 1")
        e(f"s_cbranch_scc1 {done}")
        if masked and "nomask" not in xp:
            e("s_mov_b64 exec, vcc")
        if sleep:
            e(f"s_sleep {sleep}")
        e(f"s_branch {lab}")
        e(f"{done}:")
        if masked:
            e("s_mov_b64 exec, -1")

    def tagcheck(tags, t0, t1):
        if len(tags) == 1:
            e(f"v_cmp_ne_u32 vcc, s{S_TAG}, v{tags[0]}")
            return
        if len(tags) == 2:
            e(f"v_cmp_ne_u32 s[{T + 12}:{T + 13}], s{S_TAG}, v{tags[0]}")
            e(f"v_cmp_ne_u32 vcc, s{S_TAG}, v{tags[1]}")
            e(f"s_or_b64 vcc, vcc, s[{T + 12}:{T + 13}]")
            return
        for op, acc in (("max", t0), ("min", t1)):
            rest = list(tags)
            if len(rest) >= 3:
                e(f"v_{op}3_u32 v{acc}, v{rest[0]}, v{rest[1]}, v{rest[2]}")
                rest = rest[3:]
            while len(rest) >= 2:
                e(f"v_{op}3_u32 v{acc}, v{acc}, v{rest[0]}, v{rest[1]}")
                rest = rest[2:]
            if rest:
                e(f"v_{op}_u32 v{acc}, v{acc}, v{rest[0]}")
        e(f"v_cmp_ne_u32 s[{T + 12}:{T + 13}], s{S_TAG}, v{t0}")
        e(f"v_cmp_ne_u32 vcc, s{S_TAG}, v{t1}")
        e(f"s_or_b64 vcc, vcc, s[{T + 12}:{T + 13}]")

    def xrow_reduce(op, r, t):
        e(f"v_mov_b32 v{t}, v{r}")
        e("s_nop 1")
        e(f"v_permlane32_swap_b32 v{t}, v{r}")
        e("s_nop 1")
        e(f"{op} v{r}, v{t}, v{r}")
        e(f"v_mov_b32 v{t}, v{r}")
        e("s_nop 1")
        e(f"v_permlane16_swap_b32 v{t}, v{r}")
        e("s_nop 1")
        e(f"{op} v{r}, v{t}, v{r}")

    LA, LV = 104, 106

    def lse_addr():
        e(f"s_lshl_b32 s{T + 15}, s{S_XI}, 12")
        e(f"s_lshr_b32 s{T + 16}, s{S_WAVE}, 1")
        e(f"s_lshl_b32 s{T + 16}, s{T + 16}, 10")
        e(f"s_add_u32 s{T + 15}, s{T + 15}, s{T + 16}")
        e(f"s_lshl_b32 s{T + 16}, s{S_B}, 3")
        e(f"s_add_u32 s{T + 15}, s{T + 15}, s{T + 16}")
        e(f"s_add_u32 s{T + 15}, s{T + 15}, {WS_LSE}")
        e(f"v_lshlrev_b32 v{LA}, 7, v1")

    def lse_loads():
        e(f"buffer_load_dwordx2 v[{LV}:{LV + 1}], v{LA}, {WSR}, s{T + 15} offen sc1")
        e(f"buffer_load_dwordx2 v[{LV + 2}:{LV + 3}], v{LA}, {WSR}, s{T + 15} offen offset:512 sc1")

    def tail_addrs():
        lse_addr()
        e(f"s_lshl_b32 s{S_O0}, s{S_XI}, 16")
        e(f"s_lshl_b32 s{S_O1}, s{S_B}, 14")
        e(f"s_add_u32 s{S_O0}, s{S_O0}, s{S_O1}")
        e(f"s_lshl_b32 s{S_O1}, s{S_WAVE}, 8")
        e(f"s_add_u32 s{S_O0}, s{S_O0}, s{S_O1}")
        e(f"s_add_u32 s{S_O0}, s{S_O0}, {WS_OP}")
        e(f"s_add_u32 s{S_O1}, s{S_O0}, 8192")
        e(f"v_lshlrev_b32 v{VO}, 11, v1")
        e(f"v_lshl_add_u32 v{VO}, v2, 4, v{VO}")
        e(f"s_lshl_b32 s{T + 9}, s{S_WAVE}, 7")
        e(f"s_add_u32 s{T + 9}, s{T + 9}, {L_OBF}")
        e(f"v_lshlrev_b32 v{VL}, 3, v2")
        e(f"v_lshl_add_u32 v{VL}, v1, 1, v{VL}")
        e(f"v_add_u32 v{VL}, s{T + 9}, v{VL}")


    def weights(waited=False):
        lab = e.label("pw")
        e(f"s_mov_b32 s{T + 17}, {POLL_LIMIT}")
        if waited:
            e(f"s_branch {lab}_c")
        e(f"{lab}:")
        e("s_waitcnt vmcnt(0)")
        if waited:
            e(f"{lab}_c:")
        tagcheck([LV + 1, LV + 3], 0, 0)
        e("s_cmp_eq_u64 vcc, 0")
        e(f"s_cbranch_scc1 {lab}_d")
        e(f"s_sub_u32 s{T + 17}, s{T + 17}, 1")
        e(f"s_cbranch_scc1 {lab}_d")
        e("s_mov_b64 exec, vcc")
        e("s_sleep 2")
        lse_loads()
        e(f"s_branch {lab}")
        e(f"{lab}_d:")
        e("s_mov_b64 exec, -1")
        e(f"v_max_f32 v110, v{LV}, v{LV + 2}")
        xrow_reduce("v_max_f32", 110, 111)
        e(f"v_sub_f32 v{LV}, v{LV}, v110")
        e(f"v_sub_f32 v{LV + 2}, v{LV + 2}, v110")
        e(f"v_exp_f32 v{LV}, v{LV}")
        e(f"v_exp_f32 v{LV + 2}, v{LV + 2}")
        e("s_nop 0")
        e(f"v_add_f32 v110, v{LV}, v{LV + 2}")
        xrow_reduce("v_add_f32", 110, 111)
        e("v_rcp_f32 v110, v110")
        e("s_nop 0")
        e(f"v_mul_f32 v111, v{LV + 2}, v110")
        e(f"v_mul_f32 v110, v{LV}, v110")

    for l in HEADER.strip("\n").split("\n"):
        e.L.append(l)
    e.L.append(f"; @launch grid=(256,1,1) block=(512,1,1) lds={LDS_BYTES}")
    e('.amdgcn_target "amdgcn-amd-amdhsa--gfx950"')
    e(".text")
    e(f".globl {KN}_kernel")
    e(".p2align 8")
    e(f".type {KN}_kernel,@function")
    e(f"{KN}_kernel:")
    if diag:
        e(f"s_memrealtime s[{S_STAMP}:{S_STAMP + 1}]")
    e("s_cmp_ge_u32 s2, 256")
    e("s_cbranch_scc1 L_end")
    e("s_load_dwordx16 s[4:19], s[0:1], 0")
    e("v_lshrrev_b32 v1, 6, v0")
    e(f"s_and_b32 s{S_XI}, s2, 7")
    e(f"s_lshr_b32 s{S_Y}, s2, 3")
    e(f"v_readfirstlane_b32 s{S_WAVE}, v1")
    if pfn < 256:
        e(f"s_cmp_lt_u32 s2, {pfn}")
        e("s_cbranch_scc0 L_nopf")
    e("s_getpc_b64 s[60:61]")
    e("L_pc:")
    e(f"s_sub_u32 s60, s60, L_pc-{KN}_kernel")
    e("s_subb_u32 s61, s61, 0")
    e("v_lshlrev_b32 v1, 4, v0")
    e("global_load_dword v255, v1, s[60:61]")
    e("v_add_u32 v1, 0x2000, v1")
    e("global_load_dword v255, v1, s[60:61]")
    e("L_nopf:")
    e("v_and_b32 v0, 63, v0")
    e(f"s_lshr_b32 s{S_B}, s{S_Y}, 3")
    e(f"s_and_b32 s{S_SP}, s{S_Y}, 7")
    e("v_lshrrev_b32 v1, 4, v0")
    e("v_and_b32 v2, 15, v0")
    e(f"s_cmp_lt_u32 s{S_WAVE}, 4")
    e("s_cbranch_scc1 L_H")

    S_L, S_KH = 70, 71
    S_I2, S_C2 = 22, 23
    S_HALF = 3

    def roles():
        e(f"s_mov_b32 s{S_M16}, 0xffff0000")
        e("v_mov_b32 v9, 0")
        if not par:
            e(f"s_sub_u32 s{S_L}, s{S_Y}, 16")
            e(f"s_lshl_b32 s{S_L}, s{S_L}, 3")
            e(f"s_add_u32 s{S_L}, s{S_L}, s{S_XI}")
            e(f"s_sub_u32 s{S_I2}, s{S_Y}, 23")
            e(f"s_mov_b32 s{S_C2}, s{S_XI}")
            e(f"s_cmp_lt_u32 s{S_Y}, 16")
            e(f"s_cselect_b32 s{S_KH}, s{S_B}, s{S_L}")
            e(f"s_and_b32 s{S_KH}, s{S_KH}, 1")
            e(f"s_lshr_b32 s{S_L}, s{S_L}, 1")
        else:
            e(f"s_lshr_b32 s{S_L}, s{S_XI}, 1")
            e(f"s_mul_i32 s{S_L}, s{S_L}, 14")
            e(f"s_sub_u32 s{S_C2}, s{S_Y}, 16")
            e(f"s_add_u32 s{S_L}, s{S_L}, s{S_C2}")
            e(f"s_cmp_lt_u32 s{S_C2}, 14")
            e(f"s_cselect_b32 s{S_L}, s{S_L}, 0x1ff")
            e(f"s_and_b32 s{S_C2}, s{S_L}, 7")
            e(f"s_lshr_b32 s{S_I2}, s{S_L}, 3")
            e(f"s_bitcmp1_b32 s{S_XI}, 0")
            e(f"s_cselect_b32 s{S_I2}, 63, s{S_I2}")
            e(f"s_cselect_b32 s{S_L}, s{S_L}, 0x1ff")
            e(f"s_cmp_lt_u32 s{S_Y}, 16")
            e(f"s_cselect_b32 s{S_KH}, s{S_B}, s{S_L}")
            e(f"s_and_b32 s{S_KH}, s{S_KH}, 1")
            e(f"s_lshr_b32 s{S_L}, s{S_L}, 1")
        if qx:
            e(f"s_and_b32 s{T + 16}, s{S_Y}, 1")
            e(f"s_cmp_ge_u32 s{S_Y}, 30")
            e(f"s_cselect_b32 s{S_KH}, s{T + 16}, s{S_KH}")
            e(f"s_cselect_b32 s{T + 16}, 3, 0")
            e(f"s_and_b32 s{S_HALF}, s{S_Y}, 0x17")
            e(f"s_cmp_eq_u32 s{S_HALF}, 3")
            e(f"s_cselect_b32 s{S_HALF}, 1, s{T + 16}")

    SW = T
    ROT = T + 1
    VK = 4
    VV = 8
    e(f"s_sub_u32 s{SW}, s{S_WAVE}, 4")
    e(f"s_lshl_b32 s{T + 2}, s{S_B}, 25")
    e(f"s_lshl_b32 s{T + 3}, s{S_XI}, 22")
    e(f"s_add_u32 s{T + 2}, s{T + 2}, s{T + 3}")
    e(f"s_lshl_b32 s{T + 3}, s{S_SP}, 17")
    e(f"s_add_u32 s{T + 2}, s{T + 2}, s{T + 3}")
    e(f"s_add_u32 s{T + 2}, s{T + 2}, 0x300000")
    e(f"s_add_u32 s{ROT}, s{S_XI}, s{S_Y}")
    e(f"s_add_u32 s{ROT}, s{ROT}, s{SW}")
    e(f"s_and_b32 s{ROT}, s{ROT}, 31")
    e(f"s_lshl_b32 s{ROT}, s{ROT}, 12")
    e("v_lshlrev_b32 v3, 2, v1")
    e("v_xor_b32 v3, v2, v3")
    e("v_lshlrev_b32 v3, 4, v3")
    e(f"v_lshl_add_u32 v{VK}, v1, 8, v3")
    e(f"v_xor_b32 v{VK + 1}, 16, v{VK}")
    e(f"v_xor_b32 v{VK + 2}, 32, v{VK}")
    e(f"v_xor_b32 v{VK + 3}, 48, v{VK}")
    e(f"s_lshl_b32 s{T + 4}, s{SW}, 15")
    e(f"s_mov_b32 m0, s{T + 4}")
    e(f"s_mov_b32 s{R_A + 2}, 0x20000")
    e(f"s_mov_b32 s{R_A + 3}, 0x20000")
    estamp(1)
    e("s_waitcnt lgkmcnt(0)")
    estamp(2)
    e(f"s_add_u32 s{R_A}, s{S_K}, s{T + 2}")
    e(f"s_addc_u32 s{R_A + 1}, s{S_K + 1}, 0")

    def ktile(th, off=None):
        so = f"s{ROT}" if off is None else f"s{off}"
        for q in range(4):
            e(f"buffer_load_dwordx4 v{VK + q}, s[{R_A}:{R_A + 3}], {so} offen offset:{q * 1024} {kpol} lds")
            if th is not None:
                e(f"s_waitcnt vmcnt({th})")

    def knext():
        e(f"s_add_u32 s{T + 4}, s{T + 4}, 4096")
        e(f"s_mov_b32 m0, s{T + 4}")
        e(f"s_add_u32 s{T + 5}, s{T + 5}, 16384")
        e(f"s_and_b32 s{T + 5}, s{T + 5}, 0x1ffff")

    ktile(None)
    if k2first:
        e(f"s_mov_b32 s{T + 5}, s{ROT}")
        knext()
        ktile(None, T + 5)
    karg2()
    roles()
    e(f"s_mov_b32 s{T + 14}, s{S_I2}")
    e(f"s_lshl_b32 s{T + 8}, s{S_KH}, 2")
    e(f"s_add_u32 s{T + 8}, s{T + 8}, s{SW}")
    e(f"s_lshl_b32 s{T + 8}, s{T + 8}, 6")
    e(f"s_mul_i32 s{T + 9}, s{SW}, 48")
    e(f"s_lshl_b32 s{T + 10}, s{T + 14}, 8")
    e(f"s_add_u32 s{T + 9}, s{T + 9}, s{T + 10}")
    e(f"s_cmp_lt_u32 s{T + 14}, 7")
    e(f"s_cselect_b32 s{T + 8}, s{T + 9}, s{T + 8}")
    e(f"s_cselect_b32 s{T + 15}, 1, 0")
    e(f"s_lshl_b32 s{T + 12}, s{SW}, 13")
    e(f"s_cmp_eq_u32 s{T + 15}, 1")
    e(f"s_mul_i32 s{T + 11}, s{SW}, 6144")
    e(f"s_cselect_b32 s{T + 11}, s{T + 11}, s{T + 12}")
    e(f"s_add_u32 s{T + 11}, s{T + 11}, {L_T0}")
    e(f"s_lshl_b32 s{T + 9}, s{S_XI}, 10")
    if "cgrot" in xp:
        e(f"s_add_u32 s{T + 10}, s{S_SP}, 2")
        e(f"s_and_b32 s{T + 10}, s{T + 10}, 7")
        e(f"s_lshl_b32 s{T + 10}, s{T + 10}, 7")
    else:
        e(f"s_lshl_b32 s{T + 10}, s{S_SP}, 7")
    e(f"s_add_u32 s{T + 9}, s{T + 9}, s{T + 10}")
    e(f"s_mov_b32 s{T + 10}, 8192")
    e(f"s_mov_b32 s{T + 12}, {512 * 8192}")
    e(f"s_mov_b32 s{R_C}, s{S_WQ}")
    e(f"s_mov_b32 s{R_C + 1}, s{S_WQ + 1}")
    if qx:
        e(f"s_cmp_eq_u32 s{S_HALF}, 0")
        e("s_cbranch_scc1 L_nohalf")
        e(f"s_lshl_b32 s{T + 8}, s{S_KH}, 1")
        e(f"s_lshr_b32 s{T + 9}, s{S_HALF}, 1")
        e(f"s_add_u32 s{T + 8}, s{T + 8}, s{T + 9}")
        e(f"s_lshl_b32 s{T + 8}, s{T + 8}, 2")
        e(f"s_add_u32 s{T + 8}, s{T + 8}, s{SW}")
        e(f"s_lshl_b32 s{T + 8}, s{T + 8}, 5")
        e(f"s_lshl_b32 s{T + 11}, s{SW}, 12")
        e(f"s_add_u32 s{T + 11}, s{T + 11}, {L_T0}")
        e(f"s_lshl_b32 s{T + 9}, s{S_XI}, 10")
        e(f"s_add_u32 s{T + 9}, s{T + 9}, 384")
        e("s_branch L_et")
        e("L_nohalf:")
    e(f"s_cmp_lt_u32 s{S_Y}, 16")
    e("s_cbranch_scc1 L_et")
    e(f"s_lshl_b32 s{T + 9}, s{S_L}, 7")
    e(f"s_mov_b32 s{T + 10}, 3584")
    e(f"s_mov_b32 s{T + 12}, {512 * 3584}")
    e(f"s_mov_b32 s{R_C}, s{S_W1}")
    e(f"s_mov_b32 s{R_C + 1}, s{S_W1 + 1}")
    e(f"s_cmp_lt_u32 s{S_L}, 28")
    e("s_cbranch_scc1 L_et")
    e(f"s_lshl_b32 s{T + 9}, s{S_C2}, 7")
    e(f"s_mov_b32 s{T + 10}, 1024")
    e(f"s_mov_b32 s{R_C}, s{S_W2}")
    e(f"s_mov_b32 s{R_C + 1}, s{S_W2 + 1}")
    e(f"s_cmp_eq_u32 s{T + 15}, 1")
    e(f"s_cselect_b32 s{T + 12}, {1792 * 1024}, 0")
    e("L_et:")
    e(f"s_mul_i32 s{T + 8}, s{T + 8}, s{T + 10}")
    e(f"s_add_u32 s{T + 8}, s{T + 8}, s{T + 9}")
    e(f"s_lshl_b32 s{T + 9}, s{T + 10}, 3")
    e(f"s_mov_b32 s{R_C + 2}, s{T + 12}")
    e(f"s_mov_b32 s{R_C + 3}, 0x20000")
    if rs8:
        e(f"s_cmp_lt_u32 s{S_Y}, 23")
        e(f"s_cselect_b32 s{T + 13}, s{T + 9}, s{T + 10}")
        e(f"s_cselect_b32 s{T + 9}, s{T + 10}, s{T + 9}")
    else:
        e(f"s_mov_b32 s{T + 13}, s{T + 10}")
    e("v_lshrrev_b32 v9, 3, v0")
    e(f"v_mul_lo_u32 v9, v9, s{T + 13}")
    e("v_and_b32 v10, 7, v0")
    e("v_lshl_add_u32 v11, v10, 4, v9")
    if "wlin" in xp or "wlinE" in xp:
        e("v_lshlrev_b32 v11, 4, v0")
        e(f"s_lshl_b32 s{T + 8}, s2, 15")
        e(f"s_lshl_b32 s{T + 9}, s{SW}, 13")
        e(f"s_add_u32 s{T + 8}, s{T + 8}, s{T + 9}")
        e(f"s_mov_b32 s{T + 9}, 1024")
        e(f"s_cmp_eq_u32 s{R_C + 2}, 0")
        e(f"s_cselect_b32 s{R_C + 2}, 0, 0x1000000")
        e(f"s_mov_b32 s{R_C}, s{S_K}")
        e(f"s_mov_b32 s{R_C + 1}, s{S_K + 1}")
    def wload():
        e(f"s_mov_b32 m0, s{T + 11}")
        e(f"s_add_u32 s{T + 11}, s{T + 11}, 1024")
        e(f"buffer_load_dwordx4 v11, s[{R_C}:{R_C + 3}], s{T + 8} offen {wpol} lds")
        e(f"s_add_u32 s{T + 8}, s{T + 8}, s{T + 9}")

    if not wint:
        for ii in range(8):
            if ii == 4 and qx:
                e(f"s_cmp_eq_u32 s{S_HALF}, 0")
                e("s_cbranch_scc1 L_nohalf2")
                e(f"s_lshl_b32 s{T + 11}, s{SW}, 12")
                e(f"s_add_u32 s{T + 11}, s{T + 11}, {L_T0 + 16384}")
                e(f"s_mov_b32 s{R_C + 2}, 0")
                e("L_nohalf2:")
            if ii == 6:
                e(f"s_cmp_eq_u32 s{T + 15}, 1")
                e("s_cbranch_scc1 L_et2")
            wload()
        e("L_et2:")
        srd_off(R_B, S_V, T + 2, 0x20000)
        e(f"v_lshlrev_b32 v{VV}, 4, v0")
        if not k2first:
            e(f"s_mov_b32 s{T + 5}, s{ROT}")
        t0 = thr + 2 if thr0 is None else thr0
        knext()
        ktile(t0, T + 5)
        knext()
        ktile(t0, T + 5)
        knext()
        e("s_waitcnt vmcnt(8)")
    else:
        srd_off(R_B, S_V, T + 2, 0x20000)
        e(f"v_lshlrev_b32 v{VV}, 4, v0")
        e(f"s_mov_b32 s{T + 5}, s{ROT}")
        for kt in range(2):
            knext()
            for q in range(4):
                if kt == 1 and q >= 2:
                    lb = e.label("w2s")
                    e(f"s_cmp_eq_u32 s{T + 15}, 1")
                    e(f"s_cbranch_scc1 {lb}")
                    wload()
                    e(f"{lb}:")
                else:
                    wload()
                e(f"s_mov_b32 m0, s{T + 4}")
                e("s_nop 0")
                e(f"buffer_load_dwordx4 v{VK + q}, s[{R_A}:{R_A + 3}], s{T + 5} offen offset:{q * 1024} {kpol} lds")
                e(f"s_waitcnt vmcnt({thr + 3})")
        knext()
        ktile(thr + 2, T + 5)
        knext()
        e("s_waitcnt vmcnt(5)")
    e("s_barrier")
    estamp(3)
    e(f"s_mov_b32 s{T + 6}, {nshallow - (3 if (wint or k2first) else 2)}")
    e("L_kloop:")
    ktile(thr, T + 5)
    knext()
    e(f"s_sub_u32 s{T + 6}, s{T + 6}, 1")
    e(f"s_cmp_lg_u32 s{T + 6}, 0")
    e("s_cbranch_scc1 L_kloop")
    estamp(4)
    if b0x:
        e("s_barrier")
    e(f"s_mov_b32 s{T + 6}, {7 - nshallow}")
    e("L_kloop2:")
    ktile(thr2, T + 5)
    knext()
    e(f"s_sub_u32 s{T + 6}, s{T + 6}, 1")
    e(f"s_cmp_lg_u32 s{T + 6}, 0")
    e("s_cbranch_scc1 L_kloop2")
    stamp(1)
    e("s_waitcnt lgkmcnt(0)")
    epoch_load()

    VB = 128

    def vtile_off(t):
        e(f"s_add_u32 s{T + 7}, s{ROT}, {t * 16384}")
        e(f"s_and_b32 s{T + 7}, s{T + 7}, 0x1ffff")

    def vload(u, k0, k1, throttle=None):
        for k in range(k0, k1):
            Tt, i = k >> 2, k & 3
            if i == 0 or k == k0:
                vtile_off(2 * u + Tt)
            r = VB + u * 32 + k * 4
            e(f"buffer_load_dwordx4 {vr(r, 4)}, v{VV}, s[{R_B}:{R_B + 3}], s{T + 7} offen offset:{i * 1024} {kpol}")
            if throttle is not None:
                e(f"s_waitcnt vmcnt({throttle})")

    vload(0, 0, 8, thr2)
    if late:
        vload(1, 0, 8, thr2)
    e(f"s_mov_b32 s{S_SC}, 0x3db504f3")
    e(f"s_mov_b32 s{S_L2E}, 0x3fb8aa3b")
    e(f"s_mov_b32 s{S_PLO}, 0x05040100")
    e(f"s_mov_b32 s{S_PHI}, 0x07060302")
    VKA = 9
    e("v_and_b32 v3, 3, v2")
    e("v_lshlrev_b32 v3, 2, v3")
    e("v_lshrrev_b32 v13, 2, v2")
    e("v_add_u32 v3, v3, v13")
    e("v_lshlrev_b32 v3, 8, v3")
    e("v_xor_b32 v13, v1, v2")
    e("v_lshl_add_u32 v3, v13, 4, v3")
    e(f"s_lshl_b32 s{T + 4}, s{SW}, 15")
    e(f"v_add_u32 v{VKA}, s{T + 4}, v3")
    e(f"v_xor_b32 v{VKA + 1}, 64, v{VKA}")
    e(f"v_xor_b32 v{VKA + 2}, 0x80, v{VKA}")
    e(f"v_xor_b32 v{VKA + 3}, 0xc0, v{VKA}")
    e("v_lshrrev_b32 v13, 2, v2")
    e("v_lshlrev_b32 v13, 8, v13")
    e("v_lshl_add_u32 v13, v1, 4, v13")
    e(f"v_add_u32 v13, {L_QB}, v13")
    e(f"s_lshl_b32 s{T + 4}, s{SW}, 8")
    e(f"s_add_u32 s{T + 4}, s{T + 4}, {L_MAX}")
    e("v_lshlrev_b32 v14, 2, v0")
    e(f"v_add_u32 v15, s{T + 4}, v14")
    e(f"v_add_u32 v14, {L_MAX}, v14")
    e(f"s_waitcnt vmcnt({16 if late else 8}) lgkmcnt(0)")
    epoch_tag()
    stamp(2)
    e("s_barrier")
    if prio:
        e("s_setprio 2")
    stamp(3)
    QF = 16
    KF = 32
    SS = 64
    for s in range(4):
        e(f"ds_read_b128 {vr(QF + 4 * s, 4)}, v13 offset:{64 * s}")

    def kread(t):
        for s in range(4):
            e(f"ds_read_b128 {vr(KF + 16 * (t & 1) + 4 * s, 4)}, v{VKA + s} offset:{t * 4096}")

    kread(0)
    for t in range(8):
        vload(1 + late, t, t + 1, thr3)
        if t < 7:
            kread(t + 1)
            e("s_waitcnt lgkmcnt(4)")
        else:
            e("s_waitcnt lgkmcnt(0)")
        for s in range(4):
            c = "0" if s == 0 else vr(SS + 4 * t, 4)
            e(f"v_mfma_f32_16x16x32_bf16 {vr(SS + 4 * t, 4)}, {vr(KF + 16 * (t & 1) + 4 * s, 4)}, {vr(QF + 4 * s, 4)}, {c}")
    stamp(4)
    TMP = 32
    e("s_nop 7")
    for p in range(16):
        a = SS + 2 * p
        t0 = TMP + (p & 1)
        if p % 4 == 1:
            vload(2 + late, p // 4, p // 4 + 1, thr3)
        e(f"v_cvt_pk_bf16_f32 v{t0}, v{a}, v{a + 1}")
        e(f"v_lshlrev_b32 v{a}, 16, v{t0}")
        e(f"v_and_b32 v{a + 1}, s{S_M16}, v{t0}")
        e(f"v_mul_f32 v{a}, s{S_SC}, v{a}")
        e(f"v_mul_f32 v{a + 1}, s{S_SC}, v{a + 1}")
        e(f"v_cvt_pk_bf16_f32 v{t0}, v{a}, v{a + 1}")
        e(f"v_lshlrev_b32 v{a}, 16, v{t0}")
        e(f"v_and_b32 v{a + 1}, s{S_M16}, v{t0}")
    MX = 34
    e(f"v_max3_f32 v{MX}, v{SS}, v{SS + 1}, v{SS + 2}")
    for k in range(3, 31, 2):
        e(f"v_max3_f32 v{MX}, v{MX}, v{SS + k}, v{SS + k + 1}")
    e(f"v_max_f32 v{MX}, v{MX}, v{SS + 31}")
    xrow_reduce("v_max_f32", MX, 35)
    e(f"ds_write_b32 v15, v{MX}")
    e("s_waitcnt lgkmcnt(0)")
    stamp(5)
    e("s_barrier")
    e(f"ds_read2st64_b32 v[36:37], v14 offset0:0 offset1:1")
    e(f"ds_read2st64_b32 v[38:39], v14 offset0:2 offset1:3")
    e("s_waitcnt lgkmcnt(0)")
    e(f"v_max3_f32 v{MX}, v36, v37, v38")
    e(f"v_max_f32 v{MX}, v{MX}, v39")
    MC = 35
    e(f"v_mul_f32 v{MC}, s{S_L2E}, v{MX}")
    PP = 40
    e(f"s_mov_b32 s{T + 10}, s{S_I2}")
    e(f"s_lshl_b32 s{T + 8}, s{T + 10}, 18")
    e(f"s_lshl_b32 s{T + 9}, s{S_C2}, 7")
    e(f"s_add_u32 s{T + 8}, s{T + 8}, s{T + 9}")
    e(f"s_lshl_b32 s{T + 9}, s{SW}, 14")
    e(f"s_add_u32 s{T + 8}, s{T + 8}, s{T + 9}")
    e(f"s_add_u32 s{T + 8}, s{T + 8}, {192 * 1024}")
    e(f"s_cmp_lt_u32 s{T + 10}, 7")
    e(f"s_cselect_b32 s{T + 10}, {1792 * 1024}, 0")
    srd(R_D, S_W2, S_W2 + 1, f"s{T + 10}")
    e(f"s_lshl_b32 s{T + 9}, s{SW}, 11")
    e(f"s_add_u32 s{T + 9}, s{T + 9}, {L_W2B}")
    e("v_lshrrev_b32 v3, 3, v0")
    e("v_lshlrev_b32 v3, 10, v3")
    e("v_and_b32 v4, 7, v0")
    e("v_lshl_add_u32 v3, v4, 4, v3")
    if ("wlin" in xp or "wlinO" in xp):
        e("v_lshlrev_b32 v3, 4, v0")
        e(f"s_lshl_b32 s{T + 8}, s2, 14")
        e(f"s_and_b32 s{T + 8}, s{T + 8}, 0xfffff")

    def w2load():
        e(f"s_mov_b32 m0, s{T + 9}")
        e(f"s_add_u32 s{T + 9}, s{T + 9}, 1024")
        e(f"buffer_load_dwordx4 v3, s[{R_D}:{R_D + 3}], s{T + 8} offen {wpol} lds")
        e(f"s_add_u32 s{T + 8}, s{T + 8}, {1024 if ('wlin' in xp or 'wlinO' in xp) else 8192}")

    for p in range(16):
        a = SS + 2 * p
        e(f"v_fma_f32 v{a}, v{a}, s{S_L2E}, -v{MC}")
        e(f"v_fma_f32 v{a + 1}, v{a + 1}, s{S_L2E}, -v{MC}")
        e(f"v_exp_f32 v{a}, v{a}")
        e(f"v_exp_f32 v{a + 1}, v{a + 1}")
        if p > 0:
            e(f"v_cvt_pk_bf16_f32 v{PP + p - 1}, v{a - 2}, v{a - 1}")
        if p in (2, 5):
            w2load()
        if p >= 8 and p % 2 == 1:
            vload(2 + late, 4 + (p - 8) // 2, 5 + (p - 8) // 2, thr3)
    ACC = 64
    ACL = 96
    ONE = 100
    PT = 16
    for k in range(4):
        e(f"v_mov_b32 v{ONE + k}, 0x3f803f80")
    e(f"v_cvt_pk_bf16_f32 v{PP + 15}, v{SS + 30}, v{SS + 31}")
    e(f"s_lshl_b32 s{T + 8}, s{SW}, 8")
    e(f"s_add_u32 s{T + 8}, s{T + 8}, {L_LSUM}")
    e("v_lshlrev_b32 v6, 2, v0")
    e(f"v_add_u32 v5, s{T + 8}, v6")
    for u in range(4):
        c = "0" if u == 0 else vr(ACL, 4)
        e(f"v_mfma_f32_16x16x32_bf16 {vr(ACL, 4)}, {vr(PP + 4 * u, 4)}, {vr(ONE, 4)}, {c}")
    e("s_nop 7")
    e(f"ds_write_b32 v5, v{ACL}")
    e("s_waitcnt lgkmcnt(0)")
    stamp(6)
    e("s_barrier")
    e(f"s_lshl_b32 s{T + 12}, s{S_B}, 10")
    e(f"s_lshl_b32 s{T + 13}, s{S_XI}, 7")
    e(f"s_add_u32 s{T + 12}, s{T + 12}, s{T + 13}")
    e(f"s_lshl_b32 s{T + 13}, s{S_SP}, 4")
    e(f"s_add_u32 s{T + 12}, s{T + 12}, s{T + 13}")
    e(f"s_load_dwordx4 s[{S_RES}:{S_RES + 3}], s[{S_X}:{S_X + 1}], s{T + 12}")

    def pv(u, loads=None):
        first = u == 0
        A = vr(PP + 4 * u, 4)

        def perms(w):
            base = PT + 8 * (w & 1)
            for d in range(4):
                a = VB + u * 32 + (2 * d) * 4 + w
                b = VB + u * 32 + (2 * d + 1) * 4 + w
                e(f"v_perm_b32 v{base + d}, v{b}, v{a}, s{S_PLO}")
            for d in range(4):
                a = VB + u * 32 + (2 * d) * 4 + w
                b = VB + u * 32 + (2 * d + 1) * 4 + w
                e(f"v_perm_b32 v{base + 4 + d}, v{b}, v{a}, s{S_PHI}")

        def mf(w):
            base = PT + 8 * (w & 1)
            for hi in range(2):
                j = 2 * w + hi
                c = "0" if first else vr(ACC + 4 * j, 4)
                e(f"v_mfma_f32_16x16x32_bf16 {vr(ACC + 4 * j, 4)}, {A}, {vr(base + 4 * hi, 4)}, {c}")

        if loads:
            loads(0)
        perms(0)
        for w in range(1, 4):
            if loads:
                loads(w)
            perms(w)
            mf(w - 1)
        e("s_nop 1")
        mf(3)

    if not late:
        e("s_waitcnt vmcnt(18)")
        pv(0, lambda w: vload(3, w, w + 1))
        e("s_waitcnt vmcnt(14)")
        pv(1, lambda w: vload(3, 4 + w, 5 + w))
    srd(R_WS, S_WS, S_WS + 1, WS_SIZE)
    e(f"s_lshl_b32 s{T + 8}, s{S_XI}, 2")
    e(f"s_add_u32 s{T + 8}, s{T + 8}, s{S_B}")
    e(f"s_lshl_b32 s{T + 8}, s{T + 8}, 17")
    e(f"s_lshl_b32 s{T + 9}, s{S_SP}, 7")
    e(f"s_add_u32 s{T + 8}, s{T + 8}, s{T + 9}")
    e(f"s_lshl_b32 s{T + 9}, s{SW}, 15")
    e(f"s_add_u32 s{T + 8}, s{T + 8}, s{T + 9}")
    srd(R_C, S_WO, S_WO + 1, 4096 * 1024)
    e(f"s_lshl_b32 s{T + 9}, s{SW}, 12")
    e(f"s_add_u32 s{T + 9}, s{T + 9}, {L_WO}")
    if ("wlin" in xp or "wlinO" in xp):
        e(f"s_lshl_b32 s{T + 8}, s2, 14")
        e(f"s_lshl_b32 s{T + 10}, s{SW}, 12")
        e(f"s_add_u32 s{T + 8}, s{T + 8}, s{T + 10}")

    def woload(w=None):
        e(f"s_mov_b32 m0, s{T + 9}")
        e(f"s_add_u32 s{T + 9}, s{T + 9}, 1024")
        e(f"buffer_load_dwordx4 v3, s[{R_C}:{R_C + 3}], s{T + 8} offen {wpol} lds")
        e(f"s_add_u32 s{T + 8}, s{T + 8}, {1024 if ('wlin' in xp or 'wlinO' in xp) else 8192}")

    if not late:
        for ii in range(4):
            woload()
        e("s_waitcnt vmcnt(12)")
        e("s_barrier")
        pv(2)
    else:
        e("s_waitcnt vmcnt(26)")
        pv(0, woload)
        e("s_waitcnt vmcnt(22)")
        pv(1)
        e("s_waitcnt vmcnt(8)")
        e("s_barrier")
        pv(2)
    e(f"s_lshl_b32 s{T + 8}, s{SW}, 11")
    e("v_lshlrev_b32 v3, 5, v0")
    e(f"v_add_u32 v4, s{T + 8}, v3")
    tail_addrs()
    e("s_waitcnt vmcnt(4)")
    stamp(7)
    pv(3)
    e("s_nop 1")
    for j in range(8):
        e(f"v_mov_b32 v{16 + j}, v{ACC + 4 * j}")
    e("ds_write_b128 v4, v[16:19]")
    e("ds_write_b128 v4, v[20:23] offset:16")
    e("s_waitcnt lgkmcnt(0)")
    stamp(8)
    tstamp(1)
    e("s_barrier")
    tstamp(2)
    e("s_branch L_wts2")

    e("L_H:")
    e("s_setprio 3")
    roles()
    e("v_mov_b32 v3, 0")
    estamp(1)
    e(f"s_cmp_lg_u32 s{S_WAVE}, 0")
    e("s_cbranch_scc1 L_H23")
    assert qx
    e(f"s_cmp_lt_u32 s{S_I2}, 7")
    e("s_cbranch_scc1 L_H23")
    P_QA, P_OUT = T + 5, T + 8
    e(f"s_lshl_b32 s{P_QA}, s{S_KH}, 1")
    if qx:
        e(f"s_lshr_b32 s{T}, s{S_HALF}, 1")
        e(f"s_add_u32 s{P_QA}, s{P_QA}, s{T}")
    e(f"s_lshl_b32 s{P_OUT}, s{S_XI}, 14")
    if "cgrot" in xp:
        e(f"s_add_u32 s{T}, s{S_SP}, 2")
        e(f"s_and_b32 s{T}, s{T}, 7")
        e(f"s_lshl_b32 s{T + 1}, s{S_KH}, 3")
        e(f"s_add_u32 s{T}, s{T}, s{T + 1}")
        e(f"s_lshl_b32 s{T}, s{T}, 10")
    else:
        e(f"s_lshl_b32 s{T}, s{S_Y}, 10")
    e(f"s_add_u32 s{P_OUT}, s{P_OUT}, s{T}")
    e(f"s_add_u32 s{P_OUT}, s{P_OUT}, {WS_Q}")
    e(f"s_lshl_b32 s{T}, s{S_L}, 1")
    e(f"s_add_u32 s{T}, s{T}, s{S_KH}")
    e(f"s_lshl_b32 s{T}, s{T}, 10")
    e(f"s_add_u32 s{T}, s{T}, {WS_H}")
    e(f"s_cmp_lt_u32 s{S_Y}, 16")
    e(f"s_cselect_b32 s{P_OUT}, s{P_OUT}, s{T}")
    if qx:
        e(f"s_lshl_b32 s{T}, s{S_XI}, 1")
        e(f"s_add_u32 s{T}, s{T}, s{S_KH}")
        e(f"s_lshl_b32 s{T}, s{T}, 10")
        e(f"s_add_u32 s{T}, s{T}, {WS_QX}")
        e(f"s_cmp_eq_u32 s{S_HALF}, 3")
        e(f"s_cselect_b32 s{P_OUT}, s{T}, s{P_OUT}")
    e("v_and_b32 v3, 3, v2")
    e("v_lshrrev_b32 v10, 2, v2")
    e("v_lshlrev_b32 v4, 10, v3")
    e("v_lshl_add_u32 v4, v10, 8, v4")
    e("v_lshl_add_u32 v4, v1, 4, v4")
    e("s_waitcnt lgkmcnt(0)")
    estamp(2)
    srd(R_B, S_X, S_X + 1, 4096)
    XR = 16
    for tau in range(4):
        e(f"buffer_load_dwordx4 {vr(XR + 4 * tau, 4)}, v4, s[{R_B}:{R_B + 3}], 0 offen offset:{64 * tau}")
    karg2()
    estamp(4)
    if rs8:
        e("v_lshlrev_b32 v14, 10, v10")
        e("v_lshl_add_u32 v14, v1, 7, v14")
    else:
        e("v_lshlrev_b32 v14, 10, v1")
        e("v_lshl_add_u32 v14, v10, 7, v14")
    e("v_lshl_add_u32 v14, v3, 3, v14")
    e(f"v_add_u32 v14, {L_T0}, v14")
    e(f"v_subrev_u32 v11, s{P_QA}, v10")
    e("v_and_b32 v11, 3, v11")
    e("v_lshlrev_b32 v5, 8, v3")
    e("v_lshl_add_u32 v5, v11, 6, v5")
    e("v_lshl_add_u32 v5, v1, 4, v5")
    e("v_cmp_ne_u32 s[64:65], 1, v11")
    e("v_cmp_ne_u32 s[66:67], 2, v11")
    e("v_cmp_ne_u32 s[68:69], 3, v11")
    e("s_waitcnt lgkmcnt(0)")
    epoch_load()
    srd(R_WS, S_WS, S_WS + 1, WS_SIZE)
    e("s_waitcnt vmcnt(0)")
    estamp(6)
    stamp(2)
    XF = 32
    for k in range(16):
        e(f"v_lshlrev_b32 v{XF + 2 * k}, 16, v{XR + k}")
        e(f"v_and_b32 v{XF + 2 * k + 1}, s{S_M16}, v{XR + k}")

    def lane_sum(r, t):
        e("s_nop 1")
        e(f"v_add_f32_dpp v{r}, v{r}, v{r} row_ror:4 row_mask:0xf bank_mask:0xf")
        e("s_nop 1")
        e(f"v_add_f32_dpp v{r}, v{r}, v{r} row_ror:8 row_mask:0xf bank_mask:0xf")
        xrow_reduce("v_add_f32", r, t)

    e(f"v_add_f32 v7, v{XF}, v{XF + 1}")
    e(f"v_add_f32 v8, v{XF + 2}, v{XF + 3}")
    for k in range(4, 32, 2):
        e(f"v_add_f32 v7, v7, v{XF + k}")
        e(f"v_add_f32 v8, v8, v{XF + k + 1}")
    e("v_add_f32 v7, v7, v8")
    lane_sum(7, 9)
    e("v_mul_f32 v7, 0x3b000000, v7")
    e(f"v_sub_f32 v12, v{XF}, v7")
    e(f"v_sub_f32 v6, v{XF + 1}, v7")
    e("v_mul_f32 v8, v12, v12")
    e("v_mul_f32 v13, v6, v6")
    for k in range(2, 32, 2):
        e(f"v_sub_f32 v12, v{XF + k}, v7")
        e(f"v_sub_f32 v6, v{XF + k + 1}, v7")
        e("v_fmac_f32 v8, v12, v12")
        e("v_fmac_f32 v13, v6, v6")
    e("v_add_f32 v8, v8, v13")
    lane_sum(8, 9)
    e("v_mul_f32 v8, 0x3b000000, v8")
    e("v_cvt_pk_bf16_f32 v9, v7, v8")
    e("v_lshlrev_b32 v7, 16, v9")
    e(f"v_and_b32 v8, s{S_M16}, v9")
    e("v_add_f32 v8, 0x3727c5ac, v8")
    e("v_cvt_pk_bf16_f32 v9, v8, v8")
    e(f"v_and_b32 v8, s{S_M16}, v9")
    e("v_sqrt_f32 v8, v8")
    e("s_nop 0")
    e("v_cvt_pk_bf16_f32 v9, v8, v8")
    e(f"v_and_b32 v8, s{S_M16}, v9")
    e("v_rcp_f32 v8, v8")
    BF = 16
    for k in range(16):
        a = XF + 2 * k
        e(f"v_sub_f32 v{a}, v{a}, v7")
        e(f"v_sub_f32 v{a + 1}, v{a + 1}, v7")
        e(f"v_cvt_pk_bf16_f32 v9, v{a}, v{a + 1}")
        e(f"v_lshlrev_b32 v{a}, 16, v9")
        e(f"v_and_b32 v{a + 1}, s{S_M16}, v9")
        e(f"v_mul_f32 v{a}, v{a}, v8")
        e(f"v_mul_f32 v{a + 1}, v{a + 1}, v8")
        e(f"v_cvt_pk_bf16_f32 v{BF + k}, v{a}, v{a + 1}")
    e("s_waitcnt lgkmcnt(0)")
    epoch_tag()
    estamp(7)
    stamp(3)
    e("s_barrier")
    estamp(8)
    stamp(4)
    AF = 64
    DD = 96

    def wread(bi):
        ct, hf = bi >> 1, bi & 1
        for t in range(4):
            r = AF + 16 * (bi & 1) + 4 * t
            tt = 4 * hf + t
            if rs8:
                o0 = (tt >> 1) * 8192 + (tt & 1) * 512 + ct * 32
                o1 = o0 + 4096
            else:
                o0 = tt * 4096 + ct * 32
                o1 = o0 + 512
            e(f"ds_read_b64_tr_b16 {vr(r, 2)}, v14 offset:{o0}")
            e(f"ds_read_b64_tr_b16 {vr(r + 2, 2)}, v14 offset:{o1}")

    wread(0)
    for bi in range(8):
        if bi < 7:
            wread(bi + 1)
            e("s_waitcnt lgkmcnt(8)")
        else:
            e("s_waitcnt lgkmcnt(0)")
        d = DD + 16 * (bi & 1) + 4 * (bi >> 1)
        for t in range(4):
            c = "0" if t == 0 else vr(d, 4)
            e(f"v_mfma_f32_16x16x32_bf16 {vr(d, 4)}, {vr(AF + 16 * (bi & 1) + 4 * t, 4)}, {vr(BF + 4 * t, 4)}, {c}")
    e(f"s_mov_b32 s{T}, 0x07060503")
    e(f"s_mov_b32 s{T + 1}, 0x07060502")
    e(f"s_mov_b32 s{T + 2}, 0x07060501")
    e("s_nop 4")
    for k in range(16):
        e(f"v_add_f32_dpp v{DD + k}, v{DD + 16 + k}, v{DD + k} row_ror:12 row_mask:0xf bank_mask:0xf")
    for ct in range(1, 4):
        e(f"s_mov_b64 vcc, s[{62 + 2 * ct}:{63 + 2 * ct}]")
        for i in range(4):
            e(f"v_cndmask_b32_dpp v{DD + i}, v{DD + 4 * ct + i}, v{DD + i}, vcc row_ror:{4 * ct} row_mask:0xf bank_mask:0xf")
    for i in range(4):
        e(f"v_add_u32 v{DD + i}, 0x80, v{DD + i}")
    for i in range(3):
        e(f"v_perm_b32 v{112 + i}, v{DD + i}, v{DD + 3}, s{T + i}")
    e("v_xor_b32 v115, v112, v113")
    e("v_xor_b32 v115, v115, v114")
    e(f"v_xor_b32 v115, s{S_TAG}, v115")
    if "nohand" not in xp:
        e(f"buffer_store_dwordx4 v[112:115], v5, {WSR}, s{P_OUT} offen sc1")
    stamp(5)
    if not b0x:
        e("s_waitcnt vmcnt(0)")
    e("L_qg:")
    if b0x:
        e("s_barrier")
    stamp(6)
    if "nohand" in xp or "pubonly" in xp:
        e("s_branch L_Hb1")
    e(f"s_lshl_b32 s{T}, s{S_XI}, 14")
    e(f"s_lshl_b32 s{T + 1}, s{S_B}, 8")
    e(f"s_add_u32 s{T}, s{T}, s{T + 1}")
    e(f"s_add_u32 s{T}, s{T}, {WS_Q}")
    e(f"s_add_u32 s{T + 1}, s{T}, 4096")
    e(f"s_add_u32 s{T + 2}, s{T}, 8192")
    e(f"s_add_u32 s{T + 3}, s{T}, 12288")
    e("v_lshlrev_b32 v5, 10, v1")
    e("v_lshl_add_u32 v5, v2, 4, v5")
    e("v_lshlrev_b32 v6, 3, v0")
    e(f"v_add_u32 v6, {L_QB}, v6")
    e(f"s_mov_b32 s{T + 4}, 0x04000c0c")
    e(f"s_mov_b32 s{T + 5}, 0x0706000c")
    QG = 16

    def unit_checks(regs, t0, t1):
        for r in regs:
            e(f"v_xor_b32 v{r + 3}, v{r + 3}, v{r}")
        for r in regs:
            e(f"v_xor_b32 v{r + 3}, v{r + 3}, v{r + 1}")
        for r in regs:
            e(f"v_xor_b32 v{r + 3}, v{r + 3}, v{r + 2}")
        tagcheck([r + 3 for r in regs], t0, t1)

    def unit_unpack(r):
        e(f"v_perm_b32 v{r + 3}, v{r}, v{r + 1}, s{T + 4}")
        e(f"v_perm_b32 v{r + 3}, v{r + 3}, v{r + 2}, s{T + 5}")
        for i in range(3):
            e(f"v_and_b32 v{r + i}, 0xffffff00, v{r + i}")

    QE = 32
    if qx:
        e(f"s_lshl_b32 s{T + 6}, s{S_XI}, 11")
        e(f"s_lshl_b32 s{T + 7}, s{S_B}, 8")
        e(f"s_add_u32 s{T + 6}, s{T + 6}, s{T + 7}")
        e(f"s_add_u32 s{T + 6}, s{T + 6}, {WS_QX}")
        e("v_lshlrev_b32 v7, 4, v2")
        e("s_mov_b32 s62, 0")
        e("s_mov_b32 s63, 0xffff0000")
    lab = poll_begin("pq")
    for kh in range(2):
        for m in range(2):
            r = QG + 8 * kh + 4 * m
            e(f"buffer_load_dwordx4 {vr(r, 4)}, v5, {WSR}, s{T + 2 * kh + m} offen sc1")
    if qx:
        lx = e.label("qx")
        e("s_mov_b64 s[66:67], exec")
        e("s_and_b64 exec, exec, s[62:63]")
        e(f"s_cbranch_execz {lx}")
        e(f"buffer_load_dwordx4 {vr(QE, 4)}, v7, {WSR}, s{T + 6} offen sc1")
        e(f"buffer_load_dwordx4 {vr(QE + 4, 4)}, v7, {WSR}, s{T + 6} offen offset:1024 sc1")
        e(f"{lx}:")
        e("s_mov_b64 exec, s[66:67]")
    e("s_waitcnt vmcnt(0)")
    if qx:
        for r in (QE, QE + 4):
            e(f"v_xor_b32 v{r + 3}, v{r + 3}, v{r}")
            e(f"v_xor_b32 v{r + 3}, v{r + 3}, v{r + 1}")
            e(f"v_xor_b32 v{r + 3}, v{r + 3}, v{r + 2}")
        e(f"v_cmp_ne_u32 s[66:67], s{S_TAG}, v{QE + 3}")
        e(f"v_cmp_ne_u32 vcc, s{S_TAG}, v{QE + 7}")
        e("s_or_b64 s[66:67], s[66:67], vcc")
        e("s_and_b64 s[66:67], s[66:67], s[62:63]")
    unit_checks([QG + 4 * k for k in range(4)], 8, 9)
    if qx:
        e("s_or_b64 vcc, vcc, s[66:67]")
    if "once" in xp:
        e("s_mov_b64 vcc, 0")
    poll_end(lab, 6)
    for k in range(4):
        unit_unpack(QG + 4 * k)
    if qx:
        unit_unpack(QE)
        unit_unpack(QE + 4)
        e("s_mov_b64 exec, s[62:63]")
        for i in range(4):
            e(f"v_add_f32 v{QG + i}, v{QG + i}, v{QE + i}")
            e(f"v_add_f32 v{QG + 8 + i}, v{QG + 8 + i}, v{QE + 4 + i}")
        e("s_mov_b64 exec, -1")
    for m in range(2):
        r = QG + 4 * m
        for i in range(4):
            e(f"v_add_f32 v{r + i}, v{r + i}, v{r + 8 + i}")
        e(f"v_cvt_pk_bf16_f32 v{r}, v{r}, v{r + 1}")
        e(f"v_cvt_pk_bf16_f32 v{r + 1}, v{r + 2}, v{r + 3}")
        e(f"ds_write_b64 v6, {vr(r, 2)} offset:{512 * m}")
    e("s_waitcnt lgkmcnt(0)")
    stamp(7)
    e("s_branch L_Hb1")

    e("L_H23:")
    e("s_waitcnt lgkmcnt(0)")
    karg2()
    e("s_waitcnt lgkmcnt(0)")
    epoch_load()
    srd(R_WS, S_WS, S_WS + 1, WS_SIZE)
    e("s_waitcnt lgkmcnt(0)")
    epoch_tag()
    if tlb:
        e(f"s_cmp_eq_u32 s{S_WAVE}, 3")
        e("s_cbranch_scc0 L_notlb")
        e(f"s_lshl_b32 s{T}, s{S_B}, 25")
        e(f"s_lshl_b32 s{T + 1}, s{S_XI}, 22")
        e(f"s_add_u32 s{T}, s{T}, s{T + 1}")
        e(f"s_lshl_b32 s{T + 1}, s{S_SP}, 17")
        e(f"s_add_u32 s{T}, s{T}, s{T + 1}")
        e(f"s_add_u32 s{T}, s{T}, 0x300000")
        e("s_mov_b64 exec, 1")
        e("v_mov_b32 v5, 0")
        srd(R_A, S_V, S_V + 1, 4 * 8 * 16384 * 256)
        e(f"buffer_load_dword v6, v5, s[{R_A}:{R_A + 3}], s{T} offen nt")
        e(f"s_lshl_b32 s{T}, s{S_XI}, 2")
        e(f"s_add_u32 s{T}, s{T}, s{S_B}")
        e(f"s_lshl_b32 s{T}, s{T}, 17")
        srd(R_A, S_WO, S_WO + 1, 4096 * 1024)
        e(f"buffer_load_dword v7, v5, s[{R_A}:{R_A + 3}], s{T} offen nt")
        e(f"s_mov_b32 s{T}, {WS_SP}")
        e(f"buffer_load_dword v8, v5, {WSR}, s{T} offen sc1")
        e("s_mov_b64 exec, -1")
        e("L_notlb:")
    e(f"s_cmp_eq_u32 s{S_WAVE}, 2")
    e("s_cbranch_scc0 L_noid")
    e(f"s_lshl_b32 s{T}, s{S_XI}, 8")
    e(f"s_lshl_b32 s{T + 1}, s{S_Y}, 3")
    e(f"s_add_u32 s{T}, s{T}, s{T + 1}")
    e(f"s_add_u32 s{T}, s{T}, {WS_ID}")
    e(f"s_getreg_b32 s{T + 2}, hwreg(HW_REG_XCC_ID, 0, 4)")
    e(f"v_mov_b32 v6, s{T + 2}")
    e(f"v_mov_b32 v7, s{S_TAG}")
    e("v_mov_b32 v5, 0")
    e("s_mov_b64 exec, 1")
    e(f"buffer_store_dwordx2 v[6:7], v5, {WSR}, s{T} offen sc1")
    e("s_mov_b64 exec, -1")
    e("L_noid:")
    e("s_barrier")
    e(f"s_cmp_eq_u32 s{S_WAVE}, 0")
    e("s_cbranch_scc1 L_qg")
    if b0x:
        e("s_barrier")

    e("L_Hb1:")
    e("s_barrier")
    if prio:
        e("s_setprio 0")
    HG = 32

    def hloads():
        for lp in range(4):
            for kh in range(2):
                r = HG + 8 * lp + 4 * kh
                e(f"buffer_load_dwordx4 {vr(r, 4)}, v3, {WSR}, s{T + (lp >> 1)} offen offset:{(lp & 1) * 2048 + 1024 * kh} sc1")

    e(f"s_mov_b32 s{T + 4}, s{S_I2}")
    e(f"s_cmp_lt_u32 s{T + 4}, 7")
    e(f"s_cselect_b32 s{T + 6}, s{S_WAVE}, 0")
    if "nohand" in xp or "noh" in xp or "pubonly" in xp or "once" in xp:
        e(f"s_mov_b32 s{T + 6}, 0")
    e(f"s_cmp_eq_u32 s{T + 6}, 3")
    e("s_cbranch_scc0 L_noh1")
    e(f"s_lshl_b32 s{T}, s{T + 4}, 13")
    e(f"s_add_u32 s{T}, s{T}, {WS_H}")
    e(f"s_add_u32 s{T + 1}, s{T}, 4096")
    e("v_lshlrev_b32 v3, 4, v0")
    hloads()
    e("L_noh1:")
    e(f"s_lshl_b32 s{T + 10}, s{S_XI}, 8")
    e(f"s_add_u32 s{T + 10}, s{T + 10}, {WS_ID}")
    e("v_and_b32 v30, 31, v0")
    e("v_lshlrev_b32 v30, 3, v30")
    e(f"s_cmp_eq_u32 s{S_WAVE}, 0")
    e("s_cbranch_scc0 L_noid2")
    e(f"buffer_load_dwordx2 v[30:31], v30, {WSR}, s{T + 10} offen sc1")
    e("L_noid2:")
    e("s_barrier")
    e("s_barrier")
    stamp(8)
    e(f"s_mov_b32 s{S_SAME}, 0")
    e(f"s_cmp_eq_u32 s{S_WAVE}, 0")
    e("s_cbranch_scc0 L_noid3")
    e(f"s_getreg_b32 s{T + 10}, hwreg(HW_REG_XCC_ID, 0, 4)")
    e("s_waitcnt vmcnt(0)")
    e(f"v_cmp_ne_u32 s[64:65], s{S_TAG}, v31")
    e(f"v_cmp_ne_u32 vcc, s{T + 10}, v30")
    e("s_or_b64 vcc, vcc, s[64:65]")
    e("s_cmp_eq_u64 vcc, 0")
    e(f"s_cselect_b32 s{S_SAME}, 1, 0")
    if "noxcc" in xp:
        e(f"s_mov_b32 s{S_SAME}, 0")
    e(f"v_mov_b32 v30, {L_SCALE + 16}")
    e(f"v_mov_b32 v31, s{S_SAME}")
    e("ds_write_b32 v30, v31")
    e("L_noid3:")
    e(f"s_cmp_eq_u32 s{T + 6}, 3")
    e("s_cbranch_scc0 L_noh2")
    e("v_lshlrev_b32 v6, 9, v1")
    e("v_lshl_add_u32 v6, v2, 3, v6")
    e(f"v_add_u32 v6, {L_HB}, v6")
    e(f"s_mov_b32 s{T + 4}, 0x04000c0c")
    e(f"s_mov_b32 s{T + 5}, 0x0706000c")
    lab = e.label("ph")
    e(f"s_mov_b32 s{T + 17}, {POLL_LIMIT}")
    e(f"{lab}:")
    e("s_waitcnt vmcnt(0)")
    unit_checks([HG + 4 * k for k in range(8)], 8, 9)
    e("s_cmp_eq_u64 vcc, 0")
    e(f"s_cbranch_scc1 {lab}_d")
    e(f"s_sub_u32 s{T + 17}, s{T + 17}, 1")
    e(f"s_cbranch_scc1 {lab}_d")
    e("s_sleep 4")
    hloads()
    e(f"s_branch {lab}")
    e(f"{lab}_d:")
    for k in range(8):
        unit_unpack(HG + 4 * k)
    for lp in range(4):
        r = HG + 8 * lp
        for i in range(4):
            e(f"v_add_f32 v{r + i}, v{r + i}, v{r + 4 + i}")
        for i in range(4):
            e(f"v_max_f32 v{r + i}, 0, v{r + i}")
        e(f"v_cvt_pk_bf16_f32 v{r}, v{r}, v{r + 1}")
        e(f"v_cvt_pk_bf16_f32 v{r + 1}, v{r + 2}, v{r + 3}")
        e(f"ds_write_b64 v6, {vr(r, 2)} offset:{128 * lp}")
    e("L_noh2:")
    e(f"s_cmp_eq_u32 s{S_WAVE}, 2")
    e("s_cbranch_scc0 L_nolse")
    e("v_lshlrev_b32 v3, 2, v0")
    e(f"ds_read2st64_b32 v[6:7], v3 offset0:{L_LSUM // 256} offset1:{L_LSUM // 256 + 1}")
    e(f"ds_read2st64_b32 v[8:9], v3 offset0:{L_LSUM // 256 + 2} offset1:{L_LSUM // 256 + 3}")
    e("v_lshlrev_b32 v4, 4, v1")
    e(f"v_add_u32 v4, {L_MAX}, v4")
    e("ds_read2st64_b32 v[10:11], v4 offset0:0 offset1:1")
    e("ds_read2st64_b32 v[12:13], v4 offset0:2 offset1:3")
    e(f"s_mov_b32 s{S_L2E}, 0x3fb8aa3b")
    e(f"s_lshl_b32 s{T}, s{S_XI}, 12")
    e(f"s_lshl_b32 s{T + 1}, s{S_B}, 10")
    e(f"s_add_u32 s{T}, s{T}, s{T + 1}")
    e(f"s_add_u32 s{T}, s{T}, {WS_LSE}")
    e(f"s_lshl_b32 s{T + 1}, s{S_SP}, 7")
    e(f"s_add_u32 s{T + 1}, s{T + 1}, s{T}")
    e("s_waitcnt lgkmcnt(0)")
    e("v_add_f32 v6, v6, v7")
    e("v_add_f32 v8, v8, v9")
    e("v_max3_f32 v10, v10, v11, v12")
    e("v_add_f32 v6, v6, v8")
    e("v_max_f32 v10, v10, v13")
    e("v_rcp_f32 v11, v6")
    e("v_log_f32 v6, v6")
    e(f"v_mul_f32 v10, s{S_L2E}, v10")
    e("v_lshlrev_b32 v5, 3, v1")
    e("v_add_f32 v6, v6, v10")
    e(f"v_mov_b32 v7, s{S_TAG}")
    e("v_cmp_eq_u32 vcc, 0, v2")
    e("s_and_saveexec_b64 s[64:65], vcc")
    e(f"buffer_store_dwordx2 v[6:7], v5, {WSR}, s{T + 1} offen sc1")
    e("s_mov_b64 exec, s[64:65]")
    e("v_lshlrev_b32 v5, 2, v1")
    e(f"v_add_u32 v5, {L_SCALE}, v5")
    e("v_cmp_eq_u32 vcc, 0, v2")
    e("s_and_saveexec_b64 s[64:65], vcc")
    e("ds_write_b32 v5, v11")
    e("s_mov_b64 exec, s[64:65]")
    e("L_nolse:")
    WF = 32
    e("v_lshrrev_b32 v10, 2, v2")
    e("v_and_b32 v11, 3, v2")
    e("v_lshlrev_b32 v4, 10, v1")
    e("v_lshl_add_u32 v4, v10, 7, v4")
    e("v_lshl_add_u32 v4, v11, 3, v4")
    e(f"s_lshl_b32 s{T}, s{S_WAVE}, 5")
    e(f"v_add_u32 v4, s{T}, v4")
    e("v_lshlrev_b32 v6, 9, v11")
    e("v_lshl_add_u32 v6, v1, 4, v6")
    e(f"v_add_u32 v6, {L_HB}, v6")
    e("v_lshlrev_b32 v9, 6, v2")
    e("v_lshl_add_u32 v9, v1, 4, v9")
    e(f"v_mov_b32 v17, s{S_TAG}")
    e(f"v_mov_b32 v19, s{S_TAG}")
    e("s_waitcnt lgkmcnt(0)")
    e("s_barrier")
    e(f"s_cmp_eq_u32 s{S_WAVE}, 1")
    e("s_cbranch_scc0 L_noid4")
    e(f"v_mov_b32 v30, {L_SCALE + 16}")
    e("ds_read_b32 v30, v30")
    e("s_waitcnt lgkmcnt(0)")
    e(f"v_readfirstlane_b32 s{S_SAME}, v30")
    e("L_noid4:")
    e(f"s_mov_b32 s{T + 4}, s{S_I2}")
    e(f"s_cmp_ge_u32 s{T + 4}, 7")
    e("s_cbranch_scc1 L_nog2")
    e(f"v_add_u32 v7, {L_T0}, v4")
    for t in range(8):
        ad, off = ("v7", t * 4096) if t < 6 else ("v4", L_W2B + (t - 6) * 4096)
        e(f"ds_read_b64_tr_b16 {vr(64 + 4 * t, 2)}, {ad} offset:{off}")
        e(f"ds_read_b64_tr_b16 {vr(64 + 4 * t + 2, 2)}, {ad} offset:{off + 512}")
        if t == 3:
            e("s_waitcnt lgkmcnt(4)")
    e("s_waitcnt lgkmcnt(4)")
    for t in range(8):
        e(f"ds_read_b128 {vr(128 + 4 * t, 4)}, v6 offset:{64 * t}")
    e("s_waitcnt lgkmcnt(0)")
    for t in range(8):
        c = "0" if t == 0 else "v[12:15]"
        e(f"v_mfma_f32_16x16x32_bf16 v[12:15], {vr(64 + 4 * t, 4)}, {vr(128 + 4 * t, 4)}, {c}")
    e("s_nop 7")
    e("v_cvt_pk_bf16_f32 v20, v12, v13")
    e("v_cvt_pk_bf16_f32 v22, v14, v15")
    e(f"s_lshl_b32 s{T}, s{S_C2}, 15")
    e(f"s_lshl_b32 s{T + 1}, s{T + 4}, 10")
    e(f"s_add_u32 s{T}, s{T}, s{T + 1}")
    e(f"s_lshl_b32 s{T + 1}, s{S_WAVE}, 8")
    e(f"s_add_u32 s{T}, s{T}, s{T + 1}")
    e(f"s_add_u32 s{T}, s{T}, {WS_GP}")
    e(f"v_mov_b32 v21, s{S_TAG}")
    e(f"v_mov_b32 v23, s{S_TAG}")
    e("v_cmp_gt_u32 vcc, 4, v2")
    e("s_and_saveexec_b64 s[64:65], vcc")
    e(f"buffer_store_dwordx4 v[20:23], v9, {WSR}, s{T} offen sc1")
    e("s_mov_b64 exec, s[64:65]")
    e("L_nog2:")
    e("v_lshrrev_b32 v24, 5, v0")
    e(f"s_lshl_b32 s{T}, s{S_WAVE}, 1")
    e(f"v_add_u32 v24, s{T}, v24")
    e("v_and_b32 v25, 31, v0")
    e("v_lshlrev_b32 v25, 4, v25")
    e("v_lshl_add_u32 v26, v24, 9, v25")
    e("v_lshl_add_u32 v27, v24, 14, v25")
    e("v_lshlrev_b32 v28, 2, v24")
    e(f"v_add_u32 v28, {L_SCALE}, v28")
    e(f"s_lshl_b32 s{T + 11}, s{S_XI}, 16")
    e(f"s_lshl_b32 s{T + 1}, s{S_SP}, 11")
    e(f"s_add_u32 s{T + 11}, s{T + 11}, s{T + 1}")
    e(f"s_lshl_b32 s{T + 1}, s{S_B}, 9")
    e(f"s_add_u32 s{T + 11}, s{T + 11}, s{T + 1}")
    e(f"s_add_u32 s{T + 11}, s{T + 11}, {WS_OP}")
    e(f"v_mov_b32 v81, s{S_TAG}")
    e(f"v_mov_b32 v83, s{S_TAG}")
    e(f"s_lshl_b32 s{T + 14}, s{S_XI}, 2")
    e(f"s_add_u32 s{T + 14}, s{T + 14}, s{S_B}")
    e(f"s_lshl_b32 s{T + 14}, s{T + 14}, 10")
    e(f"s_lshl_b32 s{T + 1}, s{S_SP}, 15")
    e(f"s_add_u32 s{T + 14}, s{T + 14}, s{T + 1}")
    e(f"s_lshl_b32 s{T + 1}, s{S_WAVE}, 8")
    e(f"s_add_u32 s{T + 14}, s{T + 14}, s{T + 1}")
    e(f"s_add_u32 s{T + 14}, s{T + 14}, {WS_SP}")
    e("v_and_b32 v12, 3, v2")
    e("v_lshlrev_b32 v12, 8, v12")
    e("v_lshl_add_u32 v12, v1, 4, v12")
    e(f"v_add_u32 v12, {L_OBF}, v12")
    e(f"v_add_u32 v4, {L_WO}, v4")
    tail_addrs()
    stamp(9)

    tstamp(1)
    if prio:
        e("s_setprio 3")
    e("s_barrier")
    tstamp(2)
    e(f"s_cmp_lt_u32 s{S_WAVE}, 2")
    e("s_cbranch_scc0 L_nopub")
    for sw_ in range(4):
        e(f"ds_read_b128 {vr(64 + 4 * sw_, 4)}, v26 offset:{sw_ * 2048}")
    e("ds_read_b32 v29, v28")
    e("s_waitcnt lgkmcnt(0)")
    for i in range(4):
        e(f"v_add_f32 v{64 + i}, v{64 + i}, v{68 + i}")
        e(f"v_add_f32 v{72 + i}, v{72 + i}, v{76 + i}")
    for i in range(4):
        e(f"v_add_f32 v{64 + i}, v{64 + i}, v{72 + i}")
    for i in range(4):
        e(f"v_mul_f32 v{64 + i}, v{64 + i}, v29")
    e("v_cvt_pk_bf16_f32 v80, v64, v65")
    e("v_cvt_pk_bf16_f32 v82, v66, v67")
    e(f"s_cmp_eq_u32 s{S_SAME}, 1")
    e("s_cbranch_scc1 L_publ")
    e(f"buffer_store_dwordx4 v[80:83], v27, {WSR}, s{T + 11} offen sc1")
    e("s_branch L_pubs")
    e("L_publ:")
    e(f"buffer_store_dwordx4 v[80:83], v27, {WSR}, s{T + 11} offen")
    e("L_pubs:")
    tstamp(3)
    e("L_nopub:")
    e("L_wts2:")
    lse_loads()
    tstamp(5)
    if hint:
        e("v_lshlrev_b32 v6, 11, v0")
        e("v_add_u32 v6, 252, v6")
        e("s_mov_b64 exec, 0xff")
        lab = poll_begin("ph2")
        e(f"buffer_load_dword v8, v6, {WSR}, s{T} offen sc1")
        e("s_waitcnt vmcnt(0)")
        tagcheck([8], 0, 0)
        poll_end(lab, tsleep)
    def oloads():
        e(f"buffer_load_dwordx4 v[{OG}:{OG + 3}], v{VO}, {WSR}, s{S_O0} offen sc1")
        e(f"buffer_load_dwordx4 v[{OG + 4}:{OG + 7}], v{VO}, {WSR}, s{S_O1} offen sc1")

    oloads()
    e("s_waitcnt vmcnt(2)")
    weights(waited=True)
    tstamp(4)
    lab = e.label("po")
    e(f"s_mov_b32 s{T + 17}, {POLL_LIMIT}")
    e(f"s_branch {lab}_c")
    e(f"{lab}:")
    oloads()
    e(f"{lab}_c:")
    e("s_waitcnt vmcnt(0)")
    tagcheck([OG + 1, OG + 3, OG + 5, OG + 7], 8, 7)
    poll_end(lab, tsleep)
    stamp(10)
    tstamp(6)
    e(f"v_lshlrev_b32 v56, 16, v{OG}")
    e(f"v_and_b32 v57, s{S_M16}, v{OG}")
    e(f"v_lshlrev_b32 v58, 16, v{OG + 2}")
    e(f"v_and_b32 v59, s{S_M16}, v{OG + 2}")
    e(f"v_lshlrev_b32 v60, 16, v{OG + 4}")
    e(f"v_and_b32 v61, s{S_M16}, v{OG + 4}")
    e(f"v_lshlrev_b32 v62, 16, v{OG + 6}")
    e(f"v_and_b32 v63, s{S_M16}, v{OG + 6}")
    for i in range(4):
        e(f"v_mul_f32 v{56 + i}, v{56 + i}, v110")
    for i in range(4):
        e(f"v_fmac_f32 v{56 + i}, v{60 + i}, v111")
    e("s_nop 0")
    e("v_permlane32_swap_b32 v56, v58")
    e("v_permlane32_swap_b32 v57, v59")
    e("s_nop 0")
    e("v_add_f32 v56, v56, v58")
    e("v_add_f32 v57, v57, v59")
    e("s_nop 1")
    e("v_permlane16_swap_b32 v56, v57")
    e("s_nop 1")
    e("v_add_f32 v56, v56, v57")
    e("v_cvt_pk_bf16_f32 v56, v56, v56")
    e(f"ds_write_b16 v{VL}, v56")
    e("s_waitcnt vmcnt(0) lgkmcnt(0)")
    e("s_barrier")
    tstamp(7)
    e(f"s_cmp_lt_u32 s{S_WAVE}, 4")
    e("s_cbranch_scc0 L_final")
    BB = 96
    for t in range(4):
        e(f"ds_read_b128 {vr(BB + 4 * t, 4)}, v12 offset:{64 * t}")
        e(f"ds_read_b64_tr_b16 {vr(WF + 4 * t, 2)}, v4 offset:{t * 4096}")
        e(f"ds_read_b64_tr_b16 {vr(WF + 4 * t + 2, 2)}, v4 offset:{t * 4096 + 512}")
    e("v_cmp_gt_u32 vcc, 4, v2")
    for t in range(4):
        e(f"s_waitcnt lgkmcnt({9 - 3 * t})")
        c = "0" if t == 0 else "v[12:15]"
        e(f"v_mfma_f32_16x16x32_bf16 v[12:15], {vr(WF + 4 * t, 4)}, {vr(BB + 4 * t, 4)}, {c}")
    e("s_nop 7")
    e("v_cvt_pk_bf16_f32 v16, v12, v13")
    e("v_cvt_pk_bf16_f32 v18, v14, v15")
    e("s_and_saveexec_b64 s[64:65], vcc")
    e(f"buffer_store_dwordx4 v[16:19], v9, {WSR}, s{T + 14} offen {spst}")
    stamp(11)
    stamp_flush()
    e("s_endpgm")

    e("L_final:")
    e(f"s_cmp_gt_u32 s{S_WAVE}, 5")
    e("s_cbranch_scc0 L_fin0")
    stamp_flush()
    e("s_endpgm")
    e("L_fin0:")
    e("v_lshrrev_b32 v3, 1, v0")
    e("v_lshlrev_b32 v3, 10, v3")
    e("v_and_b32 v4, 1, v0")
    e("v_lshl_add_u32 v3, v4, 4, v3")
    e(f"s_lshl_b32 s{T}, s{S_XI}, 15")
    e(f"s_lshl_b32 s{T + 1}, s{S_B}, 6")
    e(f"s_add_u32 s{T}, s{T}, s{T + 1}")
    e(f"s_lshr_b32 s{T + 1}, s{S_SP}, 1")
    e(f"s_lshl_b32 s{T + 1}, s{T + 1}, 8")
    e(f"s_add_u32 s{T}, s{T}, s{T + 1}")
    e(f"s_and_b32 s{T + 1}, s{S_SP}, 1")
    e(f"s_lshl_b32 s{T + 1}, s{T + 1}, 5")
    e(f"s_add_u32 s{T}, s{T}, s{T + 1}")
    e(f"s_lshl_b32 s{T + 4}, s{S_B}, 10")
    e(f"s_lshl_b32 s{T + 5}, s{S_XI}, 7")
    e(f"s_add_u32 s{T + 4}, s{T + 4}, s{T + 5}")
    e(f"s_lshl_b32 s{T + 5}, s{S_SP}, 4")
    e(f"s_add_u32 s{T + 4}, s{T + 4}, s{T + 5}")
    e("v_lshlrev_b32 v5, 3, v4")
    e("v_lshlrev_b32 v6, 5, v4")
    e(f"v_add_u32 v6, {L_FIN}, v6")

    def unpack4(dst, lo, hi):
        e(f"v_lshlrev_b32 v{dst}, 16, v{lo}")
        e(f"v_and_b32 v{dst + 1}, s{S_M16}, v{lo}")
        e(f"v_lshlrev_b32 v{dst + 2}, 16, v{hi}")
        e(f"v_and_b32 v{dst + 3}, s{S_M16}, v{hi}")

    def red32(base):
        e("s_nop 0")
        for rot in (2, 4, 8):
            for i in range(4):
                e(f"v_add_f32_dpp v{base + i}, v{base + i}, v{base + i} row_ror:{rot} row_mask:0xf bank_mask:0xf")
        for sw_ in ("v_permlane16_swap_b32", "v_permlane32_swap_b32"):
            for i in range(4):
                e(f"v_mov_b32 v{base + 4 + i}, v{base + i}")
            e("s_nop 0")
            for i in range(4):
                e(f"{sw_} v{base + 4 + i}, v{base + i}")
            for i in range(4):
                e(f"v_add_f32 v{base + i}, v{base + i}, v{base + 4 + i}")

    e(f"s_cmp_eq_u32 s{S_WAVE}, 4")
    e("s_cbranch_scc1 L_fins")
    e(f"s_add_u32 s{T + 2}, s{T}, {WS_GP}")
    e("v_cmp_gt_u32 s[66:67], 14, v0")
    e("v_cmp_eq_u32 vcc, 1, v4")
    e(f"v_mov_b32 v20, s{S_RES}")
    e(f"v_mov_b32 v21, s{S_RES + 1}")
    e(f"v_mov_b32 v22, s{S_RES + 2}")
    e(f"v_mov_b32 v23, s{S_RES + 3}")
    e("v_cndmask_b32 v20, v20, v22, vcc")
    e("v_cndmask_b32 v21, v21, v23, vcc")
    lab = poll_begin("pgp")
    e(f"buffer_load_dwordx4 v[32:35], v3, {WSR}, s{T + 2} offen sc1")
    e("s_waitcnt vmcnt(0)")
    tagcheck([33, 35], 0, 0)
    e("s_and_b64 vcc, vcc, s[66:67]")
    poll_end(lab, tsleep)
    e("v_cndmask_b32 v32, 0, v32, s[66:67]")
    e("v_cndmask_b32 v34, 0, v34, s[66:67]")
    unpack4(24, 32, 34)
    red32(24)
    e("v_cvt_pk_bf16_f32 v8, v24, v25")
    e("v_cvt_pk_bf16_f32 v9, v26, v27")
    unpack4(24, 8, 9)
    e(f"s_mov_b32 s{T + 5}, 0xbfb8aa3b")
    for i in range(4):
        e(f"v_mul_f32 v{28 + i}, s{T + 5}, v{24 + i}")
    for i in range(4):
        e(f"v_exp_f32 v{28 + i}, v{28 + i}")
    e("s_nop 0")
    for i in range(4):
        e(f"v_add_f32 v{28 + i}, 1.0, v{28 + i}")
    for i in range(4):
        e(f"v_rcp_f32 v{28 + i}, v{28 + i}")
    e("s_nop 0")
    for i in range(4):
        e(f"v_mul_f32 v{24 + i}, v{24 + i}, v{28 + i}")
    e("v_cvt_pk_bf16_f32 v8, v24, v25")
    e("v_cvt_pk_bf16_f32 v9, v26, v27")
    unpack4(24, 8, 9)
    unpack4(28, 20, 21)
    e("s_mov_b64 exec, 3")
    e("ds_write_b128 v6, v[24:27]")
    e("ds_write_b128 v6, v[28:31] offset:16")
    e("s_waitcnt lgkmcnt(0)")
    tstamp(8)
    e("s_barrier")
    stamp_flush()
    e("s_endpgm")
    e("L_fins:")
    e(f"s_add_u32 s{T + 3}, s{T}, {WS_SP}")
    srd(R_B, S_OUT, S_OUT + 1, 4096)
    e("v_lshlrev_b32 v7, 2, v1")
    e("v_add_u32 v6, v6, v7")
    e("v_lshl_add_u32 v5, v1, 1, v5")
    e("s_mov_b32 s62, 0x00030003")
    e("s_mov_b32 s63, 0x00030003")
    lab = poll_begin("psp")
    e(f"buffer_load_dwordx4 v[32:35], v3, {WSR}, s{T + 3} offen {spld}")
    e("s_waitcnt vmcnt(0)")
    tagcheck([33, 35], 0, 0)
    poll_end(lab, tsleep)
    tstamp(9)
    unpack4(40, 32, 34)
    e("s_nop 0")
    e("v_permlane32_swap_b32 v40, v42")
    e("v_permlane32_swap_b32 v41, v43")
    e("s_nop 0")
    e("v_add_f32 v40, v40, v42")
    e("v_add_f32 v41, v41, v43")
    e("s_nop 1")
    e("v_permlane16_swap_b32 v40, v41")
    e("s_nop 1")
    e("v_add_f32 v40, v40, v41")
    for rot in (2, 4, 8):
        e("s_nop 1")
        e(f"v_add_f32_dpp v40, v40, v40 row_ror:{rot} row_mask:0xf bank_mask:0xf")
    e("s_barrier")
    e("ds_read2_b32 v[24:25], v6 offset0:0 offset1:4")
    e("v_cvt_pk_bf16_f32 v8, v40, v40")
    e("v_lshlrev_b32 v40, 16, v8")
    e("s_waitcnt lgkmcnt(0)")
    e("v_mul_f32 v40, v40, v24")
    e("v_cvt_pk_bf16_f32 v8, v40, v40")
    e("v_lshlrev_b32 v40, 16, v8")
    e("v_add_f32 v40, v40, v25")
    e("v_cvt_pk_bf16_f32 v8, v40, v40")
    e("s_mov_b64 exec, s[62:63]")
    e(f"buffer_store_short v8, v5, s[{R_B}:{R_B + 3}], s{T + 4} offen")
    e("s_cmp_eq_u32 s2, 0")
    e("s_cbranch_scc0 L_noep")
    e("s_mov_b64 exec, 1")
    e(f"v_mov_b32 v6, {WS_E}")
    e(f"v_mov_b32 v7, s{S_TAG}")
    e(f"buffer_store_dword v7, v6, {WSR}, 0 offen")
    e("L_noep:")
    stamp(11)
    stamp_flush()
    e("L_end:")
    e("s_endpgm")
    e(f".fill ({20480 if diag else 16384} - (. - {KN}_kernel)) / 4, 4, 0xbf800000")
    e('.section .rodata,"a"')
    e(".p2align 6")
    e(f".amdhsa_kernel {KN}_kernel")
    e("  .amdhsa_next_free_vgpr 256")
    e("  .amdhsa_next_free_sgpr 102")
    e("  .amdhsa_accum_offset 256")
    e("  .amdhsa_group_segment_fixed_size 0")
    e("  .amdhsa_kernarg_size 88")
    e("  .amdhsa_user_sgpr_count 2")
    e("  .amdhsa_user_sgpr_kernarg_segment_ptr 1")
    e("  .amdhsa_system_sgpr_workgroup_id_x 1")
    e(".end_amdhsa_kernel")
    return e.text()


if __name__ == "__main__":
    import argparse
    ap = argparse.ArgumentParser()
    ap.add_argument("-o", default="k.s")
    ap.add_argument("--diag", action="store_true")
    ap.add_argument("--early", action="store_true")
    ap.add_argument("--thr", type=int, default=7)
    ap.add_argument("--kpol", default="nt")
    ap.add_argument("--wpol", default="nt")
    ap.add_argument("--hint", action="store_true")
    ap.add_argument("--thr2", type=int, default=9)
    ap.add_argument("--nshallow", type=int, default=5)
    ap.add_argument("--light", action="store_true")
    ap.add_argument("--tail", action="store_true")
    ap.add_argument("--wint", action="store_true")
    ap.add_argument("--nopar", action="store_true")
    ap.add_argument("--thr0", type=int, default=None)
    ap.add_argument("--thr3", type=int, default=9)
    ap.add_argument("--tlb", action="store_true")
    ap.add_argument("--k2", action="store_true")
    ap.add_argument("--prio", action="store_true")
    ap.add_argument("--nob0x", action="store_true")
    ap.add_argument("--noqx", action="store_true")
    ap.add_argument("--rs8", action="store_true")
    ap.add_argument("--late", type=int, default=1)
    ap.add_argument("--pfn", type=int, default=8)
    ap.add_argument("--spld", default="sc1")
    ap.add_argument("--spst", default="sc1")
    ap.add_argument("--xp", default="")
    ap.add_argument("--tsleep", type=int, default=1)
    a = ap.parse_args()
    open(a.o, "w").write(gen(diag=a.diag, thr=a.thr, kpol=a.kpol, wpol=a.wpol, early=a.early, hint=a.hint, thr2=a.thr2, nshallow=a.nshallow, tsleep=a.tsleep, light=a.light, xp=tuple(a.xp.split(',')), tailst=a.tail, spld=a.spld, spst=a.spst, wint=a.wint, pfn=a.pfn, late=a.late, rs8=a.rs8, qx=not a.noqx, b0x=not a.nob0x, k2first=a.k2, prio=a.prio, tlb=a.tlb, thr3=a.thr3, thr0=a.thr0, par=not a.nopar))
```
